```python
import torch

def _softmax(x, axis=-1):
    return torch.softmax(x, dim=axis)
def _gelu(x):
    return torch.nn.functional.gelu(x, approximate="tanh")
def _silu(x):
    return torch.nn.functional.silu(x)
def _sigmoid(x):
    return torch.sigmoid(x)
def _layernorm(x, axis=-1, eps=1e-5):
    m = x.mean(dim=axis, keepdim=True)
    v = x.var(dim=axis, keepdim=True, unbiased=False)
    return (x - m) / torch.sqrt(v + eps)
def _scatter_add(tgt, idx, src, axis=0):
    return tgt.clone().index_add_(axis, idx, src)
def _segment_sum(src, seg, n):
    out = torch.zeros((n,) + src.shape[1:], dtype=src.dtype)
    return out.index_add_(0, seg, src)
def _pad(x, pw):
    flat = tuple(v for pair in reversed(pw) for v in pair)
    return torch.nn.functional.pad(x, flat)

kernel_name = 'concat_heads__mha_block__compressed_kv_cla__prompt'

def setup_inputs():

    _w = (lambda a: (lambda t: t.to(torch.bfloat16) if t.is_floating_point() else t)(torch.as_tensor(a)))
    def _A_setup():
        B, S, D, H = 1, 2048, 512, 32
        return {
            "x": _w((lambda *s: torch.randn(*s, dtype=torch.bfloat16) * 0.4)(B, S, D)),
            "wqkv": _w((lambda *s: torch.randn(*s, dtype=torch.bfloat16) * 0.4)(D, 3 * D)),
            "wo": _w((lambda *s: torch.randn(*s, dtype=torch.bfloat16) * 0.05)(D, D)),
        }
    _A_in = _A_setup()

    def _B_setup():
        B, H, Sq, Sk, D, M = 1, 32, 2048, 2048, 128, 512
        Dc = 4 * D
        return {
            "x": _w((lambda *s: torch.randn(*s, dtype=torch.bfloat16) * 0.2)(B, Sq, M)),
            "c_kv": _w((lambda *s: torch.randn(*s, dtype=torch.bfloat16) * 1.6)(B, Sk, Dc)),
            "w_q": _w((lambda *s: torch.randn(*s, dtype=torch.bfloat16) * 3.2)(M, H, D) * (M ** -0.5)),
            "w_uk": _w((lambda *s: torch.randn(*s, dtype=torch.bfloat16) * 3.2)(Dc, H, D) * (Dc ** -0.5)),
            "w_uv": _w((lambda *s: torch.randn(*s, dtype=torch.bfloat16) * 1.6)(Dc, H, D) * (Dc ** -0.5)),
            "w_o": _w((lambda *s: torch.randn(*s, dtype=torch.bfloat16) * 1.6)(H, D, M) * ((H * D) ** -0.5)),
        }
    _B_in = _B_setup()

    return {
        "A_x": _A_in["x"],
        "A_wqkv": _A_in["wqkv"],
        "A_wo": _A_in["wo"],
        "B_x": _B_in["x"],
        "B_c_kv": _B_in["c_kv"],
        "B_w_q": _B_in["w_q"],
        "B_w_uk": _B_in["w_uk"],
        "B_w_uv": _B_in["w_uv"],
        "B_w_o": _B_in["w_o"],
    }

def reference(A_x, A_wqkv, A_wo, B_x, B_c_kv, B_w_q, B_w_uk, B_w_uv, B_w_o):
    def _A_ref(x, wqkv, wo):
        B, S, D = x.shape
        H = 32
        Dh = D // H
        qkv = (lambda x, *d: x.permute(*d))((x @ wqkv).reshape(B, S, 3, H, Dh), 2, 0, 3, 1, 4)
        q, k, v = qkv[0], qkv[1], qkv[2]
        scores = torch.einsum("bhqd,bhkd->bhqk", q, k) * (Dh ** -0.5)
        p = _softmax(scores, axis=-1)
        o = torch.einsum("bhqk,bhkd->bhqd", p, v)
        return (lambda x, *d: x.permute(*d))(o, 0, 2, 1, 3).reshape(B, S, D) @ wo

    def _B_ref(x, c_kv, w_q, w_uk, w_uv, w_o):
        B, Sq, M = x.shape[0], x.shape[1], x.shape[2]
        Sk = c_kv.shape[1]
        H, D = w_q.shape[1], w_q.shape[2]
        q = torch.einsum("bqm,mhd->bhqd", x, w_q)
        k = torch.einsum("bkc,chd->bhkd", c_kv, w_uk)
        v = torch.einsum("bkc,chd->bhkd", c_kv, w_uv)
        scores = torch.einsum("bhqd,bhkd->bhqk", q, k) * (D ** -0.5)
        off = Sk - Sq
        qi = torch.arange(Sq)[:, None]
        kj = torch.arange(Sk)[None, :]
        cmask = kj <= (qi + off)
        scores = torch.where(cmask[None, None], scores, -1e9)
        p = _softmax(scores, axis=-1)
        ctx = torch.einsum("bhqk,bhkd->bhqd", p, v)
        return torch.einsum("bhqd,hdm->bqm", ctx, w_o)

    a = _A_ref(A_x, A_wqkv, A_wo)
    b = _B_ref(B_x, B_c_kv, B_w_q, B_w_uk, B_w_uv, B_w_o)
    return torch.concatenate([a, b], axis=-1)
```

```python
from fw import *

MB = 1 << 20
WS_QB = 0
WS_KB = 16 * MB
WS_VB = 32 * MB
WS_CTXB = 48 * MB
WS_QA = 64 * MB
WS_KA = 66 * MB
WS_VA = 68 * MB
WS_CTXA = 70 * MB
WS_WOB = 72 * MB
WS_WOA = 76 * MB
WS_USED = 77 * MB
WS_SIZE = 268435456

KA = dict(A_x=0, A_wqkv=8, A_wo=16, B_x=24, B_c_kv=32, B_w_q=40, B_w_uk=48, B_w_uv=56, B_w_o=64, out=72, dbg=80, ws=88)

import struct
def f2u(x): return struct.unpack('<I', struct.pack('<f', x))[0]
LOG2E = 1.4426950408889634
C_B = (128 ** -0.5) * LOG2E
C_A = 0.25 * LOG2E

def s_mov(d, x): return salu('s_mov_b32', d, x if isinstance(x, (R, str)) else hexs(x))
def hexs(x):
    x &= 0xffffffff
    return str(x) if x <= 64 else hex(x)
def set_srd(srd, ptr, size):
    return [salu('s_mov_b32', srd[0], ptr[0]), salu('s_and_b32', srd[1], ptr[1], '0xffff'),
            salu('s_mov_b32', srd[2], hexs(size)), salu('s_mov_b32', srd[3], '0x20000')]

def kernel_text(name, body, nvgpr, accoff, nsgpr=102):
    return f""".text
.globl {name}
.p2align 8
.type {name},@function
{name}:
{body}
  s_endpgm
"""
def kernel_desc(name, nvgpr, accoff, nsgpr=102):
    return f""".amdhsa_kernel {name}
  .amdhsa_next_free_vgpr {nvgpr}
  .amdhsa_next_free_sgpr {nsgpr}
  .amdhsa_accum_offset {accoff}
  .amdhsa_group_segment_fixed_size 0
  .amdhsa_kernarg_size 96
  .amdhsa_user_sgpr_count 2
  .amdhsa_user_sgpr_kernarg_segment_ptr 1
  .amdhsa_system_sgpr_workgroup_id_x 1
.end_amdhsa_kernel
"""

WS_PROF = 200 * MB
class Stamps:
    def __init__(self, base, enabled, kernel_slot):
        self.base, self.en, self.n, self.slot = base, enabled, 0, kernel_slot
    def stamp(self, real=False):
        if not self.en: return []
        r = S(self.base + 2 * self.n, 2); self.n += 1
        op = 's_memrealtime' if real else 's_memtime'
        return [raw(f"{op} {r}", kind='salu', wr=r.regs())]
    def flush(self, sWG, sWV, wsptr, srd, vtmp, vtmp2, stmp):
        if not self.en: return []
        o = [waitlgkm0()]
        o += [salu('s_mov_b32', srd[0], wsptr[0]), salu('s_and_b32', srd[1], wsptr[1], '0xffff'), salu('s_mov_b32', srd[2], hexs(WS_SIZE)), salu('s_mov_b32', srd[3], '0x20000')]
        o.append(salu('s_lshl_b32', stmp, sWG, 3)); o.append(salu('s_add_u32', stmp, stmp, sWV)); o.append(salu('s_lshl_b32', stmp, stmp, 7))
        o.append(salu('s_add_u32', stmp, stmp, hexs(WS_PROF + self.slot * MB)))
        o.append(valu('v_mov_b32', vtmp2, 0))
        for i in range(self.n):
            o.append(valu('v_mov_b32', vtmp, S(self.base + 2 * i)))
            o.append(bstore(vtmp, vtmp2, srd, stmp, 4 * i, op='buffer_store_dword'))
        return o
```

```python
import re

class R:
    __slots__ = ('k', 'i', 'n')
    def __init__(self, k, i, n=1):
        self.k, self.i, self.n = k, i, n
        lim = {'v': 256, 'a': 256, 's': 102}[k]
        assert 0 <= i and i + n <= lim, (k, i, n)
    def __str__(self):
        return f"{self.k}{self.i}" if self.n == 1 else f"{self.k}[{self.i}:{self.i+self.n-1}]"
    def regs(self):
        return [f"{self.k}{j}" for j in range(self.i, self.i + self.n)]
    def __getitem__(self, key):
        if isinstance(key, slice):
            a = key.start or 0
            b = self.n if key.stop is None else key.stop
            assert 0 <= a < b <= self.n
            return R(self.k, self.i + a, b - a)
        assert 0 <= key < self.n
        return R(self.k, self.i + key, 1)
def V(i, n=1): return R('v', i, n)
def A(i, n=1): return R('a', i, n)
def S(i, n=1): return R('s', i, n)

def regs_of(x):
    if isinstance(x, R): return x.regs()
    if isinstance(x, str):
        if x in ('vcc', 'm0', 'exec', 'scc'): return [x]
        m = re.fullmatch(r'-?\|?([vas])(\d+)\|?', x)
        if m: return [m.group(1) + m.group(2)]
        m = re.fullmatch(r'-?\|?([vas])\[(\d+):(\d+)\]\|?', x)
        if m: return [f"{m.group(1)}{j}" for j in range(int(m.group(2)), int(m.group(3)) + 1)]
    return []

TRANS = ('v_exp_f32', 'v_log_f32', 'v_rcp_f32', 'v_rsq_f32', 'v_sqrt_f32')

class Ins:
    __slots__ = ('text', 'kind', 'rd', 'wr', 'tag', 'need', 'pre_lgkm', 'pre_vm', 'pre_nop', 'srcc', 'srcab', 'cost', 'fixed', 'note', 'nopn')
    def __init__(self, text, kind, rd=(), wr=(), tag=None, need=None, cost=None):
        self.text, self.kind = text, kind
        self.rd, self.wr = set(rd), set(wr)
        self.tag, self.need = tag, need
        self.pre_lgkm = None; self.pre_vm = None; self.pre_nop = 0
        self.srcc = set(); self.srcab = set()
        self.cost = cost if cost is not None else (8 if kind in ('trans', 'mfma32', 'mfma16', 'permlane') else 4)
        self.fixed = None
        self.note = None
        self.nopn = 0
    def __repr__(self): return self.text

def fmt(x):
    if isinstance(x, float):
        raise ValueError("use hex/int literal for floats")
    return str(x)

class Prog:
    def __init__(self):
        self.ins = []
    def add(self, i):
        self.ins.append(i); return i
    def take(self):
        r = self.ins; self.ins = []; return r

def mfma32(d, a, b, c):
    rd = regs_of(a) + regs_of(b) + regs_of(c)
    i = Ins(f"v_mfma_f32_32x32x16_bf16 {d}, {a}, {b}, {c}", 'mfma32', rd, regs_of(d))
    i.srcc = set(regs_of(c)); i.srcab = set(regs_of(a) + regs_of(b))
    return i
def mfma16(d, a, b, c):
    rd = regs_of(a) + regs_of(b) + regs_of(c)
    i = Ins(f"v_mfma_f32_16x16x32_bf16 {d}, {a}, {b}, {c}", 'mfma16', rd, regs_of(d))
    i.srcc = set(regs_of(c)); i.srcab = set(regs_of(a) + regs_of(b))
    return i
RMW = ('v_fmac_f32', 'v_dot2c_f32_bf16', 'v_writelane_b32')
def valu(op, d, *src, mods=""):
    rd = []
    for s in src: rd += regs_of(s)
    wr = regs_of(d)
    base = op.replace('_e32', '').replace('_e64', '')
    if base in RMW: rd += wr
    kind = 'trans' if base in TRANS else 'valu'
    if base.startswith('v_permlane'):
        kind = 'permlane'; rd += wr; wr = wr + regs_of(src[0])
    if base.startswith('v_cndmask') and len(src) == 2:
        rd.append('vcc'); txt = f"{op} {d}, {src[0]}, {src[1]}, vcc"
    else:
        txt = f"{op} {d}, " + ", ".join(fmt(s) for s in src)
    if base.startswith('v_readfirstlane') or base.startswith('v_readlane'): kind = 'readlane'
    if mods: txt += " " + mods
    return Ins(txt, kind, rd, wr)
def vcmp(op, d, a, b):
    return Ins(f"{op} {d}, {fmt(a)}, {fmt(b)}", 'valu', regs_of(a) + regs_of(b), regs_of(d))
def accrd(d, a): return Ins(f"v_accvgpr_read_b32 {d}, {a}", 'valu', regs_of(a), regs_of(d))
def accwr(a, s): return Ins(f"v_accvgpr_write_b32 {a}, {fmt(s)}", 'valu', regs_of(s), regs_of(a))
def salu(op, d, *src):
    rd = []
    for s in src: rd += regs_of(s)
    wr = regs_of(d) if d is not None else []
    if op.startswith('s_cmp') or op.startswith('s_bitcmp'):
        wr = ['scc']; txt = f"{op} " + ", ".join(fmt(s) for s in src)
    else:
        txt = f"{op} {d}, " + ", ".join(fmt(s) for s in src)
        if op not in ('s_mov_b32', 's_mov_b64', 's_mul_i32', 's_cselect_b32', 's_cselect_b64', 's_movk_i32', 's_mul_hi_u32', 's_getreg_b32'): wr = wr + ['scc']
        if op.startswith('s_cselect') or op.startswith('s_addc'): rd.append('scc')
        if 'saveexec' in op: rd.append('exec'); wr.append('exec')
    return Ins(txt, 'salu', rd, wr)
def ds_read(op, d, addr, off=0):
    assert 0 <= off < 65536, off
    t = f"{op} {d}, {addr}" + (f" offset:{off}" if off else "")
    return Ins(t, 'ds_read', regs_of(addr), regs_of(d))
def ds_write(op, addr, data, off=0):
    assert 0 <= off < 65536
    t = f"{op} {addr}, {data}" + (f" offset:{off}" if off else "")
    return Ins(t, 'ds_write', regs_of(addr) + regs_of(data), [])
def dma(voff, srd, soff, imm=0, tag=None, flags=""):
    assert 0 <= imm < 4096
    t = f"buffer_load_dwordx4 {voff}, {srd}, {fmt(soff)} offen" + (f" offset:{imm}" if imm else "") + (" " + flags if flags else "") + " lds"
    return Ins(t, 'dma', regs_of(voff) + regs_of(srd) + regs_of(soff) + ['m0'], [], tag=tag)
def bload(d, voff, srd, soff, imm=0, op="buffer_load_dwordx4", tag=None, flags=""):
    assert 0 <= imm < 4096
    t = f"{op} {d}, {voff}, {srd}, {fmt(soff)} offen" + (f" offset:{imm}" if imm else "") + (" " + flags if flags else "")
    return Ins(t, 'vload', regs_of(voff) + regs_of(srd) + regs_of(soff), regs_of(d), tag=tag)
def bstore(data, voff, srd, soff, imm=0, op="buffer_store_dwordx4", flags="", tag=None):
    assert 0 <= imm < 4096
    t = f"{op} {data}, {voff}, {srd}, {fmt(soff)} offen" + (f" offset:{imm}" if imm else "") + (" " + flags if flags else "")
    return Ins(t, 'vstore', regs_of(voff) + regs_of(srd) + regs_of(soff) + regs_of(data), [], tag=tag)
def waitvm(need=None, n=None):
    i = Ins("WAITVM", 'waitvm', need=need, cost=4); i.fixed = n; return i
def waitlgkm0(): return Ins("s_waitcnt lgkmcnt(0)", 'waitlgkm0', cost=4)
def barrier(): return Ins("s_barrier", 'barrier', cost=4)
def label(n): return Ins(f"{n}:", 'label', cost=0)
def branch(op, target): return Ins(f"{op} {target}", 'branch', ['scc'] if 'scc' in op else (['vcc'] if 'vcc' in op else (['exec'] if 'exec' in op else [])), cost=4)
def nop(n):
    i = Ins(f"s_nop {n}", 'nop', cost=4); i.nopn = n + 1; return i
def raw(text, kind='salu', rd=(), wr=(), cost=4): return Ins(text, kind, rd, wr, cost=cost)
def comment(t): return Ins(f"; {t}", 'label', cost=0)

VM_KINDS = ('dma', 'vload', 'vstore')
LG_KINDS = ('ds_read', 'ds_write')

def resolve_waits(traces):
    def sim(trace, assign):
        lg_seq = 0; vm_seq = 0
        lg_done = 0; vm_done = 0
        pend = {}
        tags = {}
        for ins, ctx in trace:
            k = ins.kind
            if k == 'waitvm':
                if ins.fixed is not None and ins.need is None:
                    n = ins.fixed
                else:
                    need = ins.need(ctx) if callable(ins.need) else ins.need
                    mx = 0
                    for t in need:
                        if t in tags: mx = max(mx, tags[t])
                        else: raise RuntimeError(f"unknown tag {t}")
                    n = vm_seq - mx
                    if assign:
                        ins.pre_vm = n if ins.pre_vm is None else min(ins.pre_vm, n)
                    if ins.fixed is not None:
                        assert ins.fixed <= n, f"fixed vmcnt {ins.fixed} > needed {n} ctx {ctx}"
                        n = ins.fixed
                    else:
                        n = ins.pre_vm
                n = min(n, 63)
                vm_done = max(vm_done, vm_seq - n)
                continue
            if k == 'waitlgkm0':
                lg_done = lg_seq; continue
            need_lg = 0; need_vm = 0
            for r in (ins.rd | ins.wr):
                e = pend.get(r)
                if e:
                    if e[0] == 'lg': need_lg = max(need_lg, e[1])
                    else: need_vm = max(need_vm, e[1])
            if need_lg > lg_done:
                n = min(lg_seq - need_lg, 15)
                if assign: ins.pre_lgkm = n if ins.pre_lgkm is None else min(ins.pre_lgkm, n)
            if need_vm > vm_done:
                n = min(vm_seq - need_vm, 63)
                if assign: ins.pre_vm = n if ins.pre_vm is None else min(ins.pre_vm, n)
            if ins.pre_lgkm is not None: lg_done = max(lg_done, lg_seq - ins.pre_lgkm)
            if ins.pre_vm is not None: vm_done = max(vm_done, vm_seq - ins.pre_vm)
            assert need_lg <= lg_done and need_vm <= vm_done, (ins.text, need_lg, lg_done, need_vm, vm_done)
            if k in LG_KINDS:
                lg_seq += 1
                assert lg_seq - lg_done <= 64
                for r in ins.wr: pend[r] = ('lg', lg_seq)
            elif k in VM_KINDS:
                vm_seq += 1
                for r in ins.wr: pend[r] = ('vm', vm_seq)
                if ins.tag is not None:
                    t = ins.tag(ctx) if callable(ins.tag) else ins.tag
                    tags[t] = vm_seq
            else:
                for r in ins.wr:
                    if r in pend: del pend[r]
    for it in range(3):
        for t in traces: sim(t, True)
    allins = []
    seen = set()
    for t in traces:
        for ins, _ in t:
            if id(ins) not in seen: seen.add(id(ins)); allins.append(ins)
    for ins in allins:
        if ins.kind == 'waitvm': continue
        for attr in ('pre_lgkm', 'pre_vm'):
            v = getattr(ins, attr)
            if v is None: continue
            setattr(ins, attr, None)
            ok = True
            try:
                for t in traces: sim(t, False)
            except AssertionError:
                ok = False
            if not ok: setattr(ins, attr, v)
    for t in traces: sim(t, False)

VALU_KINDS = ('valu', 'trans', 'permlane', 'readlane')
def fix_hazards(traces, verbose=True, name=""):
    total = 0
    changed = True
    rounds = 0
    while changed and rounds < 10:
        changed = False; rounds += 1
        for trace in traces:
            seq = [i for i, _ in trace if i.kind not in ('label',)]
            for idx, ins in enumerate(seq):
                req = 0
                dist = ins.pre_nop
                j = idx - 1
                while j >= 0 and dist < 24:
                    p = seq[j]
                    need = hazard(p, ins)
                    if need > dist: req = max(req, need - dist)
                    dist += (p.nopn if p.kind == 'nop' else (0 if p.kind in ('waitvm', 'waitlgkm0') else 1)) + p.pre_nop
                    j -= 1
                if req > 0:
                    ins.pre_nop += req; changed = True; total += req
                    if verbose: print(f"[{name}] hazard: +{req} nop before: {ins.text}")
    return total

def hazard(p, c):
    pk, ck = p.kind, c.kind
    need = 0
    c_all = c.rd | c.wr
    if pk in ('mfma32', 'mfma16'):
        big = pk == 'mfma32'
        if ck in ('mfma32', 'mfma16'):
            ov_c = p.wr & c.srcc
            if ov_c:
                if p.wr == c.srcc and pk == ck: pass
                else: need = max(need, 10 if big else 6)
            if p.wr & c.srcab: need = max(need, 12 if big else 8)
            if (p.wr & c.wr) and not (p.wr == c.wr and pk == ck) : need = max(need, 10 if big else 6)
            if (p.wr == c.wr) and (c.srcc != p.wr): need = max(need, 12 if big else 8)
        elif ck in VALU_KINDS or ck in ('ds_read', 'ds_write', 'dma', 'vload', 'vstore'):
            if p.wr & c_all: need = max(need, 12 if big else 8)
            if ck in VALU_KINDS and (p.srcc & c.wr): need = max(need, 7 if big else 3)
    if pk in VALU_KINDS:
        if ck in ('mfma32', 'mfma16') and (p.wr & c.rd): need = max(need, 2)
        if pk == 'trans' and ck in VALU_KINDS and ck != 'trans' and (p.wr & c.rd): need = max(need, 1)
        if pk == 'trans' and (ck in ('mfma32','mfma16','ds_write','vstore')) and (p.wr & c.rd): need = max(need, 2)
        if ck == 'permlane' and (p.wr & c.rd): need = max(need, 2)
        if ck == 'readlane' and any(r[0] == 'v' and r != 'vcc' for r in (p.wr & c.rd)): need = max(need, 1)
        sw = {r for r in p.wr if r[0] == 's' or r == 'vcc'}
        if sw:
            if ck in ('dma', 'vload', 'vstore') and (sw & c.rd): need = max(need, 5)
            if ck in VALU_KINDS and (sw & c.rd): need = max(need, 2)
            if ck in ('salu', 'branch') and (sw & c.rd): need = max(need, 4)
        if 'exec' in p.wr and ck in ('mfma32', 'mfma16'): need = max(need, 4)
    if pk == 'salu':
        if 'm0' in p.wr and ck == 'dma': need = max(need, 1)
    if pk == 'vstore' and 'x4' in p.text and ck in VALU_KINDS:
        if (p.rd & c.wr): need = max(need, 2)
    return need

def render(inss):
    out = []
    for i in inss:
        if i.pre_nop:
            n = i.pre_nop
            while n > 0:
                k = min(n, 16); out.append(f"  s_nop {k-1}"); n -= k
        w = []
        if i.kind == 'waitvm':
            n = i.fixed if i.fixed is not None else i.pre_vm
            assert n is not None, "unresolved waitvm"
            out.append(f"  s_waitcnt vmcnt({min(n,63)})"); continue
        if i.pre_vm is not None: w.append(f"vmcnt({i.pre_vm})")
        if i.pre_lgkm is not None: w.append(f"lgkmcnt({i.pre_lgkm})")
        if w: out.append("  s_waitcnt " + " ".join(w))
        out.append(i.text if i.kind == 'label' else "  " + i.text)
    return "\n".join(out)

def T(inss, **ctx):
    return [(i, ctx) for i in inss]

def interleave(mains, fillers, cap=24, start_gap=0):
    n = len(mains)
    items = []
    for f in fillers:
        if isinstance(f, tuple): items.append(f)
        else: items.append((f, 0))
    total = sum(f.cost for f, _ in items)
    ngaps = n - start_gap
    out = []
    fi = 0; acc = 0.0
    for g in range(n):
        out.append(mains[g])
        if g < start_gap: continue
        target = total * (g - start_gap + 1) / ngaps
        while fi < len(items) and (items[fi][1] <= g) and (acc + items[fi][0].cost / 2 <= target or g == n - 1):
            out.append(items[fi][0]); acc += items[fi][0].cost; fi += 1
    while fi < len(items):
        out.append(items[fi][0]); fi += 1
    return out


def m0_peephole(seq):
    seq = list(seq)
    for i in range(1, len(seq) - 1):
        if seq[i].kind == 'salu' and 'm0' in seq[i].wr and seq[i + 1].kind == 'dma':
            j = i - 1
            if seq[j].kind in ('mfma32', 'mfma16', 'ds_read', 'valu', 'trans') and not (seq[j].wr & seq[i].rd):
                seq[j], seq[i] = seq[i], seq[j]
    return seq
```

```python
from common import *

KBASE, VBASE, ONES, FLAG = 0, 65536, 131072, 131072 + 4096
LDS_BYTES = FLAG + 256
NVGPR, ACCOFF = 256, 256
NEG_INF = '0xff800000'
C_OFF = 64.0
NS = 2

sWG = S(2)
srdK, srdV, srdWS = S(8, 4), S(12, 4), S(16, 4)
sWSP = S(20, 2)
sH, sQG, sWV = S(22), S(23), S(24)
sCnt = S(25); sMode = S(26); sOff = S(27); sQoff = S(28); sOoff = S(29)
sTmp = S(32, 6)
vLane = V(1); vL16 = V(2)
vK = V(3); vVa = V(4); vVinc = V(5)
vT = [V(8 + i) for i in range(8)]
vM = [V(6), V(7)]
vChk = V(16)
vQ = [V(20, 4), V(24, 4)]
vKf = [V(28, 4), V(32, 4)]
vVf = [[V(36, 4), V(40, 4)], [V(44, 4), V(48, 4)]]
def vO(u): return V(64 + 16 * u, 16)
def vS(par, u): return V(128 + (par * 2 + u) * 16, 16)
def vP(par, u): return V(192 + (par * 2 + u) * 8, 8)
def vC(u): return V(224 + 16 * u, 16)
PFX = 'L_a'
_lab = [0]
def newlabel(p):
    _lab[0] += 1
    return f"{PFX}_{p}_{_lab[0]}"

def sm_ops(par, u):
    s = vS(par, u); p = vP(par, u); ops = []
    for r in range(0, 16, 2):
        ops += [valu('v_exp_f32', s[r], s[r]), valu('v_exp_f32', s[r + 1], s[r + 1])]
        if r >= 2: ops.append(valu('v_cvt_pk_bf16_f32', p[r // 2 - 1], s[r - 2], s[r - 1]))
    ops.append(valu('v_cvt_pk_bf16_f32', p[7], s[14], s[15]))
    return ops

def iteration(it, qk=True, sm=True, pv=True, first_pv=False, next_k=True, next_v=True, pre_read=()):
    par = it & 1
    ms = []
    if qk:
        for u in range(2): ms.append(mfma32(vS(par, u), vKf[par], vQ[u], vC(u)))
    if pv:
        for ks in range(2):
            for u in range(2):
                c = 0 if (first_pv and ks == 0) else vO(u)
                ms.append(mfma32(vO(u), vVf[par][ks], vP(par, u)[4 * ks:4 * ks + 4], c))
    rd = list(pre_read)
    if next_k: rd.append(ds_read('ds_read_b128', vKf[par ^ 1], vK, (it + 1) * 1024))
    if next_v:
        for ks in range(2): rd.append(ds_read('ds_read_b128', vVf[par ^ 1][ks], vVa, it * 1024 + ks * 512))
    smo = []
    if sm:
        for u in range(2): smo += sm_ops(par ^ 1, u)
    n = len(ms); tot = len(smo)
    if n == 0: return rd + smo
    out = []; k = 0
    for g in range(n):
        out.append(ms[g])
        if g == 0: out += rd
        upto = int(round(tot * (g + 1) / n))
        while k < upto: out.append(smo[k]); k += 1
    return out

def body(name, first=False, bar=False):
    o = [label(name)]
    for it in range(4):
        pre = []
        if bar and it == 3: pre = [waitvm(n=0), barrier()]
        o.append(comment(f"{name} it{it}"))
        o += iteration(it, qk=True, sm=not (first and it == 0), pv=not (first and it < 2), first_pv=(first and it == 2),
                       next_v=not (first and it == 0), pre_read=pre)
    o += [valu('v_add_u32', vK, 4096, vK), valu('v_add_u32', vVa, vVa, vVinc)]
    return o

def gen(opts=None):
    opts = opts or {}
    prof = bool(int(opts.get('prof', 0)))
    ST = Stamps(60, prof, 2)
    _lab[0] = 0
    o = []; a = o.append
    o += ST.stamp(real=True) + ST.stamp()
    a(salu('s_cmp_ge_u32', None, sWG, 256)); a(branch('s_cbranch_scc1', PFX + '_end'))
    a(raw("s_load_dwordx2 s[20:21], s[0:1], 88", wr=['s20', 's21']))
    a(salu('s_and_b32', sH, sWG, 7)); a(salu('s_lshr_b32', sTmp[0], sWG, 3)); a(salu('s_and_b32', sTmp[0], sTmp[0], 3))
    a(salu('s_lshl_b32', sTmp[0], sTmp[0], 3)); a(salu('s_add_u32', sH, sH, sTmp[0]))
    a(salu('s_lshr_b32', sQG, sWG, 5))
    a(valu('v_lshrrev_b32', vT[0], 6, V(0))); a(valu('v_and_b32', vLane, 63, V(0))); a(nop(0))
    a(valu('v_readfirstlane_b32', sWV, vT[0]))
    a(valu('v_lshlrev_b32', vL16, 4, vLane))
    a(raw("s_waitcnt lgkmcnt(0)", kind='waitlgkm0'))
    o += set_srd(srdWS, sWSP, WS_USED)
    for srd, reg in ((srdK, WS_KA), (srdV, WS_VA)):
        a(salu('s_lshl_b32', sTmp[0], sH, 16)); a(salu('s_add_u32', sTmp[0], sTmp[0], hexs(reg)))
        a(salu('s_add_u32', srd[0], sWSP[0], sTmp[0])); a(salu('s_addc_u32', srd[1], sWSP[1], 0))
        a(salu('s_and_b32', srd[1], srd[1], '0xffff'))
        a(salu('s_mov_b32', srd[2], hexs(65536))); a(salu('s_mov_b32', srd[3], '0x20000'))
    a(salu('s_lshl_b32', sTmp[1], sQG, 3)); a(salu('s_lshl_b32', sTmp[2], sWV, 1)); a(salu('s_add_u32', sTmp[1], sTmp[1], sTmp[2]))
    a(salu('s_lshl_b32', sTmp[0], sH, 6)); a(salu('s_add_u32', sTmp[0], sTmp[0], sTmp[1]))
    a(salu('s_lshl_b32', sTmp[0], sTmp[0], 10)); a(salu('s_add_u32', sQoff, sTmp[0], hexs(WS_QA)))
    a(salu('s_lshl_b32', sTmp[1], sTmp[1], 15)); a(salu('s_lshl_b32', sTmp[2], sH, 10)); a(salu('s_add_u32', sTmp[1], sTmp[1], sTmp[2]))
    a(salu('s_add_u32', sOoff, sTmp[1], hexs(WS_CTXA)))
    a(salu('s_lshl_b32', sOff, sWV, 12))
    for g in range(4):
        a(salu('s_add_u32', 'm0', sOff, hexs(KBASE)))
        a(nop(0))
        for q in range(4): a(dma(vL16, srdK, sOff, q * 1024, tag=('K', g)))
        if g == 0:
            for u in range(2): a(bload(vQ[u], vL16, srdWS, sQoff, u * 1024))
        a(salu('s_add_u32', 'm0', sOff, hexs(VBASE)))
        a(nop(0))
        for q in range(4): a(dma(vL16, srdV, sOff, q * 1024, tag=('V', g)))
        a(salu('s_add_u32', sOff, sOff, 16384))
    for r in range(4): a(valu('v_mov_b32', vT[r], '0x3f803f80'))
    a(salu('s_lshl_b32', sTmp[0], sWV, 10)); a(salu('s_add_u32', sTmp[0], sTmp[0], hexs(ONES)))
    a(valu('v_add_u32', vT[4], sTmp[0], vL16))
    a(ds_write('ds_write_b128', vT[4], V(vT[0].i, 4)))
    a(valu('v_mov_b32', vT[5], 0)); a(valu('v_mov_b32', vT[6], hexs(FLAG)))
    a(ds_write('ds_write_b32', vT[6], vT[5]))
    a(valu('v_lshrrev_b32', vT[0], 5, vLane)); a(valu('v_lshlrev_b32', vT[0], 8, vT[0]))
    a(valu('v_and_b32', vT[1], 15, vLane)); a(valu('v_lshl_add_u32', vT[0], vT[1], 4, vT[0]))
    a(valu('v_add_u32', vT[0], hexs(VBASE - 1024), vT[0]))
    a(valu('v_add_u32', vT[2], 4, vT[1])); a(valu('v_bfe_u32', vT[2], vT[2], 3, 1))
    a(valu('v_lshlrev_b32', vT[2], 6, vT[2])); a(valu('v_add_u32', vT[2], hexs(ONES), vT[2]))
    a(valu('v_and_b32', vT[3], 16, vLane))
    a(vcmp('v_cmp_eq_u32', 'vcc', 0, vT[3]))
    a(valu('v_mov_b32', vT[4], 4096)); a(valu('v_mov_b32', vT[5], 0))
    a(valu('v_cndmask_b32', V(17), vT[2], vT[0]))
    a(valu('v_cndmask_b32', vVinc, vT[5], vT[4]))
    a(salu('s_mov_b32', sMode, 0))
    a(waitvm(need=[('K', 0), ('V', 0)])); a(waitlgkm0()); a(barrier())
    pro = o
    o = [label(PFX + '_start')]; a = o.append
    lsk = newlabel('m')
    a(salu('s_cmp_lg_u32', None, sMode, 0)); a(branch('s_cbranch_scc1', lsk))
    for b in range(NS): a(ds_read('ds_read_b128', vKf[b & 1], vL16, KBASE + b * 1024))
    for b in range(NS):
        for u in range(2): a(mfma32(vS(b & 1, u), vKf[b & 1], vQ[u], 0))
    a(nop(7)); a(nop(3))
    for u in range(2):
        s_ = vS(0, u); s2 = vS(1, u)
        a(valu('v_max3_f32', vM[u], s_[0], s_[1], s_[2]))
        for r in range(3, 15, 2): a(valu('v_max3_f32', vM[u], vM[u], s_[r], s_[r + 1]))
        a(valu('v_max3_f32', vM[u], vM[u], s_[15], s2[0]))
        for r in range(1, 15, 2): a(valu('v_max3_f32', vM[u], vM[u], s2[r], s2[r + 1]))
        a(valu('v_max_f32', vM[u], vM[u], s2[15]))
        a(valu('v_mov_b32', vT[u], vM[u])); a(nop(1))
        a(valu('v_permlane32_swap_b32', vT[u], vM[u]))
        a(valu('v_max_f32', vM[u], vM[u], vT[u]))
        a(valu('v_add_f32', vM[u], hexs(f2u(C_OFF)), vM[u]))
    a(label(lsk))
    for u in range(2):
        for r in range(16): a(valu('v_sub_f32', vC(u)[r], 0, vM[u]))
    a(valu('v_mov_b32', vK, vL16)); a(valu('v_mov_b32', vVa, V(17))); a(valu('v_mov_b32', vChk, 0))
    a(ds_read('ds_read_b128', vKf[0], vK, KBASE))
    a(salu('s_mov_b32', sCnt, 2)); a(salu('s_mov_b32', sTmp[4], 0))
    st = o + ST.stamp()
    F = body(PFX + '_F', first=True)
    P = body(PFX + '_P')
    gP = [salu('s_sub_u32', sCnt, sCnt, 1), salu('s_cmp_lg_u32', None, sCnt, 0), branch('s_cbranch_scc1', PFX + '_P'),
          salu('s_cmp_lg_u32', None, sTmp[4], 0), branch('s_cbranch_scc1', PFX + '_tail')]
    B = body(PFX + '_B', bar=True)
    gB = [salu('s_mov_b32', sCnt, 12), salu('s_mov_b32', sTmp[4], 1), branch('s_branch', PFX + '_P')]
    TL = [label(PFX + '_tail')]
    TL += iteration(0, qk=False, sm=True, pv=True, next_k=False, next_v=True)
    TL += iteration(1, qk=False, sm=False, pv=True, next_k=False, next_v=False)
    mid = ST.stamp()
    o = []; a = o.append
    a(valu('v_mov_b32', vT[4], 0)); a(valu('v_mov_b32', vT[2], hexs(f2u(2.0 ** 100)))); a(valu('v_mov_b32', vT[3], '0x7fc00000'))
    for u in range(2):
        O = vO(u); pk = vP(0, u)
        a(vcmp('v_cmp_nle_f32', 'vcc', O[8], vT[2]))
        a(valu('v_rcp_f32', vT[1], O[8]))
        a(nop(0))
        a(valu('v_cndmask_b32', vChk, vChk, vT[3]))
        for r in range(8): a(valu('v_mul_f32', O[r], O[r], vT[1]))
        for r in range(4): a(valu('v_cvt_pk_bf16_f32', pk[r], O[2 * r], O[2 * r + 1]))
        for r in range(4): a(valu('v_dot2_f32_bf16', vChk, pk[r], vT[4], vChk))
        a(bstore(pk[0:4], vL16, srdWS, sOoff, 0))
        if u == 0: a(salu('s_add_u32', sOoff, sOoff, 32768))
    a(salu('s_sub_u32', sOoff, sOoff, 32768))
    a(vcmp('v_cmp_u_f32', 'vcc', vChk, vChk))
    a(valu('v_mov_b32', vT[1], hexs(FLAG))); a(valu('v_mov_b32', vT[0], 1))
    lf = newlabel('f')
    a(nop(2)); a(branch('s_cbranch_vccz', lf))
    a(ds_write('ds_write_b32', vT[1], vT[0]))
    a(label(lf))
    a(waitlgkm0()); a(barrier())
    a(ds_read('ds_read_b32', vT[2], vT[1]))
    a(valu('v_readfirstlane_b32', sTmp[0], vT[2]))
    a(salu('s_cmp_eq_u32', None, sTmp[0], 0)); a(branch('s_cbranch_scc1', PFX + '_fin'))
    a(salu('s_cmp_lg_u32', None, sMode, 0)); a(branch('s_cbranch_scc1', PFX + '_fin'))
    epi = o
    o = []; a = o.append
    a(waitvm(n=0)); a(barrier())
    a(valu('v_mov_b32', vT[0], 0)); a(valu('v_mov_b32', vT[1], hexs(FLAG))); a(ds_write('ds_write_b32', vT[1], vT[0]))
    for u in range(2): a(valu('v_mov_b32', vM[u], NEG_INF))
    a(valu('v_mov_b32', vK, vL16)); a(salu('s_mov_b32', sCnt, 64))
    a(label(PFX + '_safe_loop'))
    a(ds_read('ds_read_b128', vKf[0], vK, KBASE))
    for u in range(2): a(mfma32(vS(0, u), vKf[0], vQ[u], 0))
    a(nop(7)); a(nop(3))
    for u in range(2):
        for r in range(0, 16, 2): a(valu('v_max3_f32', vM[u], vM[u], vS(0, u)[r], vS(0, u)[r + 1]))
    a(valu('v_add_u32', vK, 1024, vK))
    a(salu('s_sub_u32', sCnt, sCnt, 1)); a(salu('s_cmp_lg_u32', None, sCnt, 0)); a(branch('s_cbranch_scc1', PFX + '_safe_loop'))
    for u in range(2):
        a(valu('v_mov_b32', vT[u], vM[u])); a(nop(1))
        a(valu('v_permlane32_swap_b32', vT[u], vM[u]))
        a(valu('v_max_f32', vM[u], vM[u], vT[u]))
    a(waitlgkm0()); a(barrier())
    a(salu('s_mov_b32', sMode, 1)); a(branch('s_branch', PFX + '_start'))
    safe = o
    fin = [label(PFX + '_fin')] + ([waitvm(n=0)] if prof else []) + ST.stamp() + ST.stamp(real=True) + ST.flush(sWG, sWV, sWSP, srdK, vT[0], vT[1], sTmp[0]) + [label(PFX + '_end')]
    code = pro + st + F + P + gP + B + gB + TL + mid + epi + safe + fin
    main = pro + st + F + P + gP + P + gP + B + gB + P + gP + P + gP + TL + mid + epi
    traces = [T(main + fin), T(main + safe + st + F + P + gP)]
    resolve_waits(traces)
    fix_hazards(traces, name='aattn', verbose=bool(int(opts.get('verbose', 0))))
    return render(code)

if __name__ == '__main__':
    t = gen({'verbose': 1}); print(len(t.splitlines()))
```

```python
from common import *

LDS_BYTES = 131072 + 256
KRING, VRING, FLAG = 0, 65536, 131072
NEG_INF = '0xff800000'

sWG = S(2)
srdK, srdV, srdWS = S(8, 4), S(12, 4), S(16, 4)
sWSP = S(20, 2)
sH, sI, sWV = S(22), S(23), S(24)
sKa, sKb, sVa, sVb = S(25), S(26), S(27), S(28)
sKoff, sVoff = S(29), S(30)
sCnt = S(31)
sTmp = S(32, 6)
sMode = S(38)
sQoff = S(39, 2)
sNb = S(41)
sExec = S(42, 2)
vLane = V(1); vL16 = V(2); vD = V(3)
vKa, vKb, vVa, vVb = V(4), V(5), V(6), V(7)
vT = [V(8 + i) for i in range(8)]
vL = [[V(16), V(17)], [V(18), V(19)]]
vM = [V(20), V(21)]
vChk = V(22)
vMd = V(96, 16)
def vS(par, u): return V(128 + (par * 2 + u) * 16, 16)
def vP(par, u): return V(192 + (par * 2 + u) * 8, 8)
def vC(u): return V(224 + 16 * u, 16)
def aO(u, db): return A((u * 4 + db) * 16, 16)
def aQ(u, s): return A(128 + (u * 8 + s) * 4, 4)
def aK(s): return A(192 + 4 * s, 4)
def aV(f): return A(224 + 4 * f, 4)
PFN = 5

_lab = [0]
def newlabel(p):
    _lab[0] += 1
    return f"L_b_{p}_{_lab[0]}"

def sm_ops(par, u):
    s = vS(par, u); p = vP(par, u)
    ops = []
    def tailops(r):
        return [valu('v_add_f32', vL[u][0], vL[u][0], s[r]), valu('v_add_f32', vL[u][1], vL[u][1], s[r + 1]),
                valu('v_cvt_pk_bf16_f32', p[r // 2], s[r], s[r + 1])]
    for r in range(0, 16, 2):
        ops += [valu('v_exp_f32', s[r], s[r]), valu('v_exp_f32', s[r + 1], s[r + 1])]
        if r >= 2: ops += tailops(r - 2)
    ops += tailops(14)
    return ops

def k_read(s, half_other, slot):
    return ds_read('ds_read_b128', aK(s), vKb if half_other else vKa, slot * 8192 + s * 1024)
def v_read(f, half_other, slot):
    return ds_read('ds_read_b128', aV(f), vVb if half_other else vVa, slot * 8192 + f * 1024)

def dma_k(half_other, slot, tag):
    return [salu('s_add_u32', 'm0', sKb if half_other else sKa, hexs(slot * 8192)),
            dma(vD, srdK, sKoff, 0, tag=tag), dma(vD, srdK, sKoff, 1024, tag=tag), salu('s_add_u32', sKoff, sKoff, 8192)]
def dma_v(half_other, slot, tag):
    return [salu('s_add_u32', 'm0', sVb if half_other else sVa, hexs(slot * 8192)),
            dma(vD, srdV, sVoff, 0, tag=tag), dma(vD, srdV, sVoff, 1024, tag=tag), salu('s_add_u32', sVoff, sVoff, 8192)]

def event(u, it):
    o = []
    l1, l2 = newlabel('ev'), newlabel('ev')
    o += [salu('s_cmp_lg_u32', None, sWV, it), branch('s_cbranch_scc1', l1)]
    o += [valu('v_add_f32', vC(u)[r], vC(u)[r], vMd[r]) for r in range(16)]
    o += [label(l1)]
    if it >= 1:
        o += [salu('s_cmp_lg_u32', None, sWV, it - 1), branch('s_cbranch_scc1', l2)]
        o += [valu('v_mov_b32', vC(u)[r], NEG_INF) for r in range(16)]
        o += [label(l2)]
    o.append(nop(1))
    return o

def iteration(it, qk, sm, pv, first_pv=False, bar=False, dmas=True, prefetch=True, events=(), have_prefetched=True, extra_end=()):
    par = it & 1
    ms = []; kfirst = {}; vfirst = {}
    for s in range(8):
        for u in qk:
            kfirst.setdefault(s, len(ms))
            ms.append(mfma32(vS(par, u), aK(s), aQ(u, s), vC(u) if s == 0 else vS(par, u)))
    for f in range(8):
        ks, db = f >> 2, f & 3
        for u in pv:
            vfirst.setdefault(f, len(ms))
            c = 0 if (first_pv and ks == 0) else aO(u, db)
            ms.append(mfma32(aO(u, db), aV(f), vP(par, u)[4 * ks:4 * ks + 4], c))
    n = len(ms)
    dual = max(len(qk), len(pv)) == 2
    D = 8 if dual else 5
    pre = []
    gaps = [[] for _ in range(max(n, 1))]
    for u in events: pre += event(u, it)
    barr = []
    if bar:
        barr = [waitvm(need=lambda c, it=it: [('K', 4 * c['m'] + it + 2)]), barrier()]
    kreads = []
    for s in range(8):
        if s in kfirst and (s >= PFN or not have_prefetched):
            kreads.append((kfirst[s] - D, k_read(s, False, it)))
    vo, vs = (True, it + 2) if it < 2 else (False, it - 2)
    vreads = [(vfirst[f] - D, v_read(f, vo, vs)) for f in range(8) if f in vfirst]
    pf = []
    if prefetch:
        po, psl = (False, it + 1) if it < 3 else (True, 0)
        pf = [k_read(s, po, psl) for s in range(PFN)]
    dm = []
    if dmas:
        if it == 0:   dm = dma_k(True, 2, lambda c: ('K', 4 * c['m'] + 6)) + dma_v(True, 0, lambda c: ('V', 4 * c['m'] + 4))
        elif it == 1: dm = dma_k(True, 3, lambda c: ('K', 4 * c['m'] + 7)) + dma_v(True, 1, lambda c: ('V', 4 * c['m'] + 5))
        elif it == 2: dm = dma_k(False, 0, lambda c: ('K', 4 * c['m'] + 8)) + dma_v(True, 2, lambda c: ('V', 4 * c['m'] + 6))
        else:         dm = dma_k(False, 1, lambda c: ('K', 4 * c['m'] + 9)) + dma_v(True, 3, lambda c: ('V', 4 * c['m'] + 7))
    smo = []
    for u in sm: smo += sm_ops(par ^ 1, u)
    if n == 0:
        return pre + barr + dm + smo + pf + list(extra_end)
    if qk:
        gaps[0] += barr
        for g, r in kreads + vreads: gaps[max(g, 0)].append(r)
    else:
        pre += barr
        for g, r in vreads:
            if g < 0: pre.append(r)
            else: gaps[g].append(r)
    for i, r in enumerate(pf):
        gaps[max(n - 1 - (PFN - 1 - i) - (1 if dual else 0), 0)].append(r)
    if dm:
        g0 = 1; span = max(n - 3, 1)
        for i, x in enumerate(dm): gaps[min(g0 + (i * span) // len(dm), n - 1)].append(x)
    cap = [24 - sum(x.cost for x in gaps[g]) for g in range(n)]
    tot = sum(x.cost for x in smo)
    free = sum(max(c, 0) for c in cap)
    k = 0; acc_need = 0.0; placed = 0
    for g in range(n):
        share = (max(cap[g], 0) / free if free > 0 else 1.0 / n) * tot
        acc_need += share
        while k < len(smo) and (placed + smo[k].cost / 2 <= acc_need + 1e-6 or g == n - 1):
            gaps[g].append(smo[k]); placed += smo[k].cost; k += 1
    out = list(pre)
    for g in range(n):
        out.append(ms[g]); out += gaps[g]
    out += list(extra_end)
    out = m0_peephole(out)
    seen = set()
    for x in out:
        if x.kind == 'ds_read': seen |= x.wr
        if x.kind == 'mfma32':
            for r in x.srcab:
                if r[0] == 'a' and int(r[1:]) >= 224: assert r in seen, ("V frag used before read", x.text)
                if r[0] == 'a' and 192 + 4 * PFN <= int(r[1:]) < 224: assert r in seen, ("K frag used before read", x.text)
    return out

def toggles():
    return [valu('v_xor_b32', x, '0x8000', x) for x in (vKa, vKb, vVa, vVb)] + \
           [salu('s_xor_b32', x, x, '0x8000') for x in (sKa, sKb, sVa, sVb)]

def body(name, first, t0, t1):
    o = [label(name)]
    for it in range(4):
        qk, sm, pv, ev = [], [], [], []
        for u, mode in ((0, t0), (1, t1)):
            if mode in ('full', 'mask'):
                if not (first and it == 0): qk.append(u)
                if not (first and it == 0): sm.append(u)
                if not (first and it < 2): pv.append(u)
                if mode == 'mask' and not (first and it == 0): ev.append(u)
            elif mode == 'drain':
                if it == 0: sm.append(u)
                if it < 2: pv.append(u)
        last = (t1 == 'mask' and it == 3)
        o.append(comment(f"{name} it{it} qk={qk} sm={sm} pv={pv}"))
        o += iteration(it, qk, sm, pv, first_pv=(first and it in (2,)), bar=(it % 2 == 0), prefetch=not last, events=ev,
                       extra_end=toggles() if it == 3 else ())
    return o

def tail():
    o = [label('L_b_tail'), comment('tail')]
    o += iteration(0, [], [1], [1], bar=True, dmas=False, prefetch=False)
    o += iteration(1, [], [], [1], bar=False, dmas=False, prefetch=False)
    return o

def epilogue(u):
    o = []; a = o.append
    tmp = vS(0, u)
    pk = vP(0, u)
    a(valu('v_add_f32', vL[u][0], vL[u][0], vL[u][1]))
    a(valu('v_mov_b32', vT[0], vL[u][0]))
    a(nop(1))
    a(valu('v_permlane32_swap_b32', vT[0], vL[u][0]))
    a(valu('v_add_f32', vT[0], vT[0], vL[u][0]))
    a(valu('v_mov_b32', vT[2], hexs(f2u(2.0 ** 100))))
    a(vcmp('v_cmp_nle_f32', 'vcc', vT[0], vT[2]))
    a(valu('v_rcp_f32', vT[1], vT[0]))
    a(valu('v_mov_b32', vT[3], '0x7fc00000'))
    a(valu('v_cndmask_b32', vChk, vChk, vT[3]))
    for db in range(4):
        for r in range(16): a(accrd(tmp[r], aO(u, db)[r]))
        for r in range(16): a(valu('v_mul_f32', tmp[r], tmp[r], vT[1]))
        for r in range(8): a(valu('v_cvt_pk_bf16_f32', pk[r], tmp[2 * r], tmp[2 * r + 1]))
        for r in range(8): a(valu('v_dot2_f32_bf16', vChk, pk[r], vT[4], vChk))
        a(bstore(pk[0:4], vL16, srdWS, sQoff[u], (2 * db) * 1024 % 4096) if db < 2 else bstore(pk[0:4], vL16, srdWS, sTmp[u], (2 * db - 4) * 1024))
        a(bstore(pk[4:8], vL16, srdWS, sQoff[u], (2 * db + 1) * 1024) if db < 2 else bstore(pk[4:8], vL16, srdWS, sTmp[u], (2 * db - 3) * 1024))
    return o

def epi_offsets(u):
    o = []; a = o.append
    if u == 0: a(salu('s_lshl_b32', sTmp[2], sI, 2))
    else:
        a(salu('s_sub_u32', sTmp[2], 15, sI)); a(salu('s_lshl_b32', sTmp[2], sTmp[2], 2))
    a(salu('s_add_u32', sTmp[2], sTmp[2], sWV))
    a(salu('s_lshl_b32', sTmp[2], sTmp[2], 18))
    a(salu('s_lshl_b32', sTmp[3], sH, 13))
    a(salu('s_add_u32', sTmp[2], sTmp[2], sTmp[3]))
    a(salu('s_add_u32', sQoff[u], sTmp[2], hexs(WS_CTXB)))
    a(salu('s_add_u32', sTmp[u], sQoff[u], 4096))
    a(valu('v_mov_b32', vT[4], 0))
    return o

def prologue_setup():
    o = []; a = o.append
    a(salu('s_cmp_ge_u32', None, sWG, 256)); a(branch('s_cbranch_scc1', 'L_b_end'))
    a(raw("s_load_dwordx2 s[20:21], s[0:1], 88", wr=['s20', 's21']))
    a(salu('s_and_b32', sH, sWG, 7)); a(salu('s_lshr_b32', sTmp[0], sWG, 3)); a(salu('s_and_b32', sTmp[0], sTmp[0], 3))
    a(salu('s_lshl_b32', sTmp[0], sTmp[0], 3)); a(salu('s_add_u32', sH, sH, sTmp[0]))
    a(salu('s_lshr_b32', sI, sWG, 5))
    a(valu('v_lshrrev_b32', vT[0], 6, V(0))); a(valu('v_and_b32', vLane, 63, V(0))); a(nop(0))
    a(valu('v_readfirstlane_b32', sWV, vT[0]))
    a(valu('v_lshlrev_b32', vL16, 4, vLane))
    a(nop(2))
    a(salu('s_lshl_b32', sTmp[0], sWV, 11))
    a(valu('v_add_u32', vD, sTmp[0], vL16))
    a(valu('v_and_b32', vT[0], 31, vLane)); a(valu('v_lshrrev_b32', vT[1], 5, vLane)); a(valu('v_lshlrev_b32', vT[1], 2, vT[1]))
    a(valu('v_sub_u32', vT[0], vT[0], vT[1]))
    a(valu('v_mov_b32', vT[2], NEG_INF))
    for r in range(16):
        kk = 8 * (r >> 2) + (r & 3)
        a(vcmp('v_cmp_le_i32', 'vcc', kk, vT[0]))
        a(nop(1))
        a(valu('v_cndmask_b32', vMd[r], vT[2], 0) if False else Ins(f"v_cndmask_b32 {vMd[r]}, {vT[2]}, 0, vcc" if False else f"v_cndmask_b32 {vMd[r]}, {vT[2]}, {vT[3]}, vcc", 'valu', [str(vT[2]), str(vT[3]), 'vcc'], [str(vMd[r])]))
    o.insert(len(o) - 48, valu('v_mov_b32', vT[3], 0))
    a(raw("s_waitcnt lgkmcnt(0)", kind='waitlgkm0'))
    o += set_srd(srdWS, sWSP, WS_USED)
    a(salu('s_lshl_b32', sTmp[0], sI, 2)); a(salu('s_sub_u32', sNb, 64, sTmp[0]))
    for srd, reg in ((srdK, WS_KB), (srdV, WS_VB)):
        a(salu('s_lshl_b32', sTmp[0], sH, 19)); a(salu('s_add_u32', sTmp[0], sTmp[0], hexs(reg)))
        a(salu('s_add_u32', srd[0], sWSP[0], sTmp[0])); a(salu('s_addc_u32', srd[1], sWSP[1], 0))
        a(salu('s_and_b32', srd[1], srd[1], '0xffff'))
        a(salu('s_lshl_b32', srd[2], sNb, 13)); a(salu('s_mov_b32', srd[3], '0x20000'))
    a(salu('s_mov_b32', sMode, 0))
    return o

def start():
    o = []; a = o.append
    a(label('L_b_start'))
    a(salu('s_lshl_b32', sTmp[0], sWV, 11))
    a(salu('s_mov_b32', sKa, sTmp[0])); a(salu('s_add_u32', sKb, sKa, '0x8000'))
    a(salu('s_add_u32', sVa, sKa, hexs(VRING))); a(salu('s_add_u32', sVb, sVa, '0x8000'))
    a(valu('v_mov_b32', vKa, vL16)); a(valu('v_add_u32', vKb, '0x8000', vL16))
    a(valu('v_add_u32', vVa, hexs(VRING), vL16)); a(valu('v_add_u32', vVb, '0x8000', vVa))
    a(salu('s_mov_b32', sKoff, 0)); a(salu('s_mov_b32', sVoff, 0))
    for u in range(2):
        if u == 0: a(salu('s_lshl_b32', sTmp[2], sI, 2))
        else:
            a(salu('s_sub_u32', sTmp[2], 15, sI)); a(salu('s_lshl_b32', sTmp[2], sTmp[2], 2))
        a(salu('s_add_u32', sTmp[2], sTmp[2], sWV))
        a(salu('s_lshl_b32', sTmp[3], sH, 6)); a(salu('s_add_u32', sTmp[2], sTmp[2], sTmp[3]))
        a(salu('s_lshl_b32', sTmp[2], sTmp[2], 13)); a(salu('s_add_u32', sQoff[u], sTmp[2], hexs(WS_QB)))
        a(salu('s_add_u32', sTmp[4], sQoff[u], 4096))
        if u == 0:
            o += dma_k(False, 0, ('K', 0))
        for s in range(8):
            a(bload(aQ(u, s), vL16, srdWS, sQoff[u] if s < 4 else sTmp[4], (s & 3) * 1024))
    o += dma_k(False, 1, ('K', 1))
    o += dma_k(False, 2, ('K', 2)) + dma_v(False, 0, ('V', 0)) + dma_k(False, 3, ('K', 3)) + dma_v(False, 1, ('V', 1))
    o += dma_k(True, 0, ('K', 4)) + dma_v(False, 2, ('V', 2)) + dma_k(True, 1, ('K', 5)) + dma_v(False, 3, ('V', 3))
    a(valu('v_mov_b32', vT[0], 0)); a(valu('v_mov_b32', vT[1], hexs(FLAG)))
    for u in range(2):
        for x in vL[u]: a(valu('v_mov_b32', x, 0))
    a(valu('v_mov_b32', vChk, 0))
    a(ds_write('ds_write_b32', vT[1], vT[0]))
    a(waitvm(need=[('K', 0)])); a(waitlgkm0()); a(barrier())
    for s in range(8): a(k_read(s, False, 0))
    for s in range(8):
        for u in range(2):
            a(mfma32(vS(0, u), aK(s), aQ(u, s), 0 if s == 0 else vS(0, u)))
    a(nop(7)); a(nop(3))
    l1 = newlabel('p')
    a(salu('s_or_b32', sTmp[0], sI, sWV)); a(salu('s_cmp_lg_u32', None, sTmp[0], 0)); a(branch('s_cbranch_scc1', l1))
    for r in range(16): a(valu('v_add_f32', vS(0, 0)[r], vS(0, 0)[r], vMd[r]))
    a(label(l1))
    l2 = newlabel('p')
    a(salu('s_cmp_lg_u32', None, sMode, 0)); a(branch('s_cbranch_scc1', l2))
    for u in range(2):
        s_ = vS(0, u)
        a(valu('v_max3_f32', vM[u], s_[0], s_[1], s_[2]))
        for r in range(3, 15, 2): a(valu('v_max3_f32', vM[u], vM[u], s_[r], s_[r + 1]))
        a(valu('v_max_f32', vM[u], vM[u], s_[15]))
        a(valu('v_mov_b32', vT[u], vM[u]))
        a(nop(1))
        a(valu('v_permlane32_swap_b32', vT[u], vM[u]))
        a(valu('v_max_f32', vM[u], vM[u], vT[u]))
    a(label(l2))
    for u in range(2):
        for r in range(16): a(valu('v_sub_f32', vS(0, u)[r], vS(0, u)[r], vM[u]))
        for r in range(16): a(valu('v_sub_f32', vC(u)[r], 0, vM[u]))
    return o

def gen(opts=None):
    opts = opts or {}
    prof = bool(int(opts.get('prof', 0)))
    ST = Stamps(60, prof, 1)
    _lab[0] = 0
    pro = ST.stamp(real=True) + ST.stamp() + prologue_setup()
    st = start() + ST.stamp()
    F  = body('L_b_F', True, 'full', 'full')
    FM = body('L_b_FM', True, 'mask', 'full')
    D  = body('L_b_D', False, 'full', 'full')
    DM = body('L_b_DM', False, 'mask', 'full')
    TD = body('L_b_TD', False, 'drain', 'full')
    TDM = body('L_b_TDM', False, 'drain', 'mask')
    SF = body('L_b_SF', False, 'off', 'full')
    SM_ = body('L_b_SM', False, 'off', 'mask')
    TL = tail()
    e0a = epi_offsets(0) + epilogue(0); e0b = epi_offsets(0) + epilogue(0)
    e1 = epi_offsets(1) + epilogue(1)
    g_sel = [salu('s_cmp_eq_u32', None, sI, 0), branch('s_cbranch_scc1', 'L_b_FM')]
    g_F = [salu('s_sub_u32', sCnt, sI, 1), salu('s_cmp_eq_u32', None, sCnt, 0), branch('s_cbranch_scc1', 'L_b_DM')]
    g_D = [salu('s_sub_u32', sCnt, sCnt, 1), salu('s_cmp_lg_u32', None, sCnt, 0), branch('s_cbranch_scc1', 'L_b_D')]
    g_DM = [salu('s_cmp_eq_u32', None, sI, 7), branch('s_cbranch_scc1', 'L_b_TDM'), branch('s_branch', 'L_b_TD')]
    g_FM = []
    g_TD_post = [salu('s_lshl_b32', sCnt, sI, 1), salu('s_sub_u32', sCnt, 13, sCnt)]
    g_SF = [salu('s_sub_u32', sCnt, sCnt, 1), salu('s_cmp_lg_u32', None, sCnt, 0), branch('s_cbranch_scc1', 'L_b_SF')]
    g_SM = [branch('s_branch', 'L_b_tail')]
    chk = []; a = chk.append
    a(vcmp('v_cmp_u_f32', 'vcc', vChk, vChk))
    a(valu('v_mov_b32', vT[1], hexs(FLAG))); a(valu('v_mov_b32', vT[0], 1))
    lf = newlabel('f')
    a(nop(2))
    a(branch('s_cbranch_vccz', lf))
    a(ds_write('ds_write_b32', vT[1], vT[0]))
    a(label(lf))
    a(waitlgkm0()); a(barrier())
    a(ds_read('ds_read_b32', vT[2], vT[1]))
    a(valu('v_readfirstlane_b32', sTmp[0], vT[2]))
    a(salu('s_or_b32', sTmp[1], sMode, 0))
    a(salu('s_cmp_eq_u32', None, sTmp[0], 0)); a(branch('s_cbranch_scc1', 'L_b_fin'))
    a(salu('s_cmp_lg_u32', None, sMode, 0)); a(branch('s_cbranch_scc1', 'L_b_fin'))
    safe = maxpass()
    sD = ST.stamp(); sS = ST.stamp()
    mid = ST.stamp()
    mid2 = ST.stamp()
    fin = [label('L_b_fin')] + ([waitvm(n=0)] if prof else []) + ST.stamp() + ST.stamp(real=True) + ST.flush(sWG, sWV, sWSP, srdK, vT[0], vT[1], sTmp[0]) + [label('L_b_end')]
    e0a = sD + e0a + sS; e0b = [Ins(x.text, x.kind, x.rd, x.wr) for x in sD] + e0b + [Ins(x.text, x.kind, x.rd, x.wr) for x in sS]
    code = pro + st + g_sel + F + g_F + D + g_D + DM + g_DM + FM + TD + e0a + g_TD_post + SF + g_SF + SM_ + g_SM + TDM + e0b + TL + mid + e1 + mid2 + chk + safe + fin
    def tr(seq):
        out = []
        for seg, m in seq: out += T(seg, m=m)
        return out
    traces = []
    for i in (0, 1, 2, 3, 6, 7):
        seq = [(pro, 0), (st, 0), (g_sel, 0)]
        if i == 0: seq += [(FM, 0)]
        else:
            seq += [(F, 0), (g_F, 0)]
            for m in range(1, i): seq += [(D, m), (g_D, m)]
            seq += [(DM, i), (g_DM, i)]
        if i == 7: seq += [(TDM, 8), (e0b, 8)]
        else:
            seq += [(TD, i + 1), (e0a, i + 1), (g_TD_post, i + 1)]
            for m in range(i + 2, 15 - i): seq += [(SF, m), (g_SF, m)]
            seq += [(SM_, 15 - i), (g_SM, 15 - i)]
        seq += [(TL, 16 - i), (mid, 0), (e1, 0), (mid2, 0), (chk, 0), (safe, 0), (st, 0), (g_sel, 0), (F, 0)]
        traces.append(tr(seq))
    resolve_waits(traces)
    fix_hazards(traces, name='battn', verbose=bool(int(opts.get('verbose', 0))))
    return render(code)

def maxpass():
    o = []; a = o.append
    a(label('L_b_safe'))
    a(waitvm(n=0)); a(waitlgkm0()); a(barrier())
    for u in range(2): a(valu('v_mov_b32', vM[u], NEG_INF))
    a(salu('s_mov_b32', sKoff, 0)); a(salu('s_mov_b32', sCnt, 0))
    a(salu('s_lshl_b32', sKa, sWV, 11))
    a(salu('s_lshl_b32', sTmp[2], sI, 2)); a(salu('s_add_u32', sTmp[2], sTmp[2], sWV))
    a(salu('s_sub_u32', sTmp[3], 15, sI)); a(salu('s_lshl_b32', sTmp[3], sTmp[3], 2)); a(salu('s_add_u32', sTmp[3], sTmp[3], sWV))
    a(valu('v_mov_b32', vKa, vL16))
    a(label('L_b_safe_loop'))
    o += dma_k(False, 0, ('KS', 0))
    a(waitvm(n=0)); a(barrier())
    for s in range(8): a(k_read(s, False, 0))
    for u in range(2):
        lskip, ldiag, ljoin = newlabel('s'), newlabel('s'), newlabel('s')
        rb = sTmp[2 + u]; s_ = vS(0, u)
        a(salu('s_cmp_gt_u32', None, sCnt, rb)); a(branch('s_cbranch_scc1', lskip))
        for s in range(8): a(mfma32(s_, aK(s), aQ(u, s), 0 if s == 0 else s_))
        a(nop(7)); a(nop(3))
        a(salu('s_cmp_lg_u32', None, sCnt, rb)); a(branch('s_cbranch_scc1', ljoin))
        for r in range(16): a(valu('v_add_f32', s_[r], s_[r], vMd[r]))
        a(label(ljoin))
        for r in range(0, 16, 2): a(valu('v_max3_f32', vM[u], vM[u], s_[r], s_[r + 1]))
        a(label(lskip))
    a(waitlgkm0()); a(barrier())
    a(salu('s_add_u32', sCnt, sCnt, 1)); a(salu('s_cmp_lt_u32', None, sCnt, sNb)); a(branch('s_cbranch_scc1', 'L_b_safe_loop'))
    for u in range(2):
        a(valu('v_mov_b32', vT[u], vM[u])); a(nop(1))
        a(valu('v_permlane32_swap_b32', vT[u], vM[u]))
        a(valu('v_max_f32', vM[u], vM[u], vT[u]))
    a(salu('s_mov_b32', sMode, 1))
    a(branch('s_branch', 'L_b_start'))
    return o

if __name__ == '__main__':
    t = gen({'verbose': 1})
    print(len(t.splitlines()))
```

```python
from common import *
GRID = 256
LDS_BYTES = 65536
NVGPR, ACCOFF = 384, 256
PFX = 'L_o'
sWG = S(2)
srdWS, srdO = S(8, 4), S(12, 4)
sWSP, sOUT = S(20, 2), S(18, 2)
sTT, sNT, sWV = S(22), S(23), S(24)
sX = [S(25), S(26)]; sW = [S(27), S(28)]
sCnt = S(29)
sTmp = S(32, 6)
vLane = V(1); vL16 = V(2); vO = V(3); vR = V(4)
vT = [V(8 + i) for i in range(8)]
vSum = V(32, 16); vIn = V(48, 16); vPk = V(64, 8)
DEPTH = 8
def buf(i): return V(128 + 16 * i, 16)
def accB(nb, tb): return A((nb * 2 + tb) * 16, 16)
def accA(nb, tb): return A(64 + (nb * 2 + tb) * 16, 16)

def loads(i, q):
    b = buf(i)
    return [bload(b[0:4], vL16, srdWS, sX[0], q * 1024), bload(b[8:12], vL16, srdWS, sW[0], q * 1024),
            bload(b[4:8], vL16, srdWS, sX[1], q * 1024), bload(b[12:16], vL16, srdWS, sW[1], q * 1024)]
def adv(): return [salu('s_add_u32', x, x, 4096) for x in sX + sW]
def mm(i, acc, first):
    b = buf(i); o = []
    for nb in range(2):
        for tb in range(2):
            o.append(mfma32(acc(nb, tb), b[8 + 4 * nb:12 + 4 * nb], b[4 * tb:4 * tb + 4], 0 if first else acc(nb, tb)))
    return o
def setoffs(region_x, region_w, nks, per_wave):
    o = []; a = o.append
    a(salu('s_mul_i32', sTmp[0], sWV, per_wave * 1024))
    a(salu('s_mul_i32', sTmp[1], sTT, 2 * nks * 1024)); a(salu('s_add_u32', sTmp[1], sTmp[1], sTmp[0]))
    a(salu('s_add_u32', sX[0], sTmp[1], hexs(region_x))); a(salu('s_add_u32', sX[1], sX[0], hexs(nks * 1024)))
    a(salu('s_mul_i32', sTmp[1], sNT, 2 * nks * 1024)); a(salu('s_add_u32', sTmp[1], sTmp[1], sTmp[0]))
    a(salu('s_add_u32', sW[0], sTmp[1], hexs(region_w))); a(salu('s_add_u32', sW[1], sW[0], hexs(nks * 1024)))
    return o
def reduce_store(acc, colbase):
    o = []; a = o.append
    a(salu('s_lshl_b32', sTmp[0], sWV, 14)); a(valu('v_add_u32', vT[0], sTmp[0], vL16))
    for bl in range(4):
        for q in range(4):
            a(ds_write('ds_write_b128', vT[0], acc(bl >> 1, bl & 1)[4 * q:4 * q + 4], (bl * 4 + q) * 1024))
    a(waitlgkm0()); a(barrier())
    a(salu('s_lshl_b32', sTmp[0], sWV, 12)); a(valu('v_add_u32', vT[1], sTmp[0], vL16))
    for q in range(4): a(ds_read('ds_read_b128', vSum[4 * q:4 * q + 4], vT[1], q * 1024))
    for src in range(1, 4):
        for q in range(4): a(ds_read('ds_read_b128', vIn[4 * q:4 * q + 4], vT[1], src * 16384 + q * 1024))
        for r in range(16): a(valu('v_add_f32', vSum[r], vSum[r], vIn[r]))
    for r in range(8): a(valu('v_cvt_pk_bf16_f32', vPk[r], vSum[2 * r], vSum[2 * r + 1]))
    a(nop(1))
    a(valu('v_permlane32_swap_b32', vPk[0], vPk[2])); a(valu('v_permlane32_swap_b32', vPk[1], vPk[3]))
    a(valu('v_permlane32_swap_b32', vPk[4], vPk[6])); a(valu('v_permlane32_swap_b32', vPk[5], vPk[7]))
    a(salu('s_lshl_b32', sTmp[0], sTT, 6)); a(salu('s_and_b32', sTmp[1], sWV, 1)); a(salu('s_lshl_b32', sTmp[1], sTmp[1], 5))
    a(salu('s_add_u32', sTmp[0], sTmp[0], sTmp[1])); a(salu('s_lshl_b32', sTmp[0], sTmp[0], 11))
    a(salu('s_lshl_b32', sTmp[1], sNT, 7)); a(salu('s_add_u32', sTmp[0], sTmp[0], sTmp[1]))
    a(salu('s_lshr_b32', sTmp[1], sWV, 1)); a(salu('s_lshl_b32', sTmp[1], sTmp[1], 6)); a(salu('s_add_u32', sTmp[0], sTmp[0], sTmp[1]))
    a(salu('s_add_u32', sTmp[0], sTmp[0], hexs(colbase * 2)))
    a(bstore(vPk[0:4], vO, srdO, sTmp[0], 0)); a(bstore(vPk[4:8], vO, srdO, sTmp[0], 32))
    return o

def gen(opts=None):
    opts = opts or {}
    prof = bool(int(opts.get('prof', 0)))
    ST = Stamps(60, prof, 3)
    o = []; a = o.append
    o += ST.stamp(real=True) + ST.stamp()
    a(salu('s_cmp_ge_u32', None, sWG, 256)); a(branch('s_cbranch_scc1', PFX + '_end'))
    a(raw("s_load_dwordx2 s[20:21], s[0:1], 88", wr=['s20', 's21']))
    a(raw("s_load_dwordx2 s[18:19], s[0:1], 72", wr=['s18', 's19']))
    a(salu('s_and_b32', sTmp[0], sWG, 7)); a(salu('s_lshr_b32', sTmp[1], sWG, 3))
    a(salu('s_lshl_b32', sTT, sTmp[0], 2)); a(salu('s_and_b32', sTmp[2], sTmp[1], 3)); a(salu('s_add_u32', sTT, sTT, sTmp[2]))
    a(salu('s_lshr_b32', sNT, sTmp[1], 2))
    a(valu('v_lshrrev_b32', vT[0], 6, V(0))); a(valu('v_and_b32', vLane, 63, V(0))); a(nop(0))
    a(valu('v_readfirstlane_b32', sWV, vT[0]))
    a(valu('v_lshlrev_b32', vL16, 4, vLane))
    a(valu('v_and_b32', vT[0], 31, vLane)); a(valu('v_lshlrev_b32', vT[0], 11, vT[0]))
    a(valu('v_lshrrev_b32', vT[1], 5, vLane)); a(valu('v_lshl_add_u32', vO, vT[1], 4, vT[0]))
    a(raw("s_waitcnt lgkmcnt(0)", kind='waitlgkm0'))
    o += set_srd(srdWS, sWSP, WS_USED)
    o += set_srd(srdO, sOUT, 2048 * 1024 * 2)
    o += setoffs(WS_CTXB, WS_WOB, 256, 64)
    for i in range(DEPTH):
        o += loads(i, i & 3)
        if i & 3 == 3: o += adv()
    pro = o + ST.stamp()
    def body(name, first, reload, acc):
        o = [label(name)]
        for i in range(DEPTH):
            ms = mm(i, acc, first and i == 0)
            o += ms
            if reload:
                o += loads(i, i & 3)
                if i & 3 == 3: o += adv()
        return o
    F = body(PFX + '_F', True, True, accB)
    gF = [salu('s_mov_b32', sCnt, 6)]
    L = body(PFX + '_L', False, True, accB)
    gL = [salu('s_sub_u32', sCnt, sCnt, 1), salu('s_cmp_lg_u32', None, sCnt, 0), branch('s_cbranch_scc1', PFX + '_L')]
    LB = setoffs(WS_CTXA, WS_WOA, 32, 8) + body(PFX + '_LB', False, True, accB)
    LA = body(PFX + '_LA', True, False, accA)
    mid = ST.stamp()
    rB = reduce_store(accB, 512)
    rA = [waitlgkm0(), barrier()] + reduce_store(accA, 0)
    fin = ([waitvm(n=0)] if prof else []) + ST.stamp() + ST.stamp(real=True) + ST.flush(sWG, sWV, sWSP, srdWS, vT[0], vT[1], sTmp[0]) + [label(PFX + '_end')]
    code = pro + F + gF + L + gL + LB + LA + mid + rB + rA + fin
    traces = [T(pro + F + gF + L + gL + L + gL + L + gL + LB + LA + mid + rB + rA + fin)]
    resolve_waits(traces)
    fix_hazards(traces, name='oproj', verbose=bool(int(opts.get('verbose', 0))))
    return render(code)
if __name__ == '__main__':
    t = gen({'verbose': 1}); print(len(t.splitlines()))
```

```python
from common import *

NAME = "proj_kernel"
LDS_BYTES = 163840
XSLOT = [0, 32768, 65536]
WBASE = 98304
WSLOT = [WBASE + 16384 * i for i in range(4)]

sWG = S(2)
sPTR = {k: S(20 + 2 * i, 2) for i, k in enumerate(['A_x', 'A_wqkv', 'A_wo', 'B_x', 'B_c_kv', 'B_w_q', 'B_w_uk', 'B_w_uv', 'B_w_o'])}
sWSP = S(38, 2)
srdX, srdW, srdWS = S(8, 4), S(12, 4), S(16, 4)
sG, sH, sWV = S(40), S(41), S(42)
sXoff, sWoff = S(43), S(44)
sXlds, sWlds = S(45), S(46)
sSt = S(47, 4)
sTmp = S(52, 4)
sScale = S(56, 2)
sU = S(58)
sStBase = S(59)
vXa = [V(1 + i) for i in range(4)]
vXb = [V(5 + i) for i in range(4)]
vWa = [V(9 + i) for i in range(4)]
vXd = [V(13 + i) for i in range(8)]
vWd = [V(21 + i) for i in range(4)]
vL16 = V(25)
vStV = V(26)
vT = [V(27 + i) for i in range(5)]
vLane = V(32)
vPk = [V(64, 8), V(72, 8)]
vWf = [V(80, 16), V(96, 16)]
def acc(nb, tb): return V(128 + (nb * 2 + tb) * 16, 16)
def xfrag(st, tb, ks): return A(((st * 2 + tb) * 4 + ks) * 4, 4)

def prologue():
    p = []
    a = p.append
    a(salu('s_cmp_ge_u32', None, sWG, 256)); a(branch('s_cbranch_scc1', 'L_proj_end'))
    names = ['A_x', 'A_wqkv', 'A_wo', 'B_x', 'B_c_kv', 'B_w_q', 'B_w_uk', 'B_w_uv', 'B_w_o']
    a(raw("s_load_dwordx16 s[20:35], s[0:1], 0", wr=[f"s{i}" for i in range(20, 36)]))
    a(raw("s_load_dwordx2 s[36:37], s[0:1], 64", wr=['s36', 's37']))
    a(raw("s_load_dwordx2 s[38:39], s[0:1], 88", wr=['s38', 's39']))
    a(salu('s_and_b32', sTmp[0], sWG, 7))
    a(salu('s_lshr_b32', sTmp[1], sWG, 3))
    a(salu('s_and_b32', sG, sTmp[0], 1)); a(salu('s_lshl_b32', sG, sG, 2))
    a(salu('s_and_b32', sTmp[2], sTmp[1], 3)); a(salu('s_add_u32', sG, sG, sTmp[2]))
    a(salu('s_lshr_b32', sH, sTmp[0], 1)); a(salu('s_lshl_b32', sH, sH, 3))
    a(salu('s_lshr_b32', sTmp[2], sTmp[1], 2)); a(salu('s_add_u32', sH, sH, sTmp[2]))
    a(valu('v_lshrrev_b32', vT[0], 6, V(0)))
    a(valu('v_and_b32', vLane, 63, V(0)))
    a(nop(0))
    a(valu('v_readfirstlane_b32', sWV, vT[0]))
    l = vLane
    a(valu('v_and_b32', vT[0], 31, l))
    a(valu('v_lshrrev_b32', vT[1], 5, l))
    a(valu('v_bfe_u32', vT[2], vT[0], 1, 3))
    a(valu('v_lshlrev_b32', vT[3], 7, vT[0]))
    a(salu('s_lshl_b32', sXlds, sWV, 13))
    a(salu('s_lshl_b32', sWlds, sWV, 12))
    a(valu('v_add_u32', vT[3], sXlds, vT[3]))
    for ks in range(4):
        a(valu('v_add_u32', vT[4], 2 * ks, vT[1]))
        a(valu('v_xor_b32', vT[4], vT[4], vT[2]))
        a(valu('v_lshl_add_u32', vXa[ks], vT[4], 4, vT[3]))
        a(valu('v_add_u32', vXb[ks], '0x10000', vXa[ks]))
    a(valu('v_lshrrev_b32', vT[0], 3, l))
    a(valu('v_lshlrev_b32', vT[0], 10, vT[0]))
    a(valu('v_and_b32', vT[1], 7, l))
    a(valu('v_lshrrev_b32', vT[2], 4, l))
    for p_ in range(8):
        a(valu('v_add_u32', vT[3], 4 * (p_ & 1), vT[2]))
        a(valu('v_xor_b32', vT[3], vT[3], vT[1]))
        a(valu('v_lshl_add_u32', vT[3], vT[3], 4, vT[0]))
        a(valu('v_add_u32', vXd[p_], hexs(p_ * 8192 - (p_ & 3) * 1024), vT[3]))
    a(valu('v_lshlrev_b32', vL16, 4, l))
    a(valu('v_bfe_u32', vT[0], l, 4, 1)); a(valu('v_lshlrev_b32', vT[0], 16, vT[0]))
    a(valu('v_lshrrev_b32', vT[1], 5, l)); a(valu('v_lshl_add_u32', vT[0], vT[1], 8, vT[0]))
    a(valu('v_and_b32', vT[1], 15, l)); a(valu('v_lshl_add_u32', vStV, vT[1], 4, vT[0]))
    p += w_addr_setup(4)
    a(raw("s_waitcnt lgkmcnt(0)", kind='waitlgkm0'))
    p += set_srd(srdX, sPTR['B_c_kv'], 2 * MB)
    p += set_srd(srdW, sPTR['B_w_uk'], 4 * MB)
    p += set_srd(srdWS, sWSP, WS_USED)
    a(salu('s_lshl_b32', sXoff, sG, 18)); a(salu('s_lshl_b32', sTmp[0], sWV, 16)); a(salu('s_add_u32', sXoff, sXoff, sTmp[0]))
    a(salu('s_lshl_b32', sWoff, sH, 8)); a(salu('s_lshl_b32', sTmp[0], sWV, 17)); a(salu('s_add_u32', sWoff, sWoff, sTmp[0]))
    return p

def w_addr_setup(NB, rowstride=8192, perm=False):
    p = []; a = p.append
    l = vLane
    a(valu('v_and_b32', vT[0], 15, l))
    a(valu('v_lshrrev_b32', vT[1], 2, vT[0]))
    a(valu('v_lshrrev_b32', vT[2], 5, l))
    rowb = 256 if NB == 4 else 128
    a(valu('v_lshl_add_u32', vT[2], vT[2], 2 if perm else 3, vT[1]))
    a(valu('v_lshlrev_b32', vT[2], 8 if NB == 4 else 7, vT[2]))
    a(valu('v_bfe_u32', vT[3], l, 4, 1))
    a(valu('v_lshl_add_u32', vT[2], vT[3], 5, vT[2]))
    a(valu('v_and_b32', vT[3], 3, vT[0]))
    a(valu('v_lshl_add_u32', vT[2], vT[3], 3, vT[2]))
    a(valu('v_add_u32', vT[2], hexs(WBASE), vT[2]))
    if NB == 2: a(valu('v_lshrrev_b32', vT[1], 1, vT[1]))
    for nb in range(NB):
        a(valu('v_xor_b32', vT[3], nb, vT[1]))
        a(valu('v_lshl_add_u32', vWa[nb], vT[3], 6, vT[2]))
    if NB == 4:
        a(valu('v_lshrrev_b32', vT[0], 4, l))
        a(valu('v_lshlrev_b32', vT[1], 2, vT[0]))
        a(valu('v_and_b32', vT[2], 15, l))
        a(valu('v_xor_b32', vT[1], vT[1], vT[2]))
        a(valu('v_mul_u32_u24', vT[0], hexs(rowstride), vT[0]))
        a(valu('v_lshl_add_u32', vT[0], vT[1], 4, vT[0]))
        for q in range(4):
            a(valu('v_add_u32', vWd[q], hexs(q * (4 * rowstride - 1024)), vT[0]))
    else:
        a(valu('v_lshrrev_b32', vT[0], 3, l))
        a(valu('v_bfe_u32', vT[1], l, 4, 1)); a(valu('v_lshlrev_b32', vT[1], 2, vT[1]))
        a(valu('v_and_b32', vT[2], 7, l))
        a(valu('v_xor_b32', vT[1], vT[1], vT[2]))
        a(valu('v_mul_u32_u24', vT[0], hexs(rowstride), vT[0]))
        a(valu('v_lshl_add_u32', vT[0], vT[1], 4, vT[0]))
        for q in range(2):
            a(valu('v_add_u32', vWd[q], hexs(q * (8 * rowstride - 1024)), vT[0]))
    return p

class Pass:
    def __init__(s, name, t0, NB, xs, typ, scale, xi0):
        s.name, s.t0, s.NB, s.xs, s.typ, s.scale, s.xi0 = name, t0, NB, xs, typ, scale, xi0

def x_dma(xi, flags=""):
    slot = XSLOT[xi % 3]
    out = []
    for p_ in range(8):
        if p_ % 4 == 0:
            out.append(salu('s_add_u32', 'm0', sXlds, hexs(slot + (p_ >> 2) * 4096)))
        out.append(dma(vXd[p_], srdX, sXoff, (p_ & 3) * 1024, tag=('X', xi, p_)))
    out.append(salu('s_add_u32', sXoff, sXoff, 128))
    return out
def w_dma(t, NB, rowstride):
    slot = WSLOT[t % 4]
    out = []
    if NB == 4:
        out.append(salu('s_add_u32', 'm0', sWlds, hexs(slot)))
        for q in range(4): out.append(dma(vWd[q], srdW, sWoff, q * 1024, tag=('W', t, q)))
    else:
        out.append(salu('s_lshr_b32', sTmp[3], sWlds, 1))
        out.append(salu('s_add_u32', 'm0', sTmp[3], hexs(slot)))
        for q in range(2): out.append(dma(vWd[q], srdW, sWoff, q * 1024, tag=('W', t, q)))
    out.append(salu('s_add_u32', sWoff, sWoff, hexs(64 * rowstride)))
    return out
def x_reads(st, xi):
    slot = xi % 3
    out = []
    for tb in range(2):
        for ks in range(4):
            addr = vXa[ks] if slot < 2 else vXb[ks]
            off = (XSLOT[slot] if slot < 2 else 0) + tb * 4096
            out.append(ds_read('ds_read_b128', xfrag(st, tb, ks), addr, off))
    return out
def w_reads(t, nb, NB):
    buf = vWf[nb & 1]
    rowb = 256 if NB == 4 else 128
    out = []
    for ks in range(4):
        for r2 in range(2):
            off = (t % 4) * 16384 + (16 * ks + 4 * r2) * rowb
            out.append(ds_read('ds_read_b64_tr_b16', buf[4 * ks + 2 * r2: 4 * ks + 2 * r2 + 2], vWa[nb], off))
    return out

def switch_x(name):
    return set_srd(srdX, sPTR[name], 2 * MB) + [salu('s_sub_u32', sXoff, sXoff, 1024)]
def switch_w(name, first_off_ins):
    size = 4 * MB if name != 'A_wqkv' else 512 * 3072
    return set_srd(srdW, sPTR[name], size) + first_off_ins

NOSTORE = False
def epilogue_block(ps, nb, tb, flags):
    o = epilogue_block_(ps, nb, tb, flags)
    if NOSTORE: o = [x for x in o if x.kind != 'vstore']
    return o
def epilogue_block_(ps, nb, tb, flags):
    b = nb * 2 + tb
    ac = acc(nb, tb); pk = vPk[b & 1]
    out = []
    if ps.scale:
        for i in range(8):
            out.append(valu('v_pk_mul_f32', ac[2 * i:2 * i + 2], ac[2 * i:2 * i + 2], sScale))
    for i in range(8):
        out.append(valu('v_cvt_pk_bf16_f32', pk[i], ac[2 * i], ac[2 * i + 1]))
    if ps.name in ('K', 'Q'):
        so = sSt[tb * 2 + (nb >> 1)]
        out.append(bstore(pk[0:4], vL16, srdWS, so, (nb & 1) * 2048, flags=flags))
        out.append(bstore(pk[4:8], vL16, srdWS, so, (nb & 1) * 2048 + 1024, flags=flags))
    elif ps.name == 'V':
        out.append(bstore(pk[0:4], vL16, srdWS, sSt[tb * 2 + 0], nb * 1024, flags=flags))
        out.append(bstore(pk[4:8], vL16, srdWS, sSt[tb * 2 + 1], nb * 1024, flags=flags))
    elif ps.name in ('AQK',):
        out.append(salu('s_add_u32', sTmp[0], sSt[tb], hexs((2 * nb) * 65536)))
        out.append(bstore(pk[0:4], vL16, srdWS, sTmp[0], 0, flags=flags))
        out.append(salu('s_add_u32', sTmp[1], sSt[tb], hexs((2 * nb + 1) * 65536)))
        out.append(bstore(pk[4:8], vL16, srdWS, sTmp[1], 0, flags=flags))
    elif ps.name == 'AV':
        out.append(salu('s_add_u32', sTmp[0], sSt[tb], hexs((2 * nb) * 65536)))
        out.append(bstore(pk[0:4], vStV, srdWS, sTmp[0], 0, flags=flags))
        out.append(bstore(pk[4:8], vStV, srdWS, sTmp[0], 512, flags=flags))
    return out

def epi_setup(ps):
    o = []; a = o.append
    a(salu('s_lshl_b32', sTmp[0], sG, 3)); a(salu('s_lshl_b32', sTmp[1], sWV, 1)); a(salu('s_add_u32', sTmp[0], sTmp[0], sTmp[1]))
    if ps.name in ('K', 'Q', 'V'):
        base = {'K': WS_KB, 'Q': WS_QB, 'V': WS_VB}[ps.name]
        a(salu('s_lshl_b32', sTmp[1], sH, 6)); a(salu('s_add_u32', sTmp[0], sTmp[0], sTmp[1]))
        a(salu('s_lshl_b32', sTmp[0], sTmp[0], 13))
        a(salu('s_add_u32', sSt[0], sTmp[0], hexs(base)))
        a(salu('s_add_u32', sSt[1], sSt[0], 4096))
        a(salu('s_add_u32', sSt[2], sSt[0], 8192))
        a(salu('s_add_u32', sSt[3], sSt[0], 8192 + 4096))
    else:
        a(salu('s_lshr_b32', sTmp[1], sH, 3)); a(salu('s_lshl_b32', sTmp[1], sTmp[1], 21))
        a(salu('s_and_b32', sTmp[2], sH, 7)); a(salu('s_lshl_b32', sTmp[2], sTmp[2], 18))
        a(salu('s_add_u32', sTmp[1], sTmp[1], sTmp[2]))
        a(salu('s_lshl_b32', sTmp[0], sTmp[0], 10))
        a(salu('s_add_u32', sTmp[0], sTmp[0], sTmp[1]))
        a(salu('s_add_u32', sSt[0], sTmp[0], hexs(WS_QA)))
        a(salu('s_add_u32', sSt[1], sSt[0], 1024))
    if ps.scale:
        a(s_mov(sScale[0], f2u(ps.scale))); a(s_mov(sScale[1], f2u(ps.scale)))
    return o

def build(store_flags=""):
    K = Pass('K', 0, 4, True, 'K', None, 0)
    Vp = Pass('V', 8, 4, False, 'V', None, None)
    Q = Pass('Q', 16, 4, True, 'K', C_B, 8)
    variants = {'AQ': Pass('AQK', 24, 2, True, 'K', C_A, 16), 'AK': Pass('AQK', 24, 2, True, 'K', None, 16), 'AV': Pass('AV', 24, 2, True, 'V', None, 16)}
    def rowstride(t): return 8192 if t < 24 else 3072
    def NBof(t): return 4 if t < 24 else 2
    def xi_of(t):
        if t < 8: return t
        if t < 16: return None
        return t - 8
    def t_of_xi(xi): return xi if xi < 8 else xi + 8

    gaps = {}
    def G(t, g):
        n = NBof(t) * 8
        while g >= n:
            g -= n; t += 1; n = NBof(t) * 8 if t < 32 else 10 ** 9
        return gaps.setdefault((t, g), [])

    def mfmas(ps, t):
        st = t - ps.t0
        out = []
        cst = st if ps.name != 'V' else st
        for nb in range(ps.NB):
            for tb in range(2):
                for ks in range(4):
                    wf = vWf[nb & 1][4 * ks:4 * ks + 4]; xf = xfrag(cst, tb, ks)
                    c = 0 if (st == 0 and ks == 0) else acc(nb, tb)
                    if ps.typ == 'K': out.append(mfma32(acc(nb, tb), wf, xf, c))
                    else: out.append(mfma32(acc(nb, tb), xf, wf, c))
        return out

    def common_fill(ps, t, last_t):
        NB = ps.NB; n = NB * 8
        for nb in range(NB):
            if nb + 1 < NB: rs = w_reads(t, nb + 1, NB)
            elif t + 1 <= last_t: rs = w_reads(t + 1, 0, NBof(t + 1))
            else: rs = []
            for i, r in enumerate(rs): G(t, 8 * nb + i).append(r)
        bar = n - 9
        if t + 1 <= last_t:
            npieces = 4 if NBof(t + 1) == 4 else 2
            G(t, bar).append(waitvm(need=[('W', t + 1, q) for q in range(npieces)]))
            G(t, bar).append(barrier())
        if t + 3 <= last_t:
            pre = []
            if t + 3 == 8: pre = switch_w('B_w_uv', [salu('s_sub_u32', sWoff, sWoff, hexs(512 * 8192))])
            if t + 3 == 16: pre = switch_w('B_w_q', [salu('s_sub_u32', sWoff, sWoff, hexs(512 * 8192))])
            if t + 3 == 24:
                pre = switch_w('A_wqkv', [salu('s_lshl_b32', sWoff, sH, 7), salu('s_mul_i32', sTmp[2], sWV, 16 * 3072), salu('s_add_u32', sWoff, sWoff, sTmp[2])])
                pre += a_dma_voff()
            wins = pre + w_dma(t + 3, NBof(t + 3), rowstride(t + 3))
        else: wins = []
        xin = xi_of(t + 1) if t + 1 <= last_t else None
        if xin is not None:
            nst = (t + 1) % 8
            rs = x_reads(nst, xin)
            g0 = n - 10
            G(t, g0).append(waitvm(need=[('X', xin, q) for q in range(8)]))
            for i, r in enumerate(rs): G(t, g0 + i).append(r)
        xi = xi_of(t)
        if xi is not None and xi + 3 <= 23 and t_of_xi(xi + 3) <= last_t:
            pre = []
            if xi + 3 == 8: pre = switch_x('B_x')
            if xi + 3 == 16: pre = switch_x('A_x')
            xins = pre + x_dma(xi + 3)
        else: xins = []
        def spread(ins, g0, g1):
            if not ins: return
            per = (len(ins) + (g1 - g0) - 1) // (g1 - g0)
            for i, x in enumerate(ins): G(t, g0 + i // per).append(x)
        if NB == 4:
            spread(xins, 8, bar); spread(wins, bar + 1, n)
        else:
            spread(wins + xins, bar + 1, n)

    def a_dma_voff():
        o = []; a = o.append; l = vLane
        a(valu('v_lshrrev_b32', vT[0], 3, l))
        a(valu('v_bfe_u32', vT[1], l, 4, 1)); a(valu('v_lshlrev_b32', vT[1], 2, vT[1]))
        a(valu('v_and_b32', vT[2], 7, l)); a(valu('v_xor_b32', vT[1], vT[1], vT[2]))
        a(valu('v_mul_u32_u24', vT[0], 3072, vT[0])); a(valu('v_lshl_add_u32', vT[0], vT[1], 4, vT[0]))
        for q in range(2): a(valu('v_add_u32', vWd[q], hexs(q * (8 * 3072 - 1024)), vT[0]))
        return o
    def a_read_addr():
        o = []; a = o.append; l = vLane
        a(valu('v_and_b32', vT[0], 15, l)); a(valu('v_lshrrev_b32', vT[1], 2, vT[0])); a(valu('v_lshrrev_b32', vT[2], 5, l))
        a(valu('v_lshl_add_u32', vT[2], vT[2], 3, vT[1])); a(valu('v_lshlrev_b32', vT[2], 7, vT[2]))
        a(valu('v_bfe_u32', vT[3], l, 4, 1)); a(valu('v_lshl_add_u32', vT[2], vT[3], 5, vT[2]))
        a(valu('v_and_b32', vT[3], 3, vT[0])); a(valu('v_lshl_add_u32', vT[2], vT[3], 3, vT[2]))
        a(valu('v_add_u32', vT[2], hexs(WBASE), vT[2])); a(valu('v_lshrrev_b32', vT[1], 1, vT[1]))
        a(valu('v_lshl_add_u32', vWa[0], vT[1], 6, vT[2]))
        a(valu('v_xor_b32', vT[3], 1, vT[1]))
        a(valu('v_lshl_add_u32', vT[4], vT[3], 6, vT[2]))
        return o

    def epi_fill(ps, tlast, flags, next_exists):
        setup = epi_setup(ps)
        for i, x in enumerate(setup): G(tlast, 2 + i // 3).append(x)
        tail = []
        n = ps.NB * 8
        for nb in range(ps.NB):
            for tb in range(2):
                b = nb * 2 + tb
                ins = epilogue_block(ps, nb, tb, flags)
                g0 = 4 * b + 3 + 4
                per = (len(ins) + 3) // 4
                for i, x in enumerate(ins):
                    g = g0 + i // per
                    if g < n or next_exists: G(tlast, g).append(x)
                    else: tail.append(x)
        return tail

    passes = [K, Vp, Q]
    for ps in passes:
        for t in range(ps.t0, ps.t0 + 8):
            common_fill(ps, t, 31)
    epi_fill(K, 7, store_flags, True)
    epi_fill(Vp, 15, store_flags, True)
    ar = a_read_addr()
    for i, x in enumerate(ar): G(23, 10 + i // 2).append(x)
    G(23, 20).append(valu('v_mov_b32', vWa[1], vT[4]))
    main = []
    for ps in passes:
        for t in range(ps.t0, ps.t0 + 8):
            ms = mfmas(ps, t)
            main.append(comment(f"stage {t} ({ps.name})"))
            for g, m in enumerate(ms):
                main.append(m); main += gaps.get((t, g), [])
    return K, Vp, Q, variants, gaps, G, mfmas, common_fill, epi_fill, passes

def gen(store_flags="", prof=False):
    ST = Stamps(60, prof, 0)
    K, Vp, Q, variants, gaps, G, mfmas, common_fill, epi_fill, passes = build(store_flags)
    setup = epi_setup(Q)
    for i, x in enumerate(setup): G(23, 2 + i // 3).append(x)
    qrest = []
    def q_epi(variant_gap):
        o = []
        for nb in range(4):
            for tb in range(2):
                b = nb * 2 + tb
                ins = epilogue_block(Q, nb, tb, store_flags)
                g0 = 4 * b + 7; per = (len(ins) + 3) // 4
                for i, x in enumerate(ins): o.append((g0 + i // per, x))
        return o
    for g, x in q_epi(None):
        if g < 32: G(23, g).append(x)
    pro = ST.stamp(real=True) + ST.stamp() + prologue()
    init = []
    init += x_dma_first(0) + w_dma_first(0)
    main = []
    for ps in passes:
        for t in range(ps.t0, ps.t0 + 8):
            ms = mfmas(ps, t)
            main.append(comment(f"stage {t} ({ps.name})"))
            if t in (0, 1, 2, 4, 8, 9, 10, 12, 16, 17, 18, 20, 23): main += ST.stamp()
            for g, m in enumerate(ms):
                main.append(m); main += gaps.get((t, g), [])
    start = x_dma(0) + w_dma(0, 4, 8192) + x_dma(1) + w_dma(1, 4, 8192) + x_dma(2) + w_dma(2, 4, 8192)
    start += [waitvm(need=[('X', 0, q) for q in range(8)] + [('W', 0, q) for q in range(4)]), barrier()]
    start += x_reads(0, 0) + w_reads(0, 0, 4)
    var_code = {}
    for vn, ps in variants.items():
        for k in [k for k in gaps if k[0] >= 24]: del gaps[k]
        for t in range(24, 32): common_fill(ps, t, 31)
        for g, x in q_epi(None):
            if g >= 32: G(24, g - 32).append(x)
        tail = epi_fill(ps, 31, store_flags, False)
        code = [label(f"L_proj_{vn}")]
        for t in range(24, 32):
            code.append(comment(f"stage {t} ({vn})"))
            for g, m in enumerate(mfmas(ps, t)):
                code.append(m); code += gaps.get((t, g), [])
        code += tail
        code.append(branch('s_branch', 'L_proj_fin'))
        var_code[vn] = code
    tr = [label("L_proj_TR")]
    tr += [x for g, x in q_epi(None) if g >= 32]
    tr += transpose_job(store_flags)
    tr.append(branch('s_branch', 'L_proj_fin'))
    disp = [salu('s_cmp_ge_u32', None, sH, 24), branch('s_cbranch_scc1', 'L_proj_TR'),
            salu('s_cmp_ge_u32', None, sH, 16), branch('s_cbranch_scc1', 'L_proj_AV'),
            salu('s_cmp_ge_u32', None, sH, 8), branch('s_cbranch_scc1', 'L_proj_AK')]
    main = m0_peephole(main)
    for vn in var_code: var_code[vn] = m0_peephole(var_code[vn])
    disp = ST.stamp() + disp
    fin = [label('L_proj_fin')] + [waitvm(n=0)] * (1 if prof else 0) + ST.stamp() + ST.stamp(real=True) + ST.flush(sWG, sWV, sWSP, srdX, vT[0], vT[1], sTmp[0])
    head = pro + start + main + disp
    traces = []
    for vn in ('AQ', 'AK', 'AV'):
        traces.append(T(head + var_code[vn] + fin))
    traces.append(T(head + tr + fin))
    resolve_waits(traces)
    nn = fix_hazards(traces, name='proj')
    allcode = head + var_code['AQ'] + var_code['AK'] + var_code['AV'] + tr + fin + [label('L_proj_end')]
    return render(allcode)

def x_dma_first(i): return []
def w_dma_first(i): return []

def transpose_job(flags):
    o = []; a = o.append
    sIdx = sU
    a(waitvm(n=0)); a(waitlgkm0()); a(barrier())
    a(salu('s_lshl_b32', sIdx, sG, 3)); a(salu('s_add_u32', sIdx, sIdx, sH)); a(salu('s_sub_u32', sIdx, sIdx, 24))
    o += w_addr_setup(4, rowstride=1024, perm=True)
    o += set_srd(srdW, sPTR['B_w_o'], 4 * MB)
    a(salu('s_lshl_b32', sWoff, sIdx, 16))
    a(salu('s_lshl_b32', sTmp[0], sWV, 14)); a(salu('s_add_u32', sWoff, sWoff, sTmp[0]))
    for nt in range(4):
        a(salu('s_add_u32', 'm0', sWlds, hexs(WSLOT[nt])))
        for q in range(4): a(dma(vWd[q], srdW, sWoff, q * 1024, tag=('TR', nt, q)))
        a(salu('s_add_u32', sWoff, sWoff, 256))
    o += set_srd(srdW, sPTR['A_wo'], 512 * 1024)
    a(salu('s_lshr_b32', sTmp[0], sIdx, 2)); a(salu('s_and_b32', sTmp[0], sTmp[0], 7)); a(salu('s_lshl_b32', sWoff, sTmp[0], 16))
    a(salu('s_and_b32', sTmp[1], sIdx, 3)); a(salu('s_lshl_b32', sTmp[1], sTmp[1], 8)); a(salu('s_add_u32', sWoff, sWoff, sTmp[1]))
    a(salu('s_lshl_b32', sTmp[0], sWV, 14)); a(salu('s_add_u32', sWoff, sWoff, sTmp[0]))
    a(salu('s_mov_b32', 'm0', sWlds))
    for q in range(4): a(dma(vWd[q], srdW, sWoff, q * 1024, tag=('TRA', q)))
    a(waitvm(n=0)); a(barrier())
    l = vLane
    a(valu('v_and_b32', vT[0], 15, l)); a(valu('v_lshrrev_b32', vT[1], 2, vT[0]))
    a(valu('v_xor_b32', vT[1], sWV, vT[1])); a(valu('v_lshlrev_b32', vT[1], 6, vT[1]))
    a(valu('v_lshrrev_b32', vT[2], 2, vT[0])); a(valu('v_lshlrev_b32', vT[2], 6, vT[2]))
    a(valu('v_sub_u32', vT[2], vWa[0], vT[2])); a(valu('v_add_u32', vT[3], vT[2], vT[1]))
    a(valu('v_subrev_u32', vT[4], hexs(WBASE), vT[3]))
    a(salu('s_lshl_b32', sTmp[0], sWV, 18)); a(salu('s_lshl_b32', sTmp[1], sIdx, 12)); a(salu('s_add_u32', sTmp[0], sTmp[0], sTmp[1]))
    a(salu('s_add_u32', sSt[0], sTmp[0], hexs(WS_WOB)))
    bufs = [V(128 + 16 * i, 16) for i in range(5)]
    for nt in range(4):
        for ks in range(4):
            for r2 in range(2):
                a(ds_read('ds_read_b64_tr_b16', bufs[nt][4 * ks + 2 * r2:4 * ks + 2 * r2 + 2], vT[3], nt * 16384 + (16 * ks + 8 * r2) * 256))
    for ks in range(4):
        for r2 in range(2):
            a(ds_read('ds_read_b64_tr_b16', bufs[4][4 * ks + 2 * r2:4 * ks + 2 * r2 + 2], vT[4], (16 * ks + 8 * r2) * 256))
    for nt in range(4):
        for ks in range(4):
            a(bstore(bufs[nt][4 * ks:4 * ks + 4], vL16, srdWS, sSt[0], ks * 1024, flags=flags))
        a(salu('s_add_u32', sSt[0], sSt[0], hexs(4 * 256 * 1024)))
    a(salu('s_cmp_ge_u32', None, sIdx, 32)); a(branch('s_cbranch_scc1', 'L_proj_fin'))
    a(salu('s_and_b32', sTmp[0], sIdx, 3)); a(salu('s_lshl_b32', sTmp[0], sTmp[0], 2)); a(salu('s_add_u32', sTmp[0], sTmp[0], sWV))
    a(salu('s_lshl_b32', sTmp[0], sTmp[0], 15)); a(salu('s_lshr_b32', sTmp[1], sIdx, 2)); a(salu('s_lshl_b32', sTmp[1], sTmp[1], 12))
    a(salu('s_add_u32', sTmp[0], sTmp[0], sTmp[1])); a(salu('s_add_u32', sSt[0], sTmp[0], hexs(WS_WOA)))
    for ks in range(4):
        a(bstore(bufs[4][4 * ks:4 * ks + 4], vL16, srdWS, sSt[0], ks * 1024, flags=flags))
    return o

if __name__ == "__main__":
    txt = gen()
    print(len(txt.splitlines()), "lines")
```

```python
import sys, importlib
from common import *
HEADER = open('concat_heads__mha_block__compressed_kv_cla__prompt.s.ref').read().split('; Override launch geometry')[0]

def assemble(kernels):
    s = HEADER
    for k in kernels:
        for l in k['launches']:
            s += f"; @launch kernel={k['name']} grid=({l[0]},1,1) block=({l[1]},1,1) lds={l[2]}\n"
    s += '.amdgcn_target "amdgcn-amd-amdhsa--gfx950"\n'
    seen = set()
    for k in kernels:
        if k['name'] in seen: continue
        seen.add(k['name'])
        s += kernel_text(k['name'], k['body'], k['nvgpr'], k['accoff'])
    s += '.section .rodata,"a"\n'
    seen = set()
    for k in kernels:
        if k['name'] in seen: continue
        seen.add(k['name'])
        s += ".p2align 6\n" + kernel_desc(k['name'], k['nvgpr'], k['accoff'])
    return s

def main(out, which, opts):
    ks = []
    if 'proj' in which:
        import k_proj
        k_proj.NOSTORE = bool(int(opts.get('nostore', 0)))
        ks.append(dict(name='proj_kernel', body=k_proj.gen(store_flags=opts.get('proj_flags', ''), prof=bool(int(opts.get('prof', 0))), touch=bool(int(opts.get('touch', 1)))), nvgpr=512, accoff=256, launches=[(256, 256, k_proj.LDS_BYTES)]))
    if 'battn' in which:
        import k_battn
        ks.append(dict(name='battn_kernel', body=k_battn.gen(opts), nvgpr=512, accoff=256, launches=[(256, 256, k_battn.LDS_BYTES)]))
    if 'aattn' in which:
        import k_aattn
        ks.append(dict(name='aattn_kernel', body=k_aattn.gen(opts), nvgpr=k_aattn.NVGPR, accoff=k_aattn.ACCOFF, launches=[(256, 256, k_aattn.LDS_BYTES)]))
    if 'oproj' in which:
        import k_oproj
        ks.append(dict(name='oproj_kernel', body=k_oproj.gen(opts), nvgpr=k_oproj.NVGPR, accoff=k_oproj.ACCOFF, launches=[(k_oproj.GRID, 256, k_oproj.LDS_BYTES)]))
    open(out, 'w').write(assemble(ks))

if __name__ == '__main__':
    out = sys.argv[1]; which = sys.argv[2].split(',')
    opts = dict(a.split('=', 1) for a in sys.argv[3:])
    main(out, which, opts)
```

```python
from common import *
import qproj

LDS_BYTES = 163840
KRING, VRING, FLAG = 0, 65536, 131072
NEG_INF = '0xff800000'

sWG = S(2)
srdK, srdV, srdWS = S(8, 4), S(12, 4), S(16, 4)
sWSP = S(20, 2)
sH, sI, sWV = S(22), S(23), S(24)
sKa, sKb, sVa, sVb = S(25), S(26), S(27), S(28)
sKoff, sVoff = S(29), S(30)
sCnt = S(31)
sTmp = S(32, 6)
sMode = S(38)
sQoff = S(39, 2)
sNb = S(41)
sExec = S(42, 2)
vLane = V(1); vL16 = V(2); vD = V(3)
vKa, vKb, vVa, vVb = V(4), V(5), V(6), V(7)
vT = [V(8 + i) for i in range(8)]
vL = [[V(16), V(17)], [V(18), V(19)]]
vM = [V(20), V(21)]
vChk = V(22)
vMd = V(96, 16)
sPX, sPW = S(44, 2), S(46, 2)
srdX, srdW = S(48, 4), S(52, 4)
sXoff, sWoff, sXlds, sWlds = S(56), S(57), S(58), S(59)
sScale = S(6, 2)
def vS(par, u): return V(128 + (par * 2 + u) * 16, 16)
def vP(par, u): return V(192 + (par * 2 + u) * 8, 8)
def vC(u): return V(224 + 16 * u, 16)
def aO(u, db): return A((u * 4 + db) * 16, 16)
def aQ(u, s): return V(32 + (u * 8 + s) * 4, 4)
def aK(s): return A(192 + 4 * s, 4)
def aV(f): return A(224 + 4 * f, 4)
PFN = 5

_lab = [0]
def newlabel(p):
    _lab[0] += 1
    return f"L_b_{p}_{_lab[0]}"

def sm_ops(par, u):
    s = vS(par, u); p = vP(par, u)
    ops = []
    def tailops(r):
        return [valu('v_add_f32', vL[u][0], vL[u][0], s[r]), valu('v_add_f32', vL[u][1], vL[u][1], s[r + 1]),
                valu('v_cvt_pk_bf16_f32', p[r // 2], s[r], s[r + 1])]
    for r in range(0, 16, 2):
        ops += [valu('v_exp_f32', s[r], s[r]), valu('v_exp_f32', s[r + 1], s[r + 1])]
        if r >= 2: ops += tailops(r - 2)
    ops += tailops(14)
    return ops

def k_read(s, half_other, slot):
    return ds_read('ds_read_b128', aK(s), vKb if half_other else vKa, slot * 8192 + s * 1024)
def v_read(f, half_other, slot):
    return ds_read('ds_read_b128', aV(f), vVb if half_other else vVa, slot * 8192 + f * 1024)

def dma_k(half_other, slot, tag):
    return [salu('s_add_u32', 'm0', sKb if half_other else sKa, hexs(slot * 8192)),
            dma(vD, srdK, sKoff, 0, tag=tag), dma(vD, srdK, sKoff, 1024, tag=tag), salu('s_add_u32', sKoff, sKoff, 8192)]
def dma_v(half_other, slot, tag):
    return [salu('s_add_u32', 'm0', sVb if half_other else sVa, hexs(slot * 8192)),
            dma(vD, srdV, sVoff, 0, tag=tag), dma(vD, srdV, sVoff, 1024, tag=tag), salu('s_add_u32', sVoff, sVoff, 8192)]

def event(u, it):
    o = []
    l1, l2 = newlabel('ev'), newlabel('ev')
    o += [salu('s_cmp_lg_u32', None, sWV, it), branch('s_cbranch_scc1', l1)]
    o += [valu('v_add_f32', vC(u)[r], vC(u)[r], vMd[r]) for r in range(16)]
    o += [label(l1)]
    if it >= 1:
        o += [salu('s_cmp_lg_u32', None, sWV, it - 1), branch('s_cbranch_scc1', l2)]
        o += [valu('v_mov_b32', vC(u)[r], NEG_INF) for r in range(16)]
        o += [label(l2)]
    o.append(nop(1))
    return o

def iteration(it, qk, sm, pv, first_pv=False, bar=False, dmas=True, prefetch=True, events=(), have_prefetched=True, extra_end=()):
    par = it & 1
    ms = []; kfirst = {}; vfirst = {}
    for s in range(8):
        for u in qk:
            kfirst.setdefault(s, len(ms))
            ms.append(mfma32(vS(par, u), aK(s), aQ(u, s), vC(u) if s == 0 else vS(par, u)))
    for f in range(8):
        ks, db = f >> 2, f & 3
        for u in pv:
            vfirst.setdefault(f, len(ms))
            c = 0 if (first_pv and ks == 0) else aO(u, db)
            ms.append(mfma32(aO(u, db), aV(f), vP(par, u)[4 * ks:4 * ks + 4], c))
    n = len(ms)
    dual = max(len(qk), len(pv)) == 2
    D = 8 if dual else 5
    pre = []
    gaps = [[] for _ in range(max(n, 1))]
    for u in events: pre += event(u, it)
    barr = []
    if bar:
        barr = [waitvm(need=lambda c, it=it: [('K', 4 * c['m'] + it + 2)]), barrier()]
    kreads = []
    for s in range(8):
        if s in kfirst and (s >= PFN or not have_prefetched):
            kreads.append((kfirst[s] - D, k_read(s, False, it)))
    vo, vs = (True, it + 2) if it < 2 else (False, it - 2)
    vreads = [(vfirst[f] - D, v_read(f, vo, vs)) for f in range(8) if f in vfirst]
    pf = []
    if prefetch:
        po, psl = (False, it + 1) if it < 3 else (True, 0)
        pf = [k_read(s, po, psl) for s in range(PFN)]
    dm = []
    if dmas:
        if it == 0:   dm = dma_k(True, 2, lambda c: ('K', 4 * c['m'] + 6)) + dma_v(True, 0, lambda c: ('V', 4 * c['m'] + 4))
        elif it == 1: dm = dma_k(True, 3, lambda c: ('K', 4 * c['m'] + 7)) + dma_v(True, 1, lambda c: ('V', 4 * c['m'] + 5))
        elif it == 2: dm = dma_k(False, 0, lambda c: ('K', 4 * c['m'] + 8)) + dma_v(True, 2, lambda c: ('V', 4 * c['m'] + 6))
        else:         dm = dma_k(False, 1, lambda c: ('K', 4 * c['m'] + 9)) + dma_v(True, 3, lambda c: ('V', 4 * c['m'] + 7))
    smo = []
    for u in sm: smo += sm_ops(par ^ 1, u)
    if n == 0:
        return pre + barr + dm + smo + pf + list(extra_end)
    if qk:
        gaps[0] += barr
        for g, r in kreads + vreads: gaps[max(g, 0)].append(r)
    else:
        pre += barr
        for g, r in vreads:
            if g < 0: pre.append(r)
            else: gaps[g].append(r)
    for i, r in enumerate(pf):
        gaps[max(n - 1 - (PFN - 1 - i) - (1 if dual else 0), 0)].append(r)
    if dm:
        g0 = 1; span = max(n - 3, 1)
        for i, x in enumerate(dm): gaps[min(g0 + (i * span) // len(dm), n - 1)].append(x)
    cap = [24 - sum(x.cost for x in gaps[g]) for g in range(n)]
    tot = sum(x.cost for x in smo)
    free = sum(max(c, 0) for c in cap)
    k = 0; acc_need = 0.0; placed = 0
    for g in range(n):
        share = (max(cap[g], 0) / free if free > 0 else 1.0 / n) * tot
        acc_need += share
        while k < len(smo) and (placed + smo[k].cost / 2 <= acc_need + 1e-6 or g == n - 1):
            gaps[g].append(smo[k]); placed += smo[k].cost; k += 1
    out = list(pre)
    for g in range(n):
        out.append(ms[g]); out += gaps[g]
    out += list(extra_end)
    out = m0_peephole(out)
    seen = set()
    for x in out:
        if x.kind == 'ds_read': seen |= x.wr
        if x.kind == 'mfma32':
            for r in x.srcab:
                if r[0] == 'a' and int(r[1:]) >= 224: assert r in seen, ("V frag used before read", x.text)
                if r[0] == 'a' and 192 + 4 * PFN <= int(r[1:]) < 224: assert r in seen, ("K frag used before read", x.text)
    return out

def toggles():
    return [valu('v_xor_b32', x, '0x8000', x) for x in (vKa, vKb, vVa, vVb)] + \
           [salu('s_xor_b32', x, x, '0x8000') for x in (sKa, sKb, sVa, sVb)]

def body(name, first, t0, t1):
    o = [label(name)]
    for it in range(4):
        qk, sm, pv, ev = [], [], [], []
        for u, mode in ((0, t0), (1, t1)):
            if mode in ('full', 'mask'):
                if not (first and it == 0): qk.append(u)
                if not (first and it == 0): sm.append(u)
                if not (first and it < 2): pv.append(u)
                if mode == 'mask' and not (first and it == 0): ev.append(u)
            elif mode == 'drain':
                if it == 0: sm.append(u)
                if it < 2: pv.append(u)
        last = (t1 == 'mask' and it == 3)
        o.append(comment(f"{name} it{it} qk={qk} sm={sm} pv={pv}"))
        o += iteration(it, qk, sm, pv, first_pv=(first and it in (2,)), bar=(it % 2 == 0), prefetch=not last, events=ev,
                       extra_end=toggles() if it == 3 else ())
    return o

def tail():
    o = [label('L_b_tail'), comment('tail')]
    o += iteration(0, [], [1], [1], bar=True, dmas=False, prefetch=False)
    o += iteration(1, [], [], [1], bar=False, dmas=False, prefetch=False)
    return o

def epilogue(u):
    o = []; a = o.append
    tmp = vS(0, u)
    pk = vP(0, u)
    a(valu('v_add_f32', vL[u][0], vL[u][0], vL[u][1]))
    a(valu('v_mov_b32', vT[0], vL[u][0]))
    a(nop(1))
    a(valu('v_permlane32_swap_b32', vT[0], vL[u][0]))
    a(valu('v_add_f32', vT[0], vT[0], vL[u][0]))
    a(valu('v_mov_b32', vT[2], hexs(f2u(2.0 ** 100))))
    a(vcmp('v_cmp_nle_f32', 'vcc', vT[0], vT[2]))
    a(valu('v_rcp_f32', vT[1], vT[0]))
    a(valu('v_mov_b32', vT[3], '0x7fc00000'))
    a(valu('v_cndmask_b32', vChk, vChk, vT[3]))
    for db in range(4):
        for r in range(16): a(accrd(tmp[r], aO(u, db)[r]))
        for r in range(16): a(valu('v_mul_f32', tmp[r], tmp[r], vT[1]))
        for r in range(8): a(valu('v_cvt_pk_bf16_f32', pk[r], tmp[2 * r], tmp[2 * r + 1]))
        for r in range(8): a(valu('v_dot2_f32_bf16', vChk, pk[r], vT[4], vChk))
        a(bstore(pk[0:4], vL16, srdWS, sQoff[u], (2 * db) * 1024 % 4096) if db < 2 else bstore(pk[0:4], vL16, srdWS, sTmp[u], (2 * db - 4) * 1024))
        a(bstore(pk[4:8], vL16, srdWS, sQoff[u], (2 * db + 1) * 1024) if db < 2 else bstore(pk[4:8], vL16, srdWS, sTmp[u], (2 * db - 3) * 1024))
    return o

def epi_offsets(u):
    o = []; a = o.append
    if u == 0: a(salu('s_lshl_b32', sTmp[2], sI, 2))
    else:
        a(salu('s_sub_u32', sTmp[2], 15, sI)); a(salu('s_lshl_b32', sTmp[2], sTmp[2], 2))
    a(salu('s_add_u32', sTmp[2], sTmp[2], sWV))
    a(salu('s_lshl_b32', sTmp[2], sTmp[2], 18))
    a(salu('s_lshl_b32', sTmp[3], sH, 13))
    a(salu('s_add_u32', sTmp[2], sTmp[2], sTmp[3]))
    a(salu('s_add_u32', sQoff[u], sTmp[2], hexs(WS_CTXB)))
    a(salu('s_add_u32', sTmp[u], sQoff[u], 4096))
    a(valu('v_mov_b32', vT[4], 0))
    return o

def mdiag():
    o = []; a = o.append
    a(valu('v_and_b32', vT[0], 31, vLane)); a(valu('v_lshrrev_b32', vT[1], 5, vLane)); a(valu('v_lshlrev_b32', vT[1], 2, vT[1]))
    a(valu('v_sub_u32', vT[0], vT[0], vT[1]))
    a(valu('v_mov_b32', vT[2], NEG_INF)); a(valu('v_mov_b32', vT[3], 0))
    for r in range(16):
        kk = 8 * (r >> 2) + (r & 3)
        a(vcmp('v_cmp_le_i32', 'vcc', kk, vT[0]))
        a(nop(1))
        a(valu('v_cndmask_b32', vMd[r], vT[2], vT[3]))
    return o

QP = qproj.QP(vLane=vLane, vXa=[V(4), V(5), V(6), V(7)], vWa=[V(16), V(17), V(18), V(19)], vXd=[V(20), V(21), V(22), V(23), V(24), V(25), V(26), V(27)],
              vWd=[V(28), V(29), V(30), V(31)], vT=vT, vXb=[V(112 - 16 + 0 + 0 + 0 + 0), None, None, None], srdX=srdX, srdW=srdW, sXoff=sXoff, sWoff=sWoff,
              sXlds=sXlds, sWlds=sWlds, sWV=sWV, sH=sH, sI=sI, sTmp=sTmp, sScale=sScale, vQ=aQ)
QP.vXb = [V(32), V(33), V(34), V(35)]

def prologue_setup(ST=None):
    o = []; a = o.append
    a(salu('s_cmp_ge_u32', None, sWG, 256)); a(branch('s_cbranch_scc1', 'L_b_end'))
    a(raw("s_load_dwordx2 s[20:21], s[0:1], 88", wr=['s20', 's21']))
    a(raw("s_load_dwordx2 s[44:45], s[0:1], 24", wr=['s44', 's45']))
    a(raw("s_load_dwordx2 s[46:47], s[0:1], 40", wr=['s46', 's47']))
    a(salu('s_and_b32', sH, sWG, 7)); a(salu('s_lshr_b32', sTmp[0], sWG, 3)); a(salu('s_and_b32', sTmp[0], sTmp[0], 3))
    a(salu('s_lshl_b32', sTmp[0], sTmp[0], 3)); a(salu('s_add_u32', sH, sH, sTmp[0]))
    a(salu('s_lshr_b32', sI, sWG, 5))
    a(valu('v_lshrrev_b32', vT[0], 6, V(0))); a(valu('v_and_b32', vLane, 63, V(0))); a(nop(0))
    a(valu('v_readfirstlane_b32', sWV, vT[0]))
    a(valu('v_lshlrev_b32', vL16, 4, vLane))
    a(nop(2))
    o += QP.setup_early()
    a(raw("s_waitcnt lgkmcnt(0)", kind='waitlgkm0'))
    o += set_srd(srdX, sPX, 2 * MB) + set_srd(srdW, sPW, 4 * MB)
    o += QP.first_dmas()
    o += QP.setup_late()
    a(salu('s_lshl_b32', sTmp[0], sWV, 11))
    a(valu('v_add_u32', vD, sTmp[0], vL16))
    o += set_srd(srdWS, sWSP, WS_USED)
    a(salu('s_lshl_b32', sTmp[0], sI, 2)); a(salu('s_sub_u32', sNb, 64, sTmp[0]))
    for srd, reg in ((srdK, WS_KB), (srdV, WS_VB)):
        a(salu('s_lshl_b32', sTmp[0], sH, 19)); a(salu('s_add_u32', sTmp[0], sTmp[0], hexs(reg)))
        a(salu('s_add_u32', srd[0], sWSP[0], sTmp[0])); a(salu('s_addc_u32', srd[1], sWSP[1], 0))
        a(salu('s_and_b32', srd[1], srd[1], '0xffff'))
        a(salu('s_lshl_b32', srd[2], sNb, 13)); a(salu('s_mov_b32', srd[3], '0x20000'))
    a(salu('s_mov_b32', sMode, 0))
    o += ring_scalars()
    kv1 = dma_k(False, 0, ('K', 0)) + dma_k(False, 1, ('K', 1)) + dma_k(False, 2, ('K', 2)) + dma_v(False, 0, ('V', 0)) + \
          dma_k(False, 3, ('K', 3)) + dma_v(False, 1, ('V', 1)) + dma_v(False, 2, ('V', 2)) + dma_v(False, 3, ('V', 3))
    kv2 = dma_k(True, 0, ('K', 4)) + dma_k(True, 1, ('K', 5))
    o += QP.run(kv1, kv2, ST)
    o += mdiag()
    a(branch('s_branch', 'L_b_start2'))
    return o

def ring_scalars():
    o = []; a = o.append
    a(salu('s_lshl_b32', sTmp[0], sWV, 11))
    a(salu('s_mov_b32', sKa, sTmp[0])); a(salu('s_add_u32', sKb, sKa, '0x8000'))
    a(salu('s_add_u32', sVa, sKa, hexs(VRING))); a(salu('s_add_u32', sVb, sVa, '0x8000'))
    a(salu('s_mov_b32', sKoff, 0)); a(salu('s_mov_b32', sVoff, 0))
    return o

def start_safe():
    o = [label('L_b_start')]
    o += ring_scalars()
    o += dma_k(False, 0, ('K', 0)) + dma_k(False, 1, ('K', 1)) + dma_k(False, 2, ('K', 2)) + dma_v(False, 0, ('V', 0)) + dma_k(False, 3, ('K', 3)) + dma_v(False, 1, ('V', 1))
    o += dma_v(False, 2, ('V', 2)) + dma_v(False, 3, ('V', 3)) + dma_k(True, 0, ('K', 4)) + dma_k(True, 1, ('K', 5))
    return o

def start():
    o = []; a = o.append
    a(label('L_b_start2'))
    a(valu('v_mov_b32', vKa, vL16)); a(valu('v_add_u32', vKb, '0x8000', vL16))
    a(valu('v_add_u32', vVa, hexs(VRING), vL16)); a(valu('v_add_u32', vVb, '0x8000', vVa))
    a(valu('v_mov_b32', vT[0], 0)); a(valu('v_mov_b32', vT[1], hexs(FLAG)))
    for u in range(2):
        for x in vL[u]: a(valu('v_mov_b32', x, 0))
    a(valu('v_mov_b32', vChk, 0))
    a(ds_write('ds_write_b32', vT[1], vT[0]))
    a(waitvm(need=[('K', 0)])); a(waitlgkm0()); a(barrier())
    for s in range(8): a(k_read(s, False, 0))
    for s in range(8):
        for u in range(2):
            a(mfma32(vS(0, u), aK(s), aQ(u, s), 0 if s == 0 else vS(0, u)))
    a(nop(7)); a(nop(3))
    l1 = newlabel('p')
    a(salu('s_or_b32', sTmp[0], sI, sWV)); a(salu('s_cmp_lg_u32', None, sTmp[0], 0)); a(branch('s_cbranch_scc1', l1))
    for r in range(16): a(valu('v_add_f32', vS(0, 0)[r], vS(0, 0)[r], vMd[r]))
    a(label(l1))
    l2 = newlabel('p')
    a(salu('s_cmp_lg_u32', None, sMode, 0)); a(branch('s_cbranch_scc1', l2))
    for u in range(2):
        s_ = vS(0, u)
        a(valu('v_max3_f32', vM[u], s_[0], s_[1], s_[2]))
        for r in range(3, 15, 2): a(valu('v_max3_f32', vM[u], vM[u], s_[r], s_[r + 1]))
        a(valu('v_max_f32', vM[u], vM[u], s_[15]))
        a(valu('v_mov_b32', vT[u], vM[u]))
        a(nop(1))
        a(valu('v_permlane32_swap_b32', vT[u], vM[u]))
        a(valu('v_max_f32', vM[u], vM[u], vT[u]))
    a(label(l2))
    for u in range(2):
        for r in range(16): a(valu('v_sub_f32', vS(0, u)[r], vS(0, u)[r], vM[u]))
        for r in range(16): a(valu('v_sub_f32', vC(u)[r], 0, vM[u]))
    return o

def gen(opts=None):
    opts = opts or {}
    prof = bool(int(opts.get('prof', 0)))
    ST = Stamps(60, prof, 1)
    _lab[0] = 0
    pro = ST.stamp(real=True) + ST.stamp() + prologue_setup(ST)
    st0 = start_safe()
    st = start() + ST.stamp()
    F  = body('L_b_F', True, 'full', 'full')
    FM = body('L_b_FM', True, 'mask', 'full')
    D  = body('L_b_D', False, 'full', 'full')
    DM = body('L_b_DM', False, 'mask', 'full')
    TD = body('L_b_TD', False, 'drain', 'full')
    TDM = body('L_b_TDM', False, 'drain', 'mask')
    SF = body('L_b_SF', False, 'off', 'full')
    SM_ = body('L_b_SM', False, 'off', 'mask')
    TL = tail()
    e0a = epi_offsets(0) + epilogue(0); e0b = epi_offsets(0) + epilogue(0)
    e1 = epi_offsets(1) + epilogue(1)
    g_sel = [salu('s_cmp_eq_u32', None, sI, 0), branch('s_cbranch_scc1', 'L_b_FM')]
    g_F = [salu('s_sub_u32', sCnt, sI, 1), salu('s_cmp_eq_u32', None, sCnt, 0), branch('s_cbranch_scc1', 'L_b_DM')]
    g_D = [salu('s_sub_u32', sCnt, sCnt, 1), salu('s_cmp_lg_u32', None, sCnt, 0), branch('s_cbranch_scc1', 'L_b_D')]
    g_DM = [salu('s_cmp_eq_u32', None, sI, 7), branch('s_cbranch_scc1', 'L_b_TDM'), branch('s_branch', 'L_b_TD')]
    g_FM = []
    g_TD_post = [salu('s_lshl_b32', sCnt, sI, 1), salu('s_sub_u32', sCnt, 13, sCnt)]
    g_SF = [salu('s_sub_u32', sCnt, sCnt, 1), salu('s_cmp_lg_u32', None, sCnt, 0), branch('s_cbranch_scc1', 'L_b_SF')]
    g_SM = [branch('s_branch', 'L_b_tail')]
    chk = []; a = chk.append
    a(vcmp('v_cmp_u_f32', 'vcc', vChk, vChk))
    a(valu('v_mov_b32', vT[1], hexs(FLAG))); a(valu('v_mov_b32', vT[0], 1))
    lf = newlabel('f')
    a(nop(2))
    a(branch('s_cbranch_vccz', lf))
    a(ds_write('ds_write_b32', vT[1], vT[0]))
    a(label(lf))
    a(waitlgkm0()); a(barrier())
    a(ds_read('ds_read_b32', vT[2], vT[1]))
    a(valu('v_readfirstlane_b32', sTmp[0], vT[2]))
    a(salu('s_or_b32', sTmp[1], sMode, 0))
    a(salu('s_cmp_eq_u32', None, sTmp[0], 0)); a(branch('s_cbranch_scc1', 'L_b_fin'))
    a(salu('s_cmp_lg_u32', None, sMode, 0)); a(branch('s_cbranch_scc1', 'L_b_fin'))
    safe = maxpass()
    sD = ST.stamp(); sS = ST.stamp()
    mid = ST.stamp()
    mid2 = ST.stamp()
    fin = [label('L_b_fin')] + ([waitvm(n=0)] if prof else []) + ST.stamp() + ST.stamp(real=True) + ST.flush(sWG, sWV, sWSP, srdK, vT[0], vT[1], sTmp[0]) + [label('L_b_end')]
    e0a = sD + e0a + sS; e0b = [Ins(x.text, x.kind, x.rd, x.wr) for x in sD] + e0b + [Ins(x.text, x.kind, x.rd, x.wr) for x in sS]
    code = pro + st0 + st + g_sel + F + g_F + D + g_D + DM + g_DM + FM + TD + e0a + g_TD_post + SF + g_SF + SM_ + g_SM + TDM + e0b + TL + mid + e1 + mid2 + chk + safe + fin
    def tr(seq):
        out = []
        for seg, m in seq: out += T(seg, m=m)
        return out
    traces = []
    for i in (0, 1, 2, 3, 6, 7):
        seq = [(pro, 0), (st, 0), (g_sel, 0)]
        if i == 0: seq += [(FM, 0)]
        else:
            seq += [(F, 0), (g_F, 0)]
            for m in range(1, i): seq += [(D, m), (g_D, m)]
            seq += [(DM, i), (g_DM, i)]
        if i == 7: seq += [(TDM, 8), (e0b, 8)]
        else:
            seq += [(TD, i + 1), (e0a, i + 1), (g_TD_post, i + 1)]
            for m in range(i + 2, 15 - i): seq += [(SF, m), (g_SF, m)]
            seq += [(SM_, 15 - i), (g_SM, 15 - i)]
        seq += [(TL, 16 - i), (mid, 0), (e1, 0), (mid2, 0), (chk, 0), (safe, 0), (st0, 0), (st, 0), (g_sel, 0), (F, 0)]
        traces.append(tr(seq))
    resolve_waits(traces)
    fix_hazards(traces, name='battn', verbose=bool(int(opts.get('verbose', 0))))
    return render(code)

def maxpass():
    o = []; a = o.append
    a(label('L_b_safe'))
    a(waitvm(n=0)); a(waitlgkm0()); a(barrier())
    for u in range(2): a(valu('v_mov_b32', vM[u], NEG_INF))
    a(salu('s_mov_b32', sKoff, 0)); a(salu('s_mov_b32', sCnt, 0))
    a(salu('s_lshl_b32', sKa, sWV, 11))
    a(salu('s_lshl_b32', sTmp[2], sI, 2)); a(salu('s_add_u32', sTmp[2], sTmp[2], sWV))
    a(salu('s_sub_u32', sTmp[3], 15, sI)); a(salu('s_lshl_b32', sTmp[3], sTmp[3], 2)); a(salu('s_add_u32', sTmp[3], sTmp[3], sWV))
    a(valu('v_mov_b32', vKa, vL16))
    a(label('L_b_safe_loop'))
    o += dma_k(False, 0, ('KS', 0))
    a(waitvm(n=0)); a(barrier())
    for s in range(8): a(k_read(s, False, 0))
    for u in range(2):
        lskip, ldiag, ljoin = newlabel('s'), newlabel('s'), newlabel('s')
        rb = sTmp[2 + u]; s_ = vS(0, u)
        a(salu('s_cmp_gt_u32', None, sCnt, rb)); a(branch('s_cbranch_scc1', lskip))
        for s in range(8): a(mfma32(s_, aK(s), aQ(u, s), 0 if s == 0 else s_))
        a(nop(7)); a(nop(3))
        a(salu('s_cmp_lg_u32', None, sCnt, rb)); a(branch('s_cbranch_scc1', ljoin))
        for r in range(16): a(valu('v_add_f32', s_[r], s_[r], vMd[r]))
        a(label(ljoin))
        for r in range(0, 16, 2): a(valu('v_max3_f32', vM[u], vM[u], s_[r], s_[r + 1]))
        a(label(lskip))
    a(waitlgkm0()); a(barrier())
    a(salu('s_add_u32', sCnt, sCnt, 1)); a(salu('s_cmp_lt_u32', None, sCnt, sNb)); a(branch('s_cbranch_scc1', 'L_b_safe_loop'))
    for u in range(2):
        a(valu('v_mov_b32', vT[u], vM[u])); a(nop(1))
        a(valu('v_permlane32_swap_b32', vT[u], vM[u]))
        a(valu('v_max_f32', vM[u], vM[u], vT[u]))
    a(salu('s_mov_b32', sMode, 1))
    a(branch('s_branch', 'L_b_start'))
    return o

if __name__ == '__main__':
    t = gen({'verbose': 1})
    print(len(t.splitlines()))
```

```python
from common import *

NAME = "proj_kernel"
LDS_BYTES = 163840
XSLOT = [0, 32768, 65536]
WBASE = 98304
WSLOT = [WBASE + 16384 * i for i in range(4)]
NOSTORE = False

sWG = S(2)
PN = ['A_x', 'A_wqkv', 'A_wo', 'B_x', 'B_c_kv', 'B_w_q', 'B_w_uk', 'B_w_uv', 'B_w_o']
sPTR = {k: S(20 + 2 * i, 2) for i, k in enumerate(PN)}
sWSP = S(38, 2)
srdX, srdW, srdWS, srdT = S(8, 4), S(12, 4), S(16, 4), S(4, 4)
sG, sH, sWV = S(40), S(41), S(42)
sXoff, sWoff = S(43), S(44)
sXlds, sWlds = S(45), S(46)
sSt = S(47, 4)
sSt2 = S(60, 4) if False else S(52, 1)
sTmp = S(52, 4)
sScale = S(56, 2)
sU = S(58)
vXa = [V(1 + i) for i in range(4)]
vWa = [V(5 + i) for i in range(4)]
vXd = [V(9 + i) for i in range(8)]
vWd = [V(17 + i) for i in range(4)]
vL16 = V(21)
vT = [V(22 + i) for i in range(5)]
vLane = V(27)
vXb = [V(28 + i) for i in range(4)]
def hold(b): return V(32 + 8 * b, 8)
vWf = [V(96, 16), V(112, 16)]
def acc(nb, tb): return V(128 + (nb * 2 + tb) * 16, 16)
def xfrag(st, tb, ks): return A(((st * 2 + tb) * 4 + ks) * 4, 4)

def ids():
    o = []; a = o.append
    a(salu('s_and_b32', sTmp[0], sWG, 7)); a(salu('s_lshr_b32', sTmp[1], sWG, 3))
    a(salu('s_and_b32', sG, sTmp[0], 1)); a(salu('s_lshl_b32', sG, sG, 2))
    a(salu('s_and_b32', sTmp[2], sTmp[1], 3)); a(salu('s_add_u32', sG, sG, sTmp[2]))
    a(salu('s_lshr_b32', sH, sTmp[0], 1)); a(salu('s_lshl_b32', sH, sH, 3))
    a(salu('s_lshr_b32', sTmp[2], sTmp[1], 2)); a(salu('s_add_u32', sH, sH, sTmp[2]))
    a(valu('v_lshrrev_b32', vT[0], 6, V(0))); a(valu('v_and_b32', vLane, 63, V(0))); a(nop(0))
    a(valu('v_readfirstlane_b32', sWV, vT[0]))
    return o
def x_dma_voff():
    o = []; a = o.append; l = vLane
    a(valu('v_lshrrev_b32', vT[0], 3, l)); a(valu('v_lshlrev_b32', vT[0], 10, vT[0]))
    a(valu('v_and_b32', vT[1], 7, l)); a(valu('v_lshrrev_b32', vT[2], 4, l))
    for p_ in range(8):
        a(valu('v_add_u32', vT[3], 4 * (p_ & 1), vT[2])); a(valu('v_xor_b32', vT[3], vT[3], vT[1]))
        a(valu('v_lshl_add_u32', vT[3], vT[3], 4, vT[0]))
        a(valu('v_add_u32', vXd[p_], hexs(p_ * 8192 - (p_ & 3) * 1024), vT[3]))
    return o
def w_dma_voff(NB, rowstride):
    o = []; a = o.append; l = vLane
    if NB == 4:
        a(valu('v_lshrrev_b32', vT[0], 4, l)); a(valu('v_lshlrev_b32', vT[1], 2, vT[0])); a(valu('v_and_b32', vT[2], 15, l))
        a(valu('v_xor_b32', vT[1], vT[1], vT[2])); a(valu('v_mul_u32_u24', vT[0], hexs(rowstride), vT[0])); a(valu('v_lshl_add_u32', vT[0], vT[1], 4, vT[0]))
        for q in range(4): a(valu('v_add_u32', vWd[q], hexs(q * (4 * rowstride - 1024)), vT[0]))
    else:
        a(valu('v_lshrrev_b32', vT[0], 3, l)); a(valu('v_bfe_u32', vT[1], l, 4, 1)); a(valu('v_lshlrev_b32', vT[1], 2, vT[1]))
        a(valu('v_and_b32', vT[2], 7, l)); a(valu('v_xor_b32', vT[1], vT[1], vT[2]))
        a(valu('v_mul_u32_u24', vT[0], hexs(rowstride), vT[0])); a(valu('v_lshl_add_u32', vT[0], vT[1], 4, vT[0]))
        for q in range(2): a(valu('v_add_u32', vWd[q], hexs(q * (8 * rowstride - 1024)), vT[0]))
    return o
def x_read_addr():
    o = []; a = o.append; l = vLane
    a(valu('v_and_b32', vT[0], 31, l)); a(valu('v_lshrrev_b32', vT[1], 5, l)); a(valu('v_bfe_u32', vT[2], vT[0], 1, 3))
    a(valu('v_lshlrev_b32', vT[3], 7, vT[0])); a(valu('v_add_u32', vT[3], sXlds, vT[3]))
    for ks in range(4):
        a(valu('v_add_u32', vT[4], 2 * ks, vT[1])); a(valu('v_xor_b32', vT[4], vT[4], vT[2]))
        a(valu('v_lshl_add_u32', vXa[ks], vT[4], 4, vT[3])); a(valu('v_add_u32', vXb[ks], '0x10000', vXa[ks]))
    return o
def w_read_addr(NB, perm=False, dst=None):
    dst = dst or vWa
    o = []; a = o.append; l = vLane
    a(valu('v_and_b32', vT[0], 15, l)); a(valu('v_lshrrev_b32', vT[1], 2, vT[0])); a(valu('v_lshrrev_b32', vT[2], 5, l))
    a(valu('v_lshl_add_u32', vT[2], vT[2], 2 if perm else 3, vT[1])); a(valu('v_lshlrev_b32', vT[2], 8 if NB == 4 else 7, vT[2]))
    a(valu('v_bfe_u32', vT[3], l, 4, 1)); a(valu('v_lshl_add_u32', vT[2], vT[3], 5, vT[2]))
    a(valu('v_and_b32', vT[3], 3, vT[0])); a(valu('v_lshl_add_u32', vT[2], vT[3], 3, vT[2]))
    a(valu('v_add_u32', vT[2], hexs(WBASE), vT[2]))
    if NB == 2: a(valu('v_lshrrev_b32', vT[1], 1, vT[1]))
    for nb in range(NB):
        a(valu('v_xor_b32', vT[3], nb, vT[1])); a(valu('v_lshl_add_u32', dst[nb], vT[3], 6, vT[2]))
    return o

def touches():
    o = []; a = o.append
    a(valu('v_lshlrev_b32', vT[4], 7, V(0)))
    for name, size in (('B_w_uv', 4 * MB), ('A_x', 2 * MB), ('A_wqkv', 512 * 3072), ('B_x', 2 * MB), ('B_w_q', 4 * MB), ('B_w_o', 4 * MB), ('A_wo', 512 * 1024)):
        per = size // 256
        a(salu('s_mul_i32', sTmp[0], sWG, hexs(per)))
        a(salu('s_add_u32', srdT[0], sPTR[name][0], sTmp[0])); a(salu('s_addc_u32', srdT[1], sPTR[name][1], 0))
        a(salu('s_and_b32', srdT[1], srdT[1], '0xffff')); a(salu('s_mov_b32', srdT[2], hexs(per))); a(salu('s_mov_b32', srdT[3], '0x20000'))
        a(bload(V(95), vT[4], srdT, 0, 0, op='buffer_load_dword'))
    return o

class Pass:
    def __init__(s, name, t0, NB, typ, scale):
        s.name, s.t0, s.NB, s.typ, s.scale = name, t0, NB, typ, scale

def x_dma(xi):
    slot = XSLOT[xi % 3]; out = []
    for p_ in range(8):
        if p_ % 4 == 0: out.append(salu('s_add_u32', 'm0', sXlds, hexs(slot + (p_ >> 2) * 4096)))
        out.append(dma(vXd[p_], srdX, sXoff, (p_ & 3) * 1024, tag=('X', xi)))
    out.append(salu('s_add_u32', sXoff, sXoff, 128))
    return out
def w_dma(t, NB, rowstride):
    slot = WSLOT[t % 4]; out = []
    if NB == 4:
        out.append(salu('s_add_u32', 'm0', sWlds, hexs(slot)))
        for q in range(4): out.append(dma(vWd[q], srdW, sWoff, q * 1024, tag=('W', t)))
    else:
        out.append(salu('s_lshr_b32', sTmp[3], sWlds, 1)); out.append(salu('s_add_u32', 'm0', sTmp[3], hexs(slot)))
        for q in range(2): out.append(dma(vWd[q], srdW, sWoff, q * 1024, tag=('W', t)))
    out.append(salu('s_add_u32', sWoff, sWoff, hexs(64 * rowstride)))
    return out
def x_reads(st, xi):
    slot = xi % 3; out = []
    for tb in range(2):
        for ks in range(4):
            addr = vXa[ks] if slot < 2 else vXb[ks]
            out.append(ds_read('ds_read_b128', xfrag(st, tb, ks), addr, (XSLOT[slot] if slot < 2 else 0) + tb * 4096))
    return out
def w_reads(t, nb, NB):
    buf = vWf[nb & 1]; rowb = 256 if NB == 4 else 128; out = []
    for ks in range(4):
        for r2 in range(2):
            out.append(ds_read('ds_read_b64_tr_b16', buf[4 * ks + 2 * r2: 4 * ks + 2 * r2 + 2], vWa[nb], (t % 4) * 16384 + (16 * ks + 4 * r2) * rowb))
    return out
def switch_x(name): return set_srd(srdX, sPTR[name], 2 * MB) + [salu('s_sub_u32', sXoff, sXoff, 1024)]
def switch_w(name, first): return set_srd(srdW, sPTR[name], 4 * MB if name != 'A_wqkv' else 512 * 3072) + first

def cvt_block(ps, nb, tb):
    b = nb * 2 + tb; ac = acc(nb, tb); pk = hold(b); out = []
    if ps.scale:
        for i in range(8): out.append(valu('v_pk_mul_f32', ac[2 * i:2 * i + 2], ac[2 * i:2 * i + 2], sScale))
    for i in range(8): out.append(valu('v_cvt_pk_bf16_f32', pk[i], ac[2 * i], ac[2 * i + 1]))
    return out
def store_block(ps, nb, tb, flags, vSt=None):
    if NOSTORE: return []
    b = nb * 2 + tb; pk = hold(b); out = []
    if ps.name == 'K':
        so = sSt[tb * 2 + (nb >> 1)]
        out += [bstore(pk[0:4], vL16, srdWS, so, (nb & 1) * 2048, flags=flags), bstore(pk[4:8], vL16, srdWS, so, (nb & 1) * 2048 + 1024, flags=flags)]
    elif ps.name == 'V':
        out += [bstore(pk[0:4], vL16, srdWS, sSt[tb * 2 + 0], nb * 1024, flags=flags), bstore(pk[4:8], vL16, srdWS, sSt[tb * 2 + 1], nb * 1024, flags=flags)]
    elif ps.name == 'AQK':
        out += [salu('s_add_u32', sTmp[0], sSt[tb], hexs((2 * nb) * 65536)), bstore(pk[0:4], vL16, srdWS, sTmp[0], 0, flags=flags),
                salu('s_add_u32', sTmp[1], sSt[tb], hexs((2 * nb + 1) * 65536)), bstore(pk[4:8], vL16, srdWS, sTmp[1], 0, flags=flags)]
    elif ps.name == 'AV':
        out += [salu('s_add_u32', sTmp[0], sSt[tb], hexs((2 * nb) * 65536)), bstore(pk[0:4], vSt, srdWS, sTmp[0], 0, flags=flags), bstore(pk[4:8], vSt, srdWS, sTmp[0], 512, flags=flags)]
    return out
def epi_setup(ps):
    o = []; a = o.append
    a(salu('s_lshl_b32', sTmp[0], sG, 3)); a(salu('s_lshl_b32', sTmp[1], sWV, 1)); a(salu('s_add_u32', sTmp[0], sTmp[0], sTmp[1]))
    if ps.name in ('K', 'V'):
        base = {'K': WS_KB, 'V': WS_VB}[ps.name]
        a(salu('s_lshl_b32', sTmp[1], sH, 6)); a(salu('s_add_u32', sTmp[0], sTmp[0], sTmp[1])); a(salu('s_lshl_b32', sTmp[0], sTmp[0], 13))
        a(salu('s_add_u32', sSt[0], sTmp[0], hexs(base))); a(salu('s_add_u32', sSt[1], sSt[0], 4096))
        a(salu('s_add_u32', sSt[2], sSt[0], 8192)); a(salu('s_add_u32', sSt[3], sSt[0], 8192 + 4096))
    else:
        a(salu('s_lshr_b32', sTmp[1], sH, 3)); a(salu('s_lshl_b32', sTmp[1], sTmp[1], 21))
        a(salu('s_and_b32', sTmp[2], sH, 7)); a(salu('s_lshl_b32', sTmp[2], sTmp[2], 18)); a(salu('s_add_u32', sTmp[1], sTmp[1], sTmp[2]))
        a(salu('s_lshl_b32', sTmp[0], sTmp[0], 10)); a(salu('s_add_u32', sTmp[0], sTmp[0], sTmp[1]))
        a(salu('s_add_u32', sSt[0], sTmp[0], hexs(WS_QA))); a(salu('s_add_u32', sSt[1], sSt[0], 1024))
    if ps.scale: a(s_mov(sScale[0], f2u(ps.scale))); a(s_mov(sScale[1], f2u(ps.scale)))
    return o

def gen(store_flags="", prof=False, touch=True):
    ST = Stamps(60, prof, 0)
    K = Pass('K', 0, 4, 'K', None); Vp = Pass('V', 8, 4, 'V', None)
    variants = {'AQ': Pass('AQK', 16, 2, 'K', C_A), 'AK': Pass('AQK', 16, 2, 'K', None), 'AV': Pass('AV', 16, 2, 'V', None)}
    LAST = 23
    def rowstride(t): return 8192 if t < 16 else 3072
    def NBof(t): return 4 if t < 16 else 2
    def xi_of(t): return t if t < 8 else (None if t < 16 else t - 8)
    def t_of_xi(xi): return xi if xi < 8 else xi + 8
    gaps = {}
    def G(t, g):
        n = NBof(t) * 8
        while g >= n: g -= n; t += 1; n = NBof(t) * 8
        return gaps.setdefault((t, g), [])
    def spread(t, ins, g0, g1):
        if not ins: return
        per = (len(ins) + (g1 - g0) - 1) // (g1 - g0)
        for i, x in enumerate(ins): G(t, g0 + i // per).append(x)
    def mfmas(ps, t):
        st = t - ps.t0; out = []
        for nb in range(ps.NB):
            for tb in range(2):
                for ks in range(4):
                    wf = vWf[nb & 1][4 * ks:4 * ks + 4]; xf = xfrag(st, tb, ks)
                    c = 0 if (st == 0 and ks == 0) else acc(nb, tb)
                    out.append(mfma32(acc(nb, tb), wf, xf, c) if ps.typ == 'K' else mfma32(acc(nb, tb), xf, wf, c))
        return out
    def common_fill(ps, t):
        NB = ps.NB; n = NB * 8
        for nb in range(NB):
            if nb + 1 < NB: rs = w_reads(t, nb + 1, NB)
            elif t + 1 <= LAST: rs = w_reads(t + 1, 0, NBof(t + 1))
            else: rs = []
            for i, r in enumerate(rs): G(t, 8 * nb + i).append(r)
        bar = n - 9
        if t + 1 <= LAST: G(t, bar).append(waitvm(need=[('W', t + 1)])); G(t, bar).append(barrier())
        wins = []
        if t + 3 <= LAST:
            pre = []
            if t + 3 == 8: pre = switch_w('B_w_uv', [salu('s_sub_u32', sWoff, sWoff, hexs(512 * 8192))])
            if t + 3 == 16:
                pre = switch_w('A_wqkv', [salu('s_lshl_b32', sWoff, sH, 7), salu('s_mul_i32', sTmp[2], sWV, 16 * 3072), salu('s_add_u32', sWoff, sWoff, sTmp[2])])
                pre += w_dma_voff(2, 3072)
            wins = pre + w_dma(t + 3, NBof(t + 3), rowstride(t + 3))
        xin = xi_of(t + 1) if t + 1 <= LAST else None
        if xin is not None:
            g0 = n - 10
            G(t, g0).append(waitvm(need=[('X', xin)]))
            for i, r in enumerate(x_reads((t + 1) % 8, xin)): G(t, g0 + i).append(r)
        xi = xi_of(t); xins = []
        if xi is not None and xi + 3 <= 15:
            xins = (switch_x('A_x') if xi + 3 == 8 else []) + x_dma(xi + 3)
        if NB == 4: spread(t, xins, 8, bar); spread(t, wins, bar + 1, n)
        else: spread(t, wins + xins, bar + 1, n)

    for ps in (K, Vp):
        for t in range(ps.t0, ps.t0 + 8): common_fill(ps, t)
    spread(7, epi_setup(K), 1, 5)
    for nb in range(4):
        for tb in range(2):
            b = nb * 2 + tb
            ins = cvt_block(K, nb, tb)
            for i, x in enumerate(ins): G(7, 4 * b + 7 + i // 2).append(x)
            for i, x in enumerate(store_block(K, nb, tb, store_flags)): G(8 + b, (9 if b == 0 else 3) + 6 * i).append(x)
    spread(15, epi_setup(Vp), 11, 15)
    vcvt = []
    for nb in range(4):
        for tb in range(2):
            b = nb * 2 + tb
            for i, x in enumerate(cvt_block(Vp, nb, tb)): vcvt.append((4 * b + 7 + i // 2, x))
    for g, x in vcvt:
        if g < 32: G(15, g).append(x)
    ar = w_read_addr(2, dst=[vWa[0], vT[4]])
    spread(15, ar, 16, 23)
    G(15, 23).append(valu('v_mov_b32', vWa[1], vT[4]))

    pro = ST.stamp(real=True) + ST.stamp()
    a = pro.append
    a(salu('s_cmp_ge_u32', None, sWG, 256)); a(branch('s_cbranch_scc1', 'L_proj_end'))
    a(raw("s_load_dwordx16 s[20:35], s[0:1], 0", wr=[f"s{i}" for i in range(20, 36)]))
    a(raw("s_load_dwordx2 s[36:37], s[0:1], 64", wr=['s36', 's37']))
    a(raw("s_load_dwordx2 s[38:39], s[0:1], 88", wr=['s38', 's39']))
    pro += ids() + x_dma_voff() + w_dma_voff(4, 8192)
    a(salu('s_lshl_b32', sXlds, sWV, 13)); a(salu('s_lshl_b32', sWlds, sWV, 12))
    a(salu('s_lshl_b32', sXoff, sG, 18)); a(salu('s_lshl_b32', sTmp[0], sWV, 16)); a(salu('s_add_u32', sXoff, sXoff, sTmp[0]))
    a(salu('s_lshl_b32', sWoff, sH, 8)); a(salu('s_lshl_b32', sTmp[0], sWV, 17)); a(salu('s_add_u32', sWoff, sWoff, sTmp[0]))
    a(raw("s_waitcnt lgkmcnt(0)", kind='waitlgkm0'))
    pro += set_srd(srdX, sPTR['B_c_kv'], 2 * MB) + set_srd(srdW, sPTR['B_w_uk'], 4 * MB)
    start = x_dma(0) + w_dma(0, 4, 8192) + x_dma(1) + w_dma(1, 4, 8192) + x_dma(2) + w_dma(2, 4, 8192)
    if touch: start += touches()
    start += x_read_addr() + w_read_addr(4) + [valu('v_lshlrev_b32', vL16, 4, vLane)] + set_srd(srdWS, sWSP, WS_USED)
    start += [waitvm(need=[('X', 0), ('W', 0)]), barrier()] + x_reads(0, 0) + w_reads(0, 0, 4)
    main = []
    for ps in (K, Vp):
        for t in range(ps.t0, ps.t0 + 8):
            main.append(comment(f"stage {t} ({ps.name})"))
            if t in (0, 1, 2, 4, 8, 9, 10, 12): main += ST.stamp()
            for g, m in enumerate(mfmas(ps, t)): main.append(m); main += gaps.get((t, g), [])
    main = m0_peephole(main)
    def fresh(lst): return [Ins(x.text, x.kind, x.rd, x.wr) for x in lst]
    var_code = {}
    for vn, ps in variants.items():
        for k in [k for k in gaps if k[0] >= 16]: del gaps[k]
        for t in range(16, 24): common_fill(ps, t)
        for g, x in vcvt:
            if g >= 32:
                y = Ins(x.text, x.kind, x.rd, x.wr); G(16, g - 32).append(y)
        for nb in range(4):
            for tb in range(2):
                b = nb * 2 + tb
                t_ = 16 + min(b, 6) if b < 7 else 22
                for i, x in enumerate(store_block(Vp, nb, tb, store_flags)): G(16 + (b * 6) // 7, (8 if b == 0 else 2) + 3 * i + (6 if b == 7 else 0)).append(x)
        spread(23, epi_setup(ps), 1, 4)
        vSt = vXd[0]
        if ps.name == 'AV':
            l = vLane
            sv = [valu('v_bfe_u32', vT[0], l, 4, 1), valu('v_lshlrev_b32', vT[0], 16, vT[0]), valu('v_lshrrev_b32', vT[1], 5, l),
                  valu('v_lshl_add_u32', vT[0], vT[1], 8, vT[0]), valu('v_and_b32', vT[1], 15, l), valu('v_lshl_add_u32', vSt, vT[1], 4, vT[0])]
            spread(23, sv, 4, 7)
        tail = []
        for nb in range(2):
            for tb in range(2):
                b = nb * 2 + tb
                ins = cvt_block(ps, nb, tb) + store_block(ps, nb, tb, store_flags, vSt)
                for i, x in enumerate(ins):
                    g = 4 * b + 7 + i // 5
                    if g < 16: G(23, g).append(x)
                    else: tail.append(x)
        code = [label(f"L_proj_{vn}")]
        for t in range(16, 24):
            code.append(comment(f"stage {t} ({vn})"))
            for g, m in enumerate(mfmas(ps, t)): code.append(m); code += gaps.get((t, g), [])
        code = m0_peephole(code) + tail + [branch('s_branch', 'L_proj_fin')]
        var_code[vn] = code
    tr = [label("L_proj_TR")] + fresh([x for g, x in vcvt if g >= 32])
    for nb in range(4):
        for tb in range(2): tr += store_block(Vp, nb, tb, store_flags)
    tr += transpose_job(store_flags) + [branch('s_branch', 'L_proj_fin')]
    disp = ST.stamp() + [salu('s_cmp_ge_u32', None, sH, 24), branch('s_cbranch_scc1', 'L_proj_TR'),
            salu('s_cmp_ge_u32', None, sH, 16), branch('s_cbranch_scc1', 'L_proj_AV'),
            salu('s_cmp_ge_u32', None, sH, 8), branch('s_cbranch_scc1', 'L_proj_AK')]
    fin = [label('L_proj_fin')] + [waitvm(n=0)] * (1 if prof else 0) + ST.stamp() + ST.stamp(real=True) + ST.flush(sWG, sWV, sWSP, srdX, vT[0], vT[1], sTmp[0])
    head = pro + start + main + disp
    traces = [T(head + var_code[vn] + fin) for vn in ('AQ', 'AK', 'AV')] + [T(head + tr + fin)]
    resolve_waits(traces)
    fix_hazards(traces, name='proj', verbose=False)
    return render(head + var_code['AQ'] + var_code['AK'] + var_code['AV'] + tr + fin + [label('L_proj_end')])

def transpose_job(flags):
    o = []; a = o.append
    sIdx = sU
    a(waitvm(n=0)); a(waitlgkm0()); a(barrier())
    a(salu('s_lshl_b32', sIdx, sG, 3)); a(salu('s_add_u32', sIdx, sIdx, sH)); a(salu('s_sub_u32', sIdx, sIdx, 24))
    o += w_read_addr(4, perm=True) + w_dma_voff(4, 1024)
    o += set_srd(srdW, sPTR['B_w_o'], 4 * MB)
    a(salu('s_lshl_b32', sWoff, sIdx, 16)); a(salu('s_lshl_b32', sTmp[0], sWV, 14)); a(salu('s_add_u32', sWoff, sWoff, sTmp[0]))
    for nt in range(4):
        a(salu('s_add_u32', 'm0', sWlds, hexs(WSLOT[nt])))
        for q in range(4): a(dma(vWd[q], srdW, sWoff, q * 1024, tag=('TR', nt, q)))
        a(salu('s_add_u32', sWoff, sWoff, 256))
    o += set_srd(srdW, sPTR['A_wo'], 512 * 1024)
    a(salu('s_lshr_b32', sTmp[0], sIdx, 2)); a(salu('s_and_b32', sTmp[0], sTmp[0], 7)); a(salu('s_lshl_b32', sWoff, sTmp[0], 16))
    a(salu('s_and_b32', sTmp[1], sIdx, 3)); a(salu('s_lshl_b32', sTmp[1], sTmp[1], 8)); a(salu('s_add_u32', sWoff, sWoff, sTmp[1]))
    a(salu('s_lshl_b32', sTmp[0], sWV, 14)); a(salu('s_add_u32', sWoff, sWoff, sTmp[0]))
    a(salu('s_mov_b32', 'm0', sWlds))
    for q in range(4): a(dma(vWd[q], srdW, sWoff, q * 1024, tag=('TRA', q)))
    a(waitvm(n=0)); a(barrier())
    l = vLane
    a(valu('v_and_b32', vT[0], 15, l)); a(valu('v_lshrrev_b32', vT[1], 2, vT[0]))
    a(valu('v_xor_b32', vT[1], sWV, vT[1])); a(valu('v_lshlrev_b32', vT[1], 6, vT[1]))
    a(valu('v_lshrrev_b32', vT[2], 2, vT[0])); a(valu('v_lshlrev_b32', vT[2], 6, vT[2]))
    a(valu('v_sub_u32', vT[2], vWa[0], vT[2])); a(valu('v_add_u32', vT[3], vT[2], vT[1]))
    a(valu('v_subrev_u32', vT[4], hexs(WBASE), vT[3]))
    a(salu('s_lshl_b32', sTmp[0], sWV, 18)); a(salu('s_lshl_b32', sTmp[1], sIdx, 12)); a(salu('s_add_u32', sTmp[0], sTmp[0], sTmp[1]))
    a(salu('s_add_u32', sSt[0], sTmp[0], hexs(WS_WOB)))
    bufs = [V(128 + 16 * i, 16) for i in range(5)]
    for nt in range(4):
        for ks in range(4):
            for r2 in range(2):
                a(ds_read('ds_read_b64_tr_b16', bufs[nt][4 * ks + 2 * r2:4 * ks + 2 * r2 + 2], vT[3], nt * 16384 + (16 * ks + 8 * r2) * 256))
    for ks in range(4):
        for r2 in range(2):
            a(ds_read('ds_read_b64_tr_b16', bufs[4][4 * ks + 2 * r2:4 * ks + 2 * r2 + 2], vT[4], (16 * ks + 8 * r2) * 256))
    for nt in range(4):
        for ks in range(4): a(bstore(bufs[nt][4 * ks:4 * ks + 4], vL16, srdWS, sSt[0], ks * 1024, flags=flags))
        a(salu('s_add_u32', sSt[0], sSt[0], hexs(4 * 256 * 1024)))
    a(salu('s_cmp_ge_u32', None, sIdx, 32)); a(branch('s_cbranch_scc1', 'L_proj_fin'))
    a(salu('s_and_b32', sTmp[0], sIdx, 3)); a(salu('s_lshl_b32', sTmp[0], sTmp[0], 2)); a(salu('s_add_u32', sTmp[0], sTmp[0], sWV))
    a(salu('s_lshl_b32', sTmp[0], sTmp[0], 15)); a(salu('s_lshr_b32', sTmp[1], sIdx, 2)); a(salu('s_lshl_b32', sTmp[1], sTmp[1], 12))
    a(salu('s_add_u32', sTmp[0], sTmp[0], sTmp[1])); a(salu('s_add_u32', sSt[0], sTmp[0], hexs(WS_WOA)))
    for ks in range(4): a(bstore(bufs[4][4 * ks:4 * ks + 4], vL16, srdWS, sSt[0], ks * 1024, flags=flags))
    return o

if __name__ == "__main__":
    txt = gen(); print(len(txt.splitlines()), "lines")
```

```python
from common import *

XSLOT = [0, 32768, 65536]
WBASE = 98304
WSLOT = [WBASE + 16384 * i for i in range(4)]

class QP:
    def __init__(s, vLane, vXa, vWa, vXd, vWd, vT, vXb, srdX, srdW, sXoff, sWoff, sXlds, sWlds, sWV, sH, sI, sTmp, sScale, vQ):
        s.__dict__.update(locals())
    def acc(s, nb, u): return V(128 + (nb * 2 + u) * 16, 16)
    def wf(s, b): return V(96 + 16 * b, 16)
    def xf(s, par, u, ks): return A(((par * 2 + u) * 4 + ks) * 4, 4)

    def setup_early(s):
        o = []; a = o.append; l = s.vLane; vT = s.vT
        a(valu('v_lshrrev_b32', vT[0], 3, l)); a(valu('v_lshlrev_b32', vT[0], 10, vT[0]))
        a(valu('v_and_b32', vT[1], 7, l)); a(valu('v_lshrrev_b32', vT[2], 4, l))
        a(salu('s_lshl_b32', s.sTmp[0], s.sI, 17)); a(salu('s_lshl_b32', s.sTmp[1], s.sWV, 15)); a(salu('s_add_u32', s.sTmp[0], s.sTmp[0], s.sTmp[1]))
        a(salu('s_sub_u32', s.sTmp[2], 15, s.sI)); a(salu('s_lshl_b32', s.sTmp[2], s.sTmp[2], 17)); a(salu('s_add_u32', s.sTmp[2], s.sTmp[2], s.sTmp[1]))
        for p_ in range(8):
            a(valu('v_add_u32', vT[3], 4 * (p_ & 1), vT[2]))
            a(valu('v_xor_b32', vT[3], vT[3], vT[1]))
            a(valu('v_lshl_add_u32', vT[3], vT[3], 4, vT[0]))
            a(valu('v_add_u32', vT[3], hexs((p_ & 3) * 8192 - (p_ & 3) * 1024), vT[3]))
            a(valu('v_add_u32', s.vXd[p_], s.sTmp[0] if p_ < 4 else s.sTmp[2], vT[3]))
        a(valu('v_lshrrev_b32', vT[0], 4, l)); a(valu('v_lshlrev_b32', vT[1], 2, vT[0])); a(valu('v_and_b32', vT[2], 15, l))
        a(valu('v_xor_b32', vT[1], vT[1], vT[2])); a(valu('v_lshlrev_b32', vT[0], 13, vT[0])); a(valu('v_lshl_add_u32', vT[0], vT[1], 4, vT[0]))
        for q in range(4): a(valu('v_add_u32', s.vWd[q], hexs(q * (4 * 8192 - 1024)), vT[0]))
        a(salu('s_mov_b32', s.sXoff, 0))
        a(salu('s_lshl_b32', s.sWoff, s.sH, 8)); a(salu('s_lshl_b32', s.sTmp[0], s.sWV, 17)); a(salu('s_add_u32', s.sWoff, s.sWoff, s.sTmp[0]))
        a(salu('s_lshl_b32', s.sXlds, s.sWV, 13)); a(salu('s_lshl_b32', s.sWlds, s.sWV, 12))
        return o
    def setup_late(s):
        o = []; a = o.append; l = s.vLane; vT = s.vT
        a(valu('v_and_b32', vT[0], 31, l)); a(valu('v_lshrrev_b32', vT[1], 5, l)); a(valu('v_bfe_u32', vT[2], vT[0], 1, 3))
        a(valu('v_lshlrev_b32', vT[3], 7, vT[0])); a(valu('v_add_u32', vT[3], s.sXlds, vT[3]))
        for ks in range(4):
            a(valu('v_add_u32', vT[4], 2 * ks, vT[1])); a(valu('v_xor_b32', vT[4], vT[4], vT[2]))
            a(valu('v_lshl_add_u32', s.vXa[ks], vT[4], 4, vT[3]))
            a(valu('v_add_u32', s.vXb[ks], '0x10000', s.vXa[ks]))
        a(valu('v_and_b32', vT[0], 15, l)); a(valu('v_lshrrev_b32', vT[1], 2, vT[0])); a(valu('v_lshrrev_b32', vT[2], 5, l))
        a(valu('v_lshl_add_u32', vT[2], vT[2], 3, vT[1])); a(valu('v_lshlrev_b32', vT[2], 8, vT[2]))
        a(valu('v_bfe_u32', vT[3], l, 4, 1)); a(valu('v_lshl_add_u32', vT[2], vT[3], 5, vT[2]))
        a(valu('v_and_b32', vT[3], 3, vT[0])); a(valu('v_lshl_add_u32', vT[2], vT[3], 3, vT[2]))
        a(valu('v_add_u32', vT[2], hexs(WBASE), vT[2]))
        for nb in range(4):
            a(valu('v_xor_b32', vT[3], nb, vT[1])); a(valu('v_lshl_add_u32', s.vWa[nb], vT[3], 6, vT[2]))
        return o
    def x_dma(s, st):
        slot = XSLOT[st % 3]; out = []
        for p_ in range(8):
            if p_ % 4 == 0: out.append(salu('s_add_u32', 'm0', s.sXlds, hexs(slot + (p_ >> 2) * 4096)))
            out.append(dma(s.vXd[p_], s.srdX, s.sXoff, (p_ & 3) * 1024, tag=('QX', st)))
        out.append(salu('s_add_u32', s.sXoff, s.sXoff, 128))
        return out
    def w_dma(s, st):
        out = [salu('s_add_u32', 'm0', s.sWlds, hexs(WSLOT[st % 4]))]
        for q in range(4): out.append(dma(s.vWd[q], s.srdW, s.sWoff, q * 1024, tag=('QW', st)))
        out.append(salu('s_add_u32', s.sWoff, s.sWoff, hexs(64 * 8192)))
        return out
    def x_reads(s, st):
        slot = st % 3; out = []
        for u in range(2):
            for ks in range(4):
                addr = s.vXa[ks] if slot < 2 else s.vXb[ks]
                out.append(ds_read('ds_read_b128', s.xf(st & 1, u, ks), addr, (XSLOT[slot] if slot < 2 else 0) + u * 4096))
        return out
    def w_reads(s, st, nb):
        buf = s.wf(nb & 1); out = []
        for ks in range(4):
            for r2 in range(2):
                out.append(ds_read('ds_read_b64_tr_b16', buf[4 * ks + 2 * r2:4 * ks + 2 * r2 + 2], s.vWa[nb], (st % 4) * 16384 + (16 * ks + 4 * r2) * 256))
        return out
    def epi_block(s, nb, u):
        ac = s.acc(nb, u); out = []
        for i in range(8):
            dst = s.vQ(u, 2 * nb + (i >> 2))[i & 3]
            out.append(valu('v_cvt_pk_bf16_f32', dst, ac[2 * i], ac[2 * i + 1]))
        return out
    def first_dmas(s):
        return s.x_dma(0) + s.w_dma(0) + s.x_dma(1) + s.w_dma(1) + s.x_dma(2) + s.w_dma(2)
    def run(s, kv_after_b6, kv_after_end, ST=None):
        o = [waitvm(need=[('QX', 0), ('QW', 0)]), barrier()]
        o += s.x_reads(0) + s.w_reads(0, 0)
        gaps = {}
        def G(t, g):
            while g >= 32: g -= 32; t += 1
            return gaps.setdefault((t, g), [])
        def spread(t, ins, g0, g1):
            if not ins: return
            per = (len(ins) + (g1 - g0) - 1) // (g1 - g0)
            for i, x in enumerate(ins): G(t, g0 + i // per).append(x)
        for t in range(8):
            for nb in range(4):
                rs = s.w_reads(t, nb + 1) if nb < 3 else (s.w_reads(t + 1, 0) if t < 7 else [])
                for i, r in enumerate(rs): G(t, 8 * nb + i).append(r)
            if t < 7:
                G(t, 23).append(waitvm(need=[('QW', t + 1)])); G(t, 23).append(barrier())
                G(t, 22).append(waitvm(need=[('QX', t + 1)]))
                for i, r in enumerate(s.x_reads(t + 1)): G(t, 22 + i).append(r)
            if t + 3 < 8:
                spread(t, s.x_dma(t + 3), 8, 22); spread(t, s.w_dma(t + 3), 24, 32)
            if t == 6: spread(t, kv_after_b6[:len(kv_after_b6) // 2], 24, 32)
            if t == 7: spread(t, kv_after_b6[len(kv_after_b6) // 2:], 0, 12)
        tail = []
        for nb in range(4):
            for u in range(2):
                b = nb * 2 + u
                ins = s.epi_block(nb, u)
                g0 = 4 * b + 7; per = 2
                for i, x in enumerate(ins):
                    g = g0 + i // per
                    if g < 32: G(7, g).append(x)
                    else: tail.append(x)
        for t in range(8):
            o.append(comment(f"qproj stage {t}"))
            if ST is not None and t in (0, 1, 2, 4, 6, 7): o += ST.stamp()
            for nb in range(4):
                for u in range(2):
                    for ks in range(4):
                        g = nb * 8 + u * 4 + ks
                        c = 0 if (t == 0 and ks == 0) else s.acc(nb, u)
                        o.append(mfma32(s.acc(nb, u), s.wf(nb & 1)[4 * ks:4 * ks + 4], s.xf(t & 1, u, ks), c))
                        o += gaps.get((t, g), [])
        o = m0_peephole(o)
        if ST is not None: o += ST.stamp()
        o += [waitlgkm0(), barrier()] + kv_after_end + tail
        return o
```

```python
import re

class R:
    __slots__ = ('k', 'i', 'n')
    def __init__(self, k, i, n=1):
        self.k, self.i, self.n = k, i, n
        lim = {'v': 256, 'a': 256, 's': 102}[k]
        assert 0 <= i and i + n <= lim, (k, i, n)
    def __str__(self):
        return f"{self.k}{self.i}" if self.n == 1 else f"{self.k}[{self.i}:{self.i+self.n-1}]"
    def regs(self):
        return [f"{self.k}{j}" for j in range(self.i, self.i + self.n)]
    def __getitem__(self, key):
        if isinstance(key, slice):
            a = key.start or 0
            b = self.n if key.stop is None else key.stop
            assert 0 <= a < b <= self.n
            return R(self.k, self.i + a, b - a)
        assert 0 <= key < self.n
        return R(self.k, self.i + key, 1)
def V(i, n=1): return R('v', i, n)
def A(i, n=1): return R('a', i, n)
def S(i, n=1): return R('s', i, n)

def regs_of(x):
    if isinstance(x, R): return x.regs()
    if isinstance(x, str):
        if x in ('vcc', 'm0', 'exec', 'scc'): return [x]
        m = re.fullmatch(r'-?\|?([vas])(\d+)\|?', x)
        if m: return [m.group(1) + m.group(2)]
        m = re.fullmatch(r'-?\|?([vas])\[(\d+):(\d+)\]\|?', x)
        if m: return [f"{m.group(1)}{j}" for j in range(int(m.group(2)), int(m.group(3)) + 1)]
    return []

TRANS = ('v_exp_f32', 'v_log_f32', 'v_rcp_f32', 'v_rsq_f32', 'v_sqrt_f32')

class Ins:
    __slots__ = ('text', 'kind', 'rd', 'wr', 'tag', 'need', 'pre_lgkm', 'pre_vm', 'pre_nop', 'srcc', 'srcab', 'cost', 'fixed', 'note', 'nopn', 'nowaw', 'xdep')
    def __init__(self, text, kind, rd=(), wr=(), tag=None, need=None, cost=None):
        self.text, self.kind = text, kind
        self.rd, self.wr = set(rd), set(wr)
        self.tag, self.need = tag, need
        self.pre_lgkm = None; self.pre_vm = None; self.pre_nop = 0
        self.srcc = set(); self.srcab = set()
        self.cost = cost if cost is not None else (8 if kind in ('trans', 'mfma32', 'mfma16', 'permlane') else 4)
        self.fixed = None
        self.note = None
        self.nopn = 0
        self.nowaw = False
        self.xdep = set()
    def __repr__(self): return self.text

def fmt(x):
    if isinstance(x, float):
        raise ValueError("use hex/int literal for floats")
    return str(x)

class Prog:
    def __init__(self):
        self.ins = []
    def add(self, i):
        self.ins.append(i); return i
    def take(self):
        r = self.ins; self.ins = []; return r

def mfma32(d, a, b, c):
    rd = regs_of(a) + regs_of(b) + regs_of(c)
    i = Ins(f"v_mfma_f32_32x32x16_bf16 {d}, {a}, {b}, {c}", 'mfma32', rd, regs_of(d))
    i.srcc = set(regs_of(c)); i.srcab = set(regs_of(a) + regs_of(b))
    return i
def mfma16(d, a, b, c):
    rd = regs_of(a) + regs_of(b) + regs_of(c)
    i = Ins(f"v_mfma_f32_16x16x32_bf16 {d}, {a}, {b}, {c}", 'mfma16', rd, regs_of(d))
    i.srcc = set(regs_of(c)); i.srcab = set(regs_of(a) + regs_of(b))
    return i
RMW = ('v_fmac_f32', 'v_dot2c_f32_bf16', 'v_writelane_b32')
def valu(op, d, *src, mods=""):
    rd = []
    for s in src: rd += regs_of(s)
    wr = regs_of(d)
    base = op.replace('_e32', '').replace('_e64', '')
    if base in RMW: rd += wr
    kind = 'trans' if base in TRANS else 'valu'
    if base.startswith('v_permlane'):
        kind = 'permlane'; rd += wr; wr = wr + regs_of(src[0])
    if base.startswith('v_cndmask') and len(src) == 2:
        rd.append('vcc'); txt = f"{op} {d}, {src[0]}, {src[1]}, vcc"
    else:
        txt = f"{op} {d}, " + ", ".join(fmt(s) for s in src)
    if base.startswith('v_readfirstlane') or base.startswith('v_readlane'): kind = 'readlane'
    if mods: txt += " " + mods
    return Ins(txt, kind, rd, wr)
def vcmp(op, d, a, b):
    return Ins(f"{op} {d}, {fmt(a)}, {fmt(b)}", 'valu', regs_of(a) + regs_of(b), regs_of(d))
def accrd(d, a): return Ins(f"v_accvgpr_read_b32 {d}, {a}", 'valu', regs_of(a), regs_of(d))
def accwr(a, s): return Ins(f"v_accvgpr_write_b32 {a}, {fmt(s)}", 'valu', regs_of(s), regs_of(a))
def salu(op, d, *src):
    rd = []
    for s in src: rd += regs_of(s)
    wr = regs_of(d) if d is not None else []
    if op.startswith('s_cmp') or op.startswith('s_bitcmp'):
        wr = ['scc']; txt = f"{op} " + ", ".join(fmt(s) for s in src)
    else:
        txt = f"{op} {d}, " + ", ".join(fmt(s) for s in src)
        if op not in ('s_mov_b32', 's_mov_b64', 's_mul_i32', 's_cselect_b32', 's_cselect_b64', 's_movk_i32', 's_mul_hi_u32', 's_getreg_b32'): wr = wr + ['scc']
        if op.startswith('s_cselect') or op.startswith('s_addc'): rd.append('scc')
        if 'saveexec' in op: rd.append('exec'); wr.append('exec')
    return Ins(txt, 'salu', rd, wr)
def ds_read(op, d, addr, off=0):
    assert 0 <= off < 65536, off
    t = f"{op} {d}, {addr}" + (f" offset:{off}" if off else "")
    return Ins(t, 'ds_read', regs_of(addr), regs_of(d))
def ds_write(op, addr, data, off=0):
    assert 0 <= off < 65536
    t = f"{op} {addr}, {data}" + (f" offset:{off}" if off else "")
    return Ins(t, 'ds_write', regs_of(addr) + regs_of(data), [])
def dma(voff, srd, soff, imm=0, tag=None, flags=""):
    assert 0 <= imm < 4096
    t = f"buffer_load_dwordx4 {voff}, {srd}, {fmt(soff)} offen" + (f" offset:{imm}" if imm else "") + (" " + flags if flags else "") + " lds"
    return Ins(t, 'dma', regs_of(voff) + regs_of(srd) + regs_of(soff) + ['m0'], [], tag=tag)
def bload(d, voff, srd, soff, imm=0, op="buffer_load_dwordx4", tag=None, flags=""):
    assert 0 <= imm < 4096
    t = f"{op} {d}, {voff}, {srd}, {fmt(soff)} offen" + (f" offset:{imm}" if imm else "") + (" " + flags if flags else "")
    return Ins(t, 'vload', regs_of(voff) + regs_of(srd) + regs_of(soff), regs_of(d), tag=tag)
def bstore(data, voff, srd, soff, imm=0, op="buffer_store_dwordx4", flags="", tag=None):
    assert 0 <= imm < 4096
    t = f"{op} {data}, {voff}, {srd}, {fmt(soff)} offen" + (f" offset:{imm}" if imm else "") + (" " + flags if flags else "")
    return Ins(t, 'vstore', regs_of(voff) + regs_of(srd) + regs_of(soff) + regs_of(data), [], tag=tag)
def waitvm(need=None, n=None):
    i = Ins("WAITVM", 'waitvm', need=need, cost=4); i.fixed = n; return i
def waitlgkm0(): return Ins("s_waitcnt lgkmcnt(0)", 'waitlgkm0', cost=4)
def barrier(): return Ins("s_barrier", 'barrier', cost=4)
def label(n): return Ins(f"{n}:", 'label', cost=0)
def branch(op, target): return Ins(f"{op} {target}", 'branch', ['scc'] if 'scc' in op else (['vcc'] if 'vcc' in op else (['exec'] if 'exec' in op else [])), cost=4)
def nop(n):
    i = Ins(f"s_nop {n}", 'nop', cost=4); i.nopn = n + 1; return i
def raw(text, kind='salu', rd=(), wr=(), cost=4): return Ins(text, kind, rd, wr, cost=cost)
def comment(t): return Ins(f"; {t}", 'label', cost=0)

VM_KINDS = ('dma', 'vload', 'vstore')
LG_KINDS = ('ds_read', 'ds_write')

def resolve_waits(traces):
    def sim(trace, assign):
        lg_seq = 0; vm_seq = 0
        lg_done = 0; vm_done = 0
        pend = {}
        tags = {}
        for ins, ctx in trace:
            k = ins.kind
            if k == 'waitvm':
                if ins.fixed is not None and ins.need is None:
                    n = ins.fixed
                else:
                    need = ins.need(ctx) if callable(ins.need) else ins.need
                    mx = 0
                    for t in need:
                        if t in tags: mx = max(mx, tags[t])
                        else: raise RuntimeError(f"unknown tag {t}")
                    n = vm_seq - mx
                    if assign:
                        ins.pre_vm = n if ins.pre_vm is None else min(ins.pre_vm, n)
                    if ins.fixed is not None:
                        assert ins.fixed <= n, f"fixed vmcnt {ins.fixed} > needed {n} ctx {ctx}"
                        n = ins.fixed
                    else:
                        n = ins.pre_vm
                n = min(n, 63)
                vm_done = max(vm_done, vm_seq - n)
                continue
            if k == 'waitlgkm0':
                lg_done = lg_seq; continue
            need_lg = 0; need_vm = 0
            for r in ((ins.rd | ins.xdep) if ins.nowaw else (ins.rd | ins.wr | ins.xdep)):
                e = pend.get(r)
                if e:
                    if e[0] == 'lg': need_lg = max(need_lg, e[1])
                    else: need_vm = max(need_vm, e[1])
            if need_lg > lg_done:
                n = min(lg_seq - need_lg, 15)
                if assign: ins.pre_lgkm = n if ins.pre_lgkm is None else min(ins.pre_lgkm, n)
            if need_vm > vm_done:
                n = min(vm_seq - need_vm, 63)
                if assign: ins.pre_vm = n if ins.pre_vm is None else min(ins.pre_vm, n)
            if ins.pre_lgkm is not None: lg_done = max(lg_done, lg_seq - ins.pre_lgkm)
            if ins.pre_vm is not None: vm_done = max(vm_done, vm_seq - ins.pre_vm)
            assert need_lg <= lg_done and need_vm <= vm_done, (ins.text, need_lg, lg_done, need_vm, vm_done)
            if k in LG_KINDS:
                lg_seq += 1
                assert lg_seq - lg_done <= 64
                for r in ins.wr: pend[r] = ('lg', lg_seq)
            elif k in VM_KINDS:
                vm_seq += 1
                for r in ins.wr: pend[r] = ('vm', vm_seq)
                if ins.tag is not None:
                    t = ins.tag(ctx) if callable(ins.tag) else ins.tag
                    tags[t] = vm_seq
            else:
                for r in ins.wr:
                    if r in pend: del pend[r]
    for it in range(3):
        for t in traces: sim(t, True)
    allins = []
    seen = set()
    for t in traces:
        for ins, _ in t:
            if id(ins) not in seen: seen.add(id(ins)); allins.append(ins)
    for ins in allins:
        if ins.kind == 'waitvm': continue
        for attr in ('pre_lgkm', 'pre_vm'):
            v = getattr(ins, attr)
            if v is None: continue
            setattr(ins, attr, None)
            ok = True
            try:
                for t in traces: sim(t, False)
            except AssertionError:
                ok = False
            if not ok: setattr(ins, attr, v)
    for t in traces: sim(t, False)

VALU_KINDS = ('valu', 'trans', 'permlane', 'readlane')
def fix_hazards(traces, verbose=True, name=""):
    total = 0
    changed = True
    rounds = 0
    while changed and rounds < 10:
        changed = False; rounds += 1
        for trace in traces:
            seq = [i for i, _ in trace if i.kind not in ('label',)]
            for idx, ins in enumerate(seq):
                req = 0
                dist = ins.pre_nop
                j = idx - 1
                while j >= 0 and dist < 24:
                    p = seq[j]
                    need = hazard(p, ins)
                    if need > dist: req = max(req, need - dist)
                    dist += (p.nopn if p.kind == 'nop' else (0 if p.kind in ('waitvm', 'waitlgkm0') else 1)) + p.pre_nop
                    j -= 1
                if req > 0:
                    ins.pre_nop += req; changed = True; total += req
                    if verbose: print(f"[{name}] hazard: +{req} nop before: {ins.text}")
    return total

def hazard(p, c):
    pk, ck = p.kind, c.kind
    need = 0
    c_all = c.rd | c.wr
    if pk in ('mfma32', 'mfma16'):
        big = pk == 'mfma32'
        if ck in ('mfma32', 'mfma16'):
            ov_c = p.wr & c.srcc
            if ov_c:
                if p.wr == c.srcc and pk == ck: pass
                else: need = max(need, 10 if big else 6)
            if p.wr & c.srcab: need = max(need, 12 if big else 8)
            if (p.wr & c.wr) and not (p.wr == c.wr and pk == ck) : need = max(need, 10 if big else 6)
            if (p.wr == c.wr) and (c.srcc != p.wr): need = max(need, 12 if big else 8)
        elif ck in VALU_KINDS or ck in ('ds_read', 'ds_write', 'dma', 'vload', 'vstore'):
            if p.wr & c_all: need = max(need, 12 if big else 8)
            if ck in VALU_KINDS and (p.srcc & c.wr): need = max(need, 7 if big else 3)
    if pk in VALU_KINDS:
        if ck in ('mfma32', 'mfma16') and (p.wr & c.rd): need = max(need, 2)
        if pk == 'trans' and ck in VALU_KINDS and ck != 'trans' and (p.wr & c.rd): need = max(need, 1)
        if pk == 'trans' and (ck in ('mfma32','mfma16','ds_write','vstore')) and (p.wr & c.rd): need = max(need, 2)
        if ck == 'permlane' and (p.wr & c.rd): need = max(need, 2)
        if ck == 'readlane' and any(r[0] == 'v' and r != 'vcc' for r in (p.wr & c.rd)): need = max(need, 1)
        sw = {r for r in p.wr if r[0] == 's' or r == 'vcc'}
        if sw:
            if ck in ('dma', 'vload', 'vstore') and (sw & c.rd): need = max(need, 5)
            if ck in VALU_KINDS and (sw & c.rd): need = max(need, 2)
            if ck in ('salu', 'branch') and (sw & c.rd): need = max(need, 4)
        if 'exec' in p.wr and ck in ('mfma32', 'mfma16'): need = max(need, 4)
    if pk == 'salu':
        if 'm0' in p.wr and ck == 'dma': need = max(need, 1)
    if pk == 'vstore' and 'x4' in p.text and ck in VALU_KINDS:
        if (p.rd & c.wr): need = max(need, 2)
    return need

def render(inss):
    out = []
    for i in inss:
        if i.pre_nop:
            n = i.pre_nop
            while n > 0:
                k = min(n, 16); out.append(f"  s_nop {k-1}"); n -= k
        w = []
        if i.kind == 'waitvm':
            n = i.fixed if i.fixed is not None else i.pre_vm
            assert n is not None, "unresolved waitvm"
            out.append(f"  s_waitcnt vmcnt({min(n,63)})"); continue
        if i.pre_vm is not None: w.append(f"vmcnt({i.pre_vm})")
        if i.pre_lgkm is not None: w.append(f"lgkmcnt({i.pre_lgkm})")
        if w: out.append("  s_waitcnt " + " ".join(w))
        out.append(i.text if i.kind == 'label' else "  " + i.text)
    return "\n".join(out)

def T(inss, **ctx):
    return [(i, ctx) for i in inss]

def interleave(mains, fillers, cap=24, start_gap=0):
    n = len(mains)
    items = []
    for f in fillers:
        if isinstance(f, tuple): items.append(f)
        else: items.append((f, 0))
    total = sum(f.cost for f, _ in items)
    ngaps = n - start_gap
    out = []
    fi = 0; acc = 0.0
    for g in range(n):
        out.append(mains[g])
        if g < start_gap: continue
        target = total * (g - start_gap + 1) / ngaps
        while fi < len(items) and (items[fi][1] <= g) and (acc + items[fi][0].cost / 2 <= target or g == n - 1):
            out.append(items[fi][0]); acc += items[fi][0].cost; fi += 1
    while fi < len(items):
        out.append(items[fi][0]); fi += 1
    return out


def m0_peephole(seq):
    seq = list(seq)
    for i in range(1, len(seq) - 1):
        if seq[i].kind == 'salu' and 'm0' in seq[i].wr and seq[i + 1].kind == 'dma':
            j = i - 1
            if seq[j].kind in ('mfma32', 'mfma16', 'ds_read', 'valu', 'trans') and not (seq[j].wr & seq[i].rd):
                seq[j], seq[i] = seq[i], seq[j]
    return seq
```

```python
from common import *
import qproj

LDS_BYTES = 163840
KRING, VRING, FLAG = 0, 65536, 131072
NEG_INF = '0xff800000'

sWG = S(2)
srdK, srdV, srdWS = S(8, 4), S(12, 4), S(16, 4)
sWSP = S(20, 2)
sH, sI, sWV = S(22), S(23), S(24)
sKa, sKb, sVa, sVb = S(25), S(26), S(27), S(28)
sKoff, sVoff = S(29), S(30)
sCnt = S(31)
sTmp = S(32, 6)
sMode = S(38)
sQoff = S(39, 2)
sNb = S(41)
sExec = S(42, 2)
vLane = V(1); vL16 = V(2); vD = V(3)
vKa, vKb, vVa, vVb = V(4), V(5), V(6), V(7)
vT = [V(8 + i) for i in range(8)]
vL = [[V(16), V(17)], [V(18), V(19)]]
vM = [V(20), V(21)]
vChk = V(22)
aMd = A(128, 16)
sPX, sPW = S(44, 2), S(46, 2)
srdX, srdW = S(48, 4), S(52, 4)
sXoff, sWoff, sXlds, sWlds = S(56), S(57), S(58), S(59)
sScale = S(6, 2)
def vS(par, u): return V(128 + (par * 2 + u) * 16, 16)
def vP(par, u): return V(192 + (par * 2 + u) * 8, 8)
def vC(u): return V(224 + 16 * u, 16)
def aO(u, db): return A((u * 4 + db) * 16, 16)
def aQ(u, s): return V(32 + (u * 8 + s) * 4, 4)
def aK(s): return A(192 + 4 * s, 4)
def aV(f): return A(224 + 4 * f, 4)
PFN = 5
PAIRW = True
DDUAL, DSINGLE = 8, 6

_lab = [0]
def newlabel(p):
    _lab[0] += 1
    return f"L_b_{p}_{_lab[0]}"

PKADD = False
def sm_ops(par, u):
    s = vS(par, u); p = vP(par, u)
    ops = []
    def tailops(r):
        if PKADD: return [valu('v_pk_add_f32', V(vL[u][0].i, 2), V(vL[u][0].i, 2), s[r:r + 2]), valu('v_cvt_pk_bf16_f32', p[r // 2], s[r], s[r + 1])]
        return [valu('v_add_f32', vL[u][0], vL[u][0], s[r]), valu('v_add_f32', vL[u][1], vL[u][1], s[r + 1]),
                valu('v_cvt_pk_bf16_f32', p[r // 2], s[r], s[r + 1])]
    for r in range(0, 16, 2):
        ops += [valu('v_exp_f32', s[r], s[r]), valu('v_exp_f32', s[r + 1], s[r + 1])]
        if r >= 2: ops += tailops(r - 2)
    ops += tailops(14)
    return ops

def k_read(s, half_other, slot):
    return ds_read('ds_read_b128', aK(s), vKb if half_other else vKa, slot * 8192 + s * 1024)
def v_read(f, half_other, slot):
    return ds_read('ds_read_b128', aV(f), vVb if half_other else vVa, slot * 8192 + f * 1024)

def dma_k(half_other, slot, tag):
    return [salu('s_add_u32', 'm0', sKb if half_other else sKa, hexs(slot * 8192)),
            dma(vD, srdK, sKoff, 0, tag=tag), dma(vD, srdK, sKoff, 1024, tag=tag), salu('s_add_u32', sKoff, sKoff, 8192)]
def dma_v(half_other, slot, tag):
    return [salu('s_add_u32', 'm0', sVb if half_other else sVa, hexs(slot * 8192)),
            dma(vD, srdV, sVoff, 0, tag=tag), dma(vD, srdV, sVoff, 1024, tag=tag), salu('s_add_u32', sVoff, sVoff, 8192)]

def event(u, it):
    o = []
    l1, l2 = newlabel('ev'), newlabel('ev')
    o += [salu('s_cmp_lg_u32', None, sWV, it), branch('s_cbranch_scc1', l1)]
    o += add_mdiag(vC(u))
    o += [label(l1)]
    if it >= 1:
        o += [salu('s_cmp_lg_u32', None, sWV, it - 1), branch('s_cbranch_scc1', l2)]
        o += [valu('v_mov_b32', vC(u)[r], NEG_INF) for r in range(16)]
        o += [label(l2)]
    o.append(nop(1))
    return o

def iteration(it, qk, sm, pv, first_pv=False, bar=False, dmas=True, prefetch=True, events=(), have_prefetched=True, extra_end=()):
    par = it & 1
    ms = []; kfirst = {}; vfirst = {}
    for s in range(8):
        for u in qk:
            kfirst.setdefault(s, len(ms))
            ms.append(mfma32(vS(par, u), aK(s), aQ(u, s), vC(u) if s == 0 else vS(par, u)))
    for f in range(8):
        ks, db = f >> 2, f & 3
        for u in pv:
            vfirst.setdefault(f, len(ms))
            c = 0 if (first_pv and ks == 0) else aO(u, db)
            ms.append(mfma32(aO(u, db), aV(f), vP(par, u)[4 * ks:4 * ks + 4], c))
    n = len(ms)
    if PAIRW:
        for s_ in range(0, 8, 2):
            if s_ in kfirst and s_ + 1 in kfirst: ms[kfirst[s_]].xdep |= set(aK(s_ + 1).regs())
            if s_ in vfirst and s_ + 1 in vfirst: ms[vfirst[s_]].xdep |= set(aV(s_ + 1).regs())
    dual = max(len(qk), len(pv)) == 2
    D = DDUAL if dual else DSINGLE
    pre = []
    gaps = [[] for _ in range(max(n, 1))]
    for u in events: pre += event(u, it)
    barr = []
    if bar:
        barr = [waitvm(need=lambda c, it=it: [('K', 4 * c['m'] + it + 2)]), barrier()]
    kreads = []
    for s in range(8):
        if s in kfirst and (s >= PFN or not have_prefetched):
            kreads.append((kfirst[s] - D, k_read(s, False, it)))
    vo, vs = (True, it + 2) if it < 2 else (False, it - 2)
    vreads = [(vfirst[f] - D, v_read(f, vo, vs)) for f in range(8) if f in vfirst]
    pf = []
    if prefetch:
        po, psl = (False, it + 1) if it < 3 else (True, 0)
        pf = [k_read(s, po, psl) for s in range(PFN)]
    dm = []
    if dmas:
        if it == 0:   dm = dma_k(True, 2, lambda c: ('K', 4 * c['m'] + 6)) + dma_v(True, 0, lambda c: ('V', 4 * c['m'] + 4))
        elif it == 1: dm = dma_k(True, 3, lambda c: ('K', 4 * c['m'] + 7)) + dma_v(True, 1, lambda c: ('V', 4 * c['m'] + 5))
        elif it == 2: dm = dma_k(False, 0, lambda c: ('K', 4 * c['m'] + 8)) + dma_v(True, 2, lambda c: ('V', 4 * c['m'] + 6))
        else:         dm = dma_k(False, 1, lambda c: ('K', 4 * c['m'] + 9)) + dma_v(True, 3, lambda c: ('V', 4 * c['m'] + 7))
    smo = []
    for u in sm: smo += sm_ops(par ^ 1, u)
    if n == 0:
        return pre + barr + dm + smo + pf + list(extra_end)
    if qk:
        gaps[0] += barr
        for g, r in kreads + vreads: gaps[max(g, 0)].append(r)
    else:
        pre += barr
        for g, r in vreads:
            if g < 0: pre.append(r)
            else: gaps[g].append(r)
    for i, r in enumerate(pf):
        gaps[max(n - 1 - (PFN - 1 - i) - (1 if dual else 0), 0)].append(r)
    if dm:
        g0 = 1; span = max(n - 3, 1)
        for i, x in enumerate(dm): gaps[min(g0 + (i * span) // len(dm), n - 1)].append(x)
    cap = [24 - sum(x.cost for x in gaps[g]) for g in range(n)]
    tot = sum(x.cost for x in smo)
    free = sum(max(c, 0) for c in cap)
    k = 0; acc_need = 0.0; placed = 0
    for g in range(n):
        share = (max(cap[g], 0) / free if free > 0 else 1.0 / n) * tot
        acc_need += share
        while k < len(smo) and (placed + smo[k].cost / 2 <= acc_need + 1e-6 or g == n - 1):
            gaps[g].append(smo[k]); placed += smo[k].cost; k += 1
    out = list(pre)
    for g in range(n):
        out.append(ms[g]); out += gaps[g]
    out += list(extra_end)
    out = m0_peephole(out)
    seen = set()
    for x in out:
        if x.kind == 'ds_read': seen |= x.wr
        if x.kind == 'mfma32':
            for r in x.srcab:
                if r[0] == 'a' and int(r[1:]) >= 224: assert r in seen, ("V frag used before read", x.text)
                if r[0] == 'a' and 192 + 4 * PFN <= int(r[1:]) < 224: assert r in seen, ("K frag used before read", x.text)
    return out

def toggles():
    return [valu('v_xor_b32', x, '0x8000', x) for x in (vKa, vKb, vVa, vVb)] + \
           [salu('s_xor_b32', x, x, '0x8000') for x in (sKa, sKb, sVa, sVb)]

def body(name, first, t0, t1):
    o = [label(name)]
    for it in range(4):
        qk, sm, pv, ev = [], [], [], []
        for u, mode in ((0, t0), (1, t1)):
            if mode in ('full', 'mask'):
                if not (first and it == 0): qk.append(u)
                if not (first and it == 0): sm.append(u)
                if not (first and it < 2): pv.append(u)
                if mode == 'mask' and not (first and it == 0): ev.append(u)
            elif mode == 'drain':
                if it == 0: sm.append(u)
                if it < 2: pv.append(u)
        last = (t1 == 'mask' and it == 3)
        o.append(comment(f"{name} it{it} qk={qk} sm={sm} pv={pv}"))
        o += iteration(it, qk, sm, pv, first_pv=(first and it in (2,)), bar=(it % 2 == 0), prefetch=not last, events=ev,
                       extra_end=toggles() if it == 3 else ())
    return o

def tail():
    o = [label('L_b_tail'), comment('tail')]
    o += iteration(0, [], [1], [1], bar=True, dmas=False, prefetch=False)
    o += iteration(1, [], [], [1], bar=False, dmas=False, prefetch=False)
    return o

def epilogue(u):
    o = []; a = o.append
    tmp = vS(0, u)
    pk = vP(0, u)
    a(valu('v_add_f32', vL[u][0], vL[u][0], vL[u][1]))
    a(valu('v_mov_b32', vT[0], vL[u][0]))
    a(nop(1))
    a(valu('v_permlane32_swap_b32', vT[0], vL[u][0]))
    a(valu('v_add_f32', vT[0], vT[0], vL[u][0]))
    a(valu('v_mov_b32', vT[2], hexs(f2u(2.0 ** 100))))
    a(vcmp('v_cmp_nle_f32', 'vcc', vT[0], vT[2]))
    a(valu('v_rcp_f32', vT[1], vT[0]))
    a(valu('v_mov_b32', vT[3], '0x7fc00000'))
    a(valu('v_cndmask_b32', vChk, vChk, vT[3]))
    a(valu('v_mov_b32', vT[6], vT[1])); a(valu('v_mov_b32', vT[7], vT[1]))
    for db in range(4):
        for r in range(16): a(accrd(tmp[r], aO(u, db)[r]))
        for r in range(8): a(valu('v_pk_mul_f32', tmp[2 * r:2 * r + 2], tmp[2 * r:2 * r + 2], V(vT[6].i, 2)))
        for r in range(8): a(valu('v_cvt_pk_bf16_f32', pk[r], tmp[2 * r], tmp[2 * r + 1]))
        for r in range(8): a(valu('v_dot2_f32_bf16', vChk, pk[r], vT[4], vChk))
        a(bstore(pk[0:4], vL16, srdWS, sQoff[u], (2 * db) * 1024 % 4096) if db < 2 else bstore(pk[0:4], vL16, srdWS, sTmp[u], (2 * db - 4) * 1024))
        a(bstore(pk[4:8], vL16, srdWS, sQoff[u], (2 * db + 1) * 1024) if db < 2 else bstore(pk[4:8], vL16, srdWS, sTmp[u], (2 * db - 3) * 1024))
    return o

def epi_offsets(u):
    o = []; a = o.append
    if u == 0: a(salu('s_lshl_b32', sTmp[2], sI, 2))
    else:
        a(salu('s_sub_u32', sTmp[2], 15, sI)); a(salu('s_lshl_b32', sTmp[2], sTmp[2], 2))
    a(salu('s_add_u32', sTmp[2], sTmp[2], sWV))
    a(salu('s_lshl_b32', sTmp[2], sTmp[2], 18))
    a(salu('s_lshl_b32', sTmp[3], sH, 13))
    a(salu('s_add_u32', sTmp[2], sTmp[2], sTmp[3]))
    a(salu('s_add_u32', sQoff[u], sTmp[2], hexs(WS_CTXB)))
    a(salu('s_add_u32', sTmp[u], sQoff[u], 4096))
    a(valu('v_mov_b32', vT[4], 0))
    return o

def mdiag():
    o = []; a = o.append
    a(valu('v_and_b32', vT[0], 31, vLane)); a(valu('v_lshrrev_b32', vT[1], 5, vLane)); a(valu('v_lshlrev_b32', vT[1], 2, vT[1]))
    a(valu('v_sub_u32', vT[0], vT[0], vT[1]))
    a(valu('v_mov_b32', vT[2], NEG_INF)); a(valu('v_mov_b32', vT[3], 0))
    for r in range(16):
        kk = 8 * (r >> 2) + (r & 3)
        a(vcmp('v_cmp_le_i32', 'vcc', kk, vT[0]))
        a(nop(1))
        a(valu('v_cndmask_b32', vT[4 + (r & 1)], vT[2], vT[3]))
        a(accwr(aMd[r], vT[4 + (r & 1)]))
    return o
def add_mdiag(dst):
    o = []
    for r in range(16):
        o.append(accrd(vT[6 + (r & 1)], aMd[r]))
        o.append(valu('v_add_f32', dst[r], dst[r], vT[6 + (r & 1)]))
    return o

QP = qproj.QP(vLane=vLane, vXa=[V(4), V(5), V(6), V(7)], vWa=[V(16), V(17), V(18), V(19)], vXd=[V(20), V(21), V(22), V(23), V(24), V(25), V(26), V(27)],
              vWd=[V(28), V(29), V(30), V(31)], vT=vT, vXb=[V(112 - 16 + 0 + 0 + 0 + 0), None, None, None], srdX=srdX, srdW=srdW, sXoff=sXoff, sWoff=sWoff,
              sXlds=sXlds, sWlds=sWlds, sWV=sWV, sH=sH, sI=sI, sTmp=sTmp, sScale=sScale, vQ=aQ)
QP.vXb = [V(32), V(33), V(34), V(35)]

def prologue_setup(ST=None):
    o = []; a = o.append
    a(salu('s_cmp_ge_u32', None, sWG, 256)); a(branch('s_cbranch_scc1', 'L_b_end'))
    a(raw("s_load_dwordx2 s[20:21], s[0:1], 88", wr=['s20', 's21']))
    a(raw("s_load_dwordx2 s[44:45], s[0:1], 24", wr=['s44', 's45']))
    a(raw("s_load_dwordx2 s[46:47], s[0:1], 40", wr=['s46', 's47']))
    a(salu('s_and_b32', sH, sWG, 7)); a(salu('s_lshr_b32', sTmp[0], sWG, 3)); a(salu('s_and_b32', sTmp[0], sTmp[0], 3))
    a(salu('s_lshl_b32', sTmp[0], sTmp[0], 3)); a(salu('s_add_u32', sH, sH, sTmp[0]))
    a(salu('s_lshr_b32', sI, sWG, 5))
    a(valu('v_lshrrev_b32', vT[0], 6, V(0))); a(valu('v_and_b32', vLane, 63, V(0))); a(nop(0))
    a(valu('v_readfirstlane_b32', sWV, vT[0]))
    a(valu('v_lshlrev_b32', vL16, 4, vLane))
    a(nop(2))
    o += QP.setup_early()
    a(raw("s_waitcnt lgkmcnt(0)", kind='waitlgkm0'))
    o += set_srd(srdX, sPX, 2 * MB) + set_srd(srdW, sPW, 4 * MB)
    o += QP.first_dmas()
    o += QP.setup_late()
    o += mdiag()
    a(salu('s_lshl_b32', sTmp[0], sWV, 11))
    a(valu('v_add_u32', vD, sTmp[0], vL16))
    o += set_srd(srdWS, sWSP, WS_USED)
    a(salu('s_lshl_b32', sTmp[0], sI, 2)); a(salu('s_sub_u32', sNb, 64, sTmp[0]))
    for srd, reg in ((srdK, WS_KB), (srdV, WS_VB)):
        a(salu('s_lshl_b32', sTmp[0], sH, 19)); a(salu('s_add_u32', sTmp[0], sTmp[0], hexs(reg)))
        a(salu('s_add_u32', srd[0], sWSP[0], sTmp[0])); a(salu('s_addc_u32', srd[1], sWSP[1], 0))
        a(salu('s_and_b32', srd[1], srd[1], '0xffff'))
        a(salu('s_lshl_b32', srd[2], sNb, 13)); a(salu('s_mov_b32', srd[3], '0x20000'))
    a(salu('s_mov_b32', sMode, 0))
    o += ring_scalars()
    kv1 = dma_k(False, 0, ('K', 0)) + dma_k(False, 1, ('K', 1)) + dma_k(False, 2, ('K', 2)) + dma_v(False, 0, ('V', 0)) + \
          dma_k(False, 3, ('K', 3)) + dma_v(False, 1, ('V', 1)) + dma_v(False, 2, ('V', 2)) + dma_v(False, 3, ('V', 3))
    kv2 = dma_k(True, 0, ('K', 4)) + dma_k(True, 1, ('K', 5))
    o += QP.run(kv1, kv2, ST)
    a(branch('s_branch', 'L_b_start2'))
    return o

def ring_scalars():
    o = []; a = o.append
    a(salu('s_lshl_b32', sTmp[0], sWV, 11))
    a(salu('s_mov_b32', sKa, sTmp[0])); a(salu('s_add_u32', sKb, sKa, '0x8000'))
    a(salu('s_add_u32', sVa, sKa, hexs(VRING))); a(salu('s_add_u32', sVb, sVa, '0x8000'))
    a(salu('s_mov_b32', sKoff, 0)); a(salu('s_mov_b32', sVoff, 0))
    return o

def start_safe():
    o = [label('L_b_start')]
    o += ring_scalars()
    o += dma_k(False, 0, ('K', 0)) + dma_k(False, 1, ('K', 1)) + dma_k(False, 2, ('K', 2)) + dma_v(False, 0, ('V', 0)) + dma_k(False, 3, ('K', 3)) + dma_v(False, 1, ('V', 1))
    o += dma_v(False, 2, ('V', 2)) + dma_v(False, 3, ('V', 3)) + dma_k(True, 0, ('K', 4)) + dma_k(True, 1, ('K', 5))
    return o

def start():
    o = []; a = o.append
    a(label('L_b_start2'))
    a(valu('v_mov_b32', vKa, vL16)); a(valu('v_add_u32', vKb, '0x8000', vL16))
    a(valu('v_add_u32', vVa, hexs(VRING), vL16)); a(valu('v_add_u32', vVb, '0x8000', vVa))
    a(valu('v_mov_b32', vT[0], 0)); a(valu('v_mov_b32', vT[1], hexs(FLAG)))
    for u in range(2):
        for x in vL[u]: a(valu('v_mov_b32', x, 0))
    a(valu('v_mov_b32', vChk, 0))
    a(ds_write('ds_write_b32', vT[1], vT[0]))
    a(waitvm(need=[('K', 0)])); a(waitlgkm0()); a(barrier())
    for s in range(8): a(k_read(s, False, 0))
    for s in range(8):
        for u in range(2):
            a(mfma32(vS(0, u), aK(s), aQ(u, s), 0 if s == 0 else vS(0, u)))
    a(nop(7)); a(nop(3))
    l1 = newlabel('p')
    a(salu('s_or_b32', sTmp[0], sI, sWV)); a(salu('s_cmp_lg_u32', None, sTmp[0], 0)); a(branch('s_cbranch_scc1', l1))
    o += add_mdiag(vS(0, 0))
    a(label(l1))
    l2 = newlabel('p')
    a(salu('s_cmp_lg_u32', None, sMode, 0)); a(branch('s_cbranch_scc1', l2))
    for u in range(2):
        s_ = vS(0, u)
        a(valu('v_max3_f32', vM[u], s_[0], s_[1], s_[2]))
        for r in range(3, 15, 2): a(valu('v_max3_f32', vM[u], vM[u], s_[r], s_[r + 1]))
        a(valu('v_max_f32', vM[u], vM[u], s_[15]))
        a(valu('v_mov_b32', vT[u], vM[u]))
        a(nop(1))
        a(valu('v_permlane32_swap_b32', vT[u], vM[u]))
        a(valu('v_max_f32', vM[u], vM[u], vT[u]))
    a(label(l2))
    for u in range(2):
        for r in range(16): a(valu('v_sub_f32', vS(0, u)[r], vS(0, u)[r], vM[u]))
        for r in range(16): a(valu('v_sub_f32', vC(u)[r], 0, vM[u]))
    return o

def set_opts(opts):
    global PKADD, PAIRW, DDUAL, DSINGLE, PFN
    PKADD = bool(int(opts.get('pkadd', 0))); PAIRW = bool(int(opts.get('pairw', 1)))
    DDUAL = int(opts.get('ddual', 8)); DSINGLE = int(opts.get('dsingle', 6)); PFN = int(opts.get('pfn', 5))

def attn_parts(ST, prof, fin_extra=None):
    st0 = start_safe()
    st = start() + ST.stamp()
    F  = body('L_b_F', True, 'full', 'full')
    FM = body('L_b_FM', True, 'mask', 'full')
    D  = body('L_b_D', False, 'full', 'full')
    DM = body('L_b_DM', False, 'mask', 'full')
    TD = body('L_b_TD', False, 'drain', 'full')
    TDM = body('L_b_TDM', False, 'drain', 'mask')
    SF = body('L_b_SF', False, 'off', 'full')
    SM_ = body('L_b_SM', False, 'off', 'mask')
    TL = tail()
    e0a = epi_offsets(0) + epilogue(0); e0b = epi_offsets(0) + epilogue(0)
    e1 = epi_offsets(1) + epilogue(1)
    g_sel = [salu('s_cmp_eq_u32', None, sI, 0), branch('s_cbranch_scc1', 'L_b_FM')]
    g_F = [salu('s_sub_u32', sCnt, sI, 1), salu('s_cmp_eq_u32', None, sCnt, 0), branch('s_cbranch_scc1', 'L_b_DM')]
    g_D = [salu('s_sub_u32', sCnt, sCnt, 1), salu('s_cmp_lg_u32', None, sCnt, 0), branch('s_cbranch_scc1', 'L_b_D')]
    g_DM = [salu('s_cmp_eq_u32', None, sI, 7), branch('s_cbranch_scc1', 'L_b_TDM'), branch('s_branch', 'L_b_TD')]
    g_TD_post = [salu('s_lshl_b32', sCnt, sI, 1), salu('s_sub_u32', sCnt, 13, sCnt)]
    g_SF = [salu('s_sub_u32', sCnt, sCnt, 1), salu('s_cmp_lg_u32', None, sCnt, 0), branch('s_cbranch_scc1', 'L_b_SF')]
    g_SM = [branch('s_branch', 'L_b_tail')]
    chk = []; a = chk.append
    a(vcmp('v_cmp_u_f32', 'vcc', vChk, vChk))
    a(valu('v_mov_b32', vT[1], hexs(FLAG))); a(valu('v_mov_b32', vT[0], 1))
    lf = newlabel('f')
    a(nop(2))
    a(branch('s_cbranch_vccz', lf))
    a(ds_write('ds_write_b32', vT[1], vT[0]))
    a(label(lf))
    a(waitlgkm0()); a(barrier())
    a(ds_read('ds_read_b32', vT[2], vT[1]))
    a(valu('v_readfirstlane_b32', sTmp[0], vT[2]))
    a(salu('s_cmp_eq_u32', None, sTmp[0], 0)); a(branch('s_cbranch_scc1', 'L_b_fin'))
    a(salu('s_cmp_lg_u32', None, sMode, 0)); a(branch('s_cbranch_scc1', 'L_b_fin'))
    safe = maxpass()
    mid = ST.stamp()
    fin = [label('L_b_fin')] + ([waitvm(n=0)] if prof else []) + ST.stamp() + ST.stamp(real=True) + ST.flush(sWG, sWV, sWSP, srdK, vT[0], vT[1], sTmp[0]) + [label('L_b_end')]
    code = st0 + st + g_sel + F + g_F + D + g_D + DM + g_DM + FM + TD + e0a + g_TD_post + SF + g_SF + SM_ + g_SM + TDM + e0b + TL + mid + e1 + chk + safe + fin
    def tr(seq):
        out = []
        for seg, m in seq: out += T(seg, m=m)
        return out
    def make_traces(pros):
        traces = []
        for n_, i in enumerate((0, 1, 2, 3, 6, 7)):
            seq = [(pros[n_ % len(pros)], 0), (st, 0), (g_sel, 0)]
            if i == 0: seq += [(FM, 0)]
            else:
                seq += [(F, 0), (g_F, 0)]
                for m in range(1, i): seq += [(D, m), (g_D, m)]
                seq += [(DM, i), (g_DM, i)]
            if i == 7: seq += [(TDM, 8), (e0b, 8)]
            else:
                seq += [(TD, i + 1), (e0a, i + 1), (g_TD_post, i + 1)]
                for m in range(i + 2, 15 - i): seq += [(SF, m), (g_SF, m)]
                seq += [(SM_, 15 - i), (g_SM, 15 - i)]
            seq += [(TL, 16 - i), (mid, 0), (e1, 0), (chk, 0), (safe, 0), (st0, 0), (st, 0), (g_sel, 0), (F, 0)]
            traces.append(tr(seq))
        for p in pros:
            traces.append(tr([(p, 0), (st, 0), (g_sel, 0), (FM, 0), (TD, 1)]))
            traces.append(tr([(p, 0), (st, 0), (g_sel, 0), (F, 0), (g_F, 0), (D, 1)]))
        return traces
    return code, make_traces

def gen(opts=None):
    opts = opts or {}
    set_opts(opts)
    prof = bool(int(opts.get('prof', 0)))
    ST = Stamps(60, prof, 1)
    _lab[0] = 0
    pro = ST.stamp(real=True) + ST.stamp() + prologue_setup(ST)
    code, mk = attn_parts(ST, prof)
    traces = mk([pro])
    resolve_waits(traces)
    fix_hazards(traces, name='battn', verbose=bool(int(opts.get('verbose', 0))))
    return render(pro + code)

def maxpass():
    o = []; a = o.append
    a(label('L_b_safe'))
    a(waitvm(n=0)); a(waitlgkm0()); a(barrier())
    for u in range(2): a(valu('v_mov_b32', vM[u], NEG_INF))
    a(salu('s_mov_b32', sKoff, 0)); a(salu('s_mov_b32', sCnt, 0))
    a(salu('s_lshl_b32', sKa, sWV, 11))
    a(salu('s_lshl_b32', sTmp[2], sI, 2)); a(salu('s_add_u32', sTmp[2], sTmp[2], sWV))
    a(salu('s_sub_u32', sTmp[3], 15, sI)); a(salu('s_lshl_b32', sTmp[3], sTmp[3], 2)); a(salu('s_add_u32', sTmp[3], sTmp[3], sWV))
    a(valu('v_mov_b32', vKa, vL16))
    a(label('L_b_safe_loop'))
    o += dma_k(False, 0, ('KS', 0))
    a(waitvm(n=0)); a(barrier())
    for s in range(8): a(k_read(s, False, 0))
    for u in range(2):
        lskip, ldiag, ljoin = newlabel('s'), newlabel('s'), newlabel('s')
        rb = sTmp[2 + u]; s_ = vS(0, u)
        a(salu('s_cmp_gt_u32', None, sCnt, rb)); a(branch('s_cbranch_scc1', lskip))
        for s in range(8): a(mfma32(s_, aK(s), aQ(u, s), 0 if s == 0 else s_))
        a(nop(7)); a(nop(3))
        a(salu('s_cmp_lg_u32', None, sCnt, rb)); a(branch('s_cbranch_scc1', ljoin))
        o += add_mdiag(s_)
        a(label(ljoin))
        for r in range(0, 16, 2): a(valu('v_max3_f32', vM[u], vM[u], s_[r], s_[r + 1]))
        a(label(lskip))
    a(waitlgkm0()); a(barrier())
    a(salu('s_add_u32', sCnt, sCnt, 1)); a(salu('s_cmp_lt_u32', None, sCnt, sNb)); a(branch('s_cbranch_scc1', 'L_b_safe_loop'))
    for u in range(2):
        a(valu('v_mov_b32', vT[u], vM[u])); a(nop(1))
        a(valu('v_permlane32_swap_b32', vT[u], vM[u]))
        a(valu('v_max_f32', vM[u], vM[u], vT[u]))
    a(salu('s_mov_b32', sMode, 1))
    a(branch('s_branch', 'L_b_start'))
    return o

if __name__ == '__main__':
    t = gen({'verbose': 1})
    print(len(t.splitlines()))
```

```python
from common import *
import k_aattn as A_
from k_aattn import (KBASE, VBASE, ONES, FLAG, NEG_INF, C_OFF, NS, sWG, srdK, srdV, srdWS, sWSP, sH, sQG, sWV, sCnt, sMode, sOff, sQoff, sOoff, sTmp,
                     vLane, vL16, vK, vVa, vVinc, vT, vM, vChk, vQ, vKf, vVf, vO, vS, vP, vC, sm_ops)
LDS_BYTES = A_.LDS_BYTES
NVGPR, ACCOFF = 448, 256
PFX = 'L_f'
sTT, sNT = S(40), S(41)
sX = [S(42), S(43)]; sW = [S(44), S(45)]
sOUT = S(46, 2); srdO = S(48, 4)
DEPTH = 8
def buf(i): return A(64 + 16 * i, 16)
def accB(nb, tb): return A((nb * 2 + tb) * 16, 16)
_lab = [0]
def newlabel(p):
    _lab[0] += 1
    return f"{PFX}_{p}_{_lab[0]}"

def b_loads(i, q):
    b = buf(i)
    return [bload(b[0:4], vL16, srdWS, sX[0], q * 1024), bload(b[8:12], vL16, srdWS, sW[0], q * 1024),
            bload(b[4:8], vL16, srdWS, sX[1], q * 1024), bload(b[12:16], vL16, srdWS, sW[1], q * 1024)]
def b_adv(): return [salu('s_add_u32', x, x, 4096) for x in sX + sW]
def b_mm(i, first):
    b = buf(i); o = []
    for nb in range(2):
        for tb in range(2):
            o.append(mfma32(accB(nb, tb), b[8 + 4 * nb:12 + 4 * nb], b[4 * tb:4 * tb + 4], 0 if first else accB(nb, tb)))
    return o

def iteration(it, qk=True, sm=True, pv=True, first_pv=False, next_k=True, next_v=True, pre_read=(), bk=None, bfirst=False, reload=True, extra=()):
    par = it & 1
    ms = []
    if qk:
        for u in range(2): ms.append(mfma32(vS(par, u), vKf[par], vQ[u], vC(u)))
    pvm = []
    if pv:
        for ks in range(2):
            for u in range(2):
                c = 0 if (first_pv and ks == 0) else vO(u)
                pvm.append(mfma32(vO(u), vVf[par][ks], vP(par, u)[4 * ks:4 * ks + 4], c))
    bm = b_mm(bk, bfirst) if bk is not None else []
    seq = []
    aa = ms + pvm
    ia = ib = 0
    while ia < len(aa) or ib < len(bm):
        if ia < len(aa): seq.append(aa[ia]); ia += 1
        if ib < len(bm) and (ia <= len(bm) or ia >= len(aa)): seq.append(bm[ib]); ib += 1
    rd = list(pre_read)
    if next_k: rd.append(ds_read('ds_read_b128', vKf[par ^ 1], vK, (it + 1) * 1024))
    if next_v:
        for ks in range(2): rd.append(ds_read('ds_read_b128', vVf[par ^ 1][ks], vVa, it * 1024 + ks * 512))
    smo = []
    if sm:
        for u in range(2): smo += sm_ops(par ^ 1, u)
    after_b = []
    if bk is not None and reload:
        after_b = b_loads(bk, bk & 3) + (b_adv() if bk & 3 == 3 else [])
    after_b += list(extra)
    n = len(seq); tot = len(smo)
    if n == 0: return rd + smo
    out = []; k = 0
    lastb = max([i for i, m in enumerate(seq) if m in bm], default=-1)
    ab = list(after_b)
    for g in range(n):
        out.append(seq[g])
        if g == 0: out += rd
        if g >= lastb and ab:
            rem = n - g
            take = (len(ab) + rem - 1) // rem
            out += ab[:take]; ab = ab[take:]
        upto = int(round(tot * (g + 1) / n))
        while k < upto: out.append(smo[k]); k += 1
    return out + ab

def abody(m_pos, first=False, bar=None, bbase=None, bfirst=False, reload=True, extras=None):
    o = []
    for it in range(4):
        pre = []
        if bar is not None and it == 3: pre = [waitvm(need=bar), barrier()]
        o += iteration(it, qk=True, sm=not (first and it == 0), pv=not (first and it < 2), first_pv=(first and it == 2),
                       next_v=not (first and it == 0), pre_read=pre, bk=None if bbase is None else bbase + it,
                       bfirst=(bfirst and it == 0), reload=reload, extra=(extras[it] if extras else ()))
    o += [valu('v_add_u32', vK, 4096, vK), valu('v_add_u32', vVa, vVa, vVinc)]
    return o

def a_dma(g):
    o = [salu('s_add_u32', 'm0', sOff, hexs(KBASE)), nop(0)]
    o += [dma(vL16, srdK, sOff, q * 1024, tag=('K', g)) for q in range(4)]
    o += [salu('s_add_u32', 'm0', sOff, hexs(VBASE)), nop(0)]
    o += [dma(vL16, srdV, sOff, q * 1024, tag=('V', g)) for q in range(4)]
    o += [salu('s_add_u32', sOff, sOff, 16384)]
    return o

def a_sample_and_init(lbl_skip):
    o = []; a = o.append
    a(salu('s_cmp_lg_u32', None, sMode, 0)); a(branch('s_cbranch_scc1', lbl_skip))
    for b in range(NS): a(ds_read('ds_read_b128', vKf[b & 1], vL16, KBASE + b * 1024))
    for b in range(NS):
        for u in range(2): a(mfma32(vS(b & 1, u), vKf[b & 1], vQ[u], 0))
    a(nop(7)); a(nop(3))
    for u in range(2):
        s_ = vS(0, u); s2 = vS(1, u)
        a(valu('v_max3_f32', vM[u], s_[0], s_[1], s_[2]))
        for r in range(3, 15, 2): a(valu('v_max3_f32', vM[u], vM[u], s_[r], s_[r + 1]))
        a(valu('v_max3_f32', vM[u], vM[u], s_[15], s2[0]))
        for r in range(1, 15, 2): a(valu('v_max3_f32', vM[u], vM[u], s2[r], s2[r + 1]))
        a(valu('v_max_f32', vM[u], vM[u], s2[15]))
        a(valu('v_mov_b32', vT[u], vM[u])); a(nop(1))
        a(valu('v_permlane32_swap_b32', vT[u], vM[u]))
        a(valu('v_max_f32', vM[u], vM[u], vT[u]))
        a(valu('v_add_f32', vM[u], hexs(f2u(C_OFF)), vM[u]))
    a(label(lbl_skip))
    for u in range(2):
        for r in range(16): a(valu('v_sub_f32', vC(u)[r], 0, vM[u]))
    a(valu('v_mov_b32', vK, vL16)); a(valu('v_mov_b32', vVa, V(17))); a(valu('v_mov_b32', vChk, 0))
    a(ds_read('ds_read_b128', vKf[0], vK, KBASE))
    return o

def a_epilogue(check):
    o = []; a = o.append
    a(valu('v_mov_b32', vT[4], 0)); a(valu('v_mov_b32', vT[2], hexs(f2u(2.0 ** 100)))); a(valu('v_mov_b32', vT[3], '0x7fc00000'))
    for u in range(2):
        O = vO(u); pk = vP(0, u)
        if check: a(vcmp('v_cmp_nle_f32', 'vcc', O[8], vT[2]))
        a(valu('v_rcp_f32', vT[1], O[8])); a(nop(0))
        if check: a(valu('v_cndmask_b32', vChk, vChk, vT[3]))
        for r in range(8): a(valu('v_mul_f32', O[r], O[r], vT[1]))
        for r in range(4): a(valu('v_cvt_pk_bf16_f32', pk[r], O[2 * r], O[2 * r + 1]))
        if check:
            for r in range(4): a(valu('v_dot2_f32_bf16', vChk, pk[r], vT[4], vChk))
        a(bstore(pk[0:4], vL16, srdWS, sOoff, 0))
        if u == 0: a(salu('s_add_u32', sOoff, sOoff, 32768))
    a(salu('s_sub_u32', sOoff, sOoff, 32768))
    return o

def reduce_store():
    vSum = V(32, 16); vIn = V(48, 16); vPk = V(64, 8); vOo = V(3)
    o = []; a = o.append
    a(salu('s_lshl_b32', sTmp[0], sWV, 14)); a(valu('v_add_u32', vT[0], sTmp[0], vL16))
    for bl in range(4):
        for q in range(4): a(ds_write('ds_write_b128', vT[0], accB(bl >> 1, bl & 1)[4 * q:4 * q + 4], (bl * 4 + q) * 1024))
    a(valu('v_and_b32', vT[2], 31, vLane)); a(valu('v_lshlrev_b32', vT[2], 11, vT[2]))
    a(valu('v_lshrrev_b32', vT[3], 5, vLane)); a(valu('v_lshl_add_u32', vOo, vT[3], 4, vT[2]))
    a(waitlgkm0()); a(barrier())
    a(salu('s_lshl_b32', sTmp[0], sWV, 12)); a(valu('v_add_u32', vT[1], sTmp[0], vL16))
    for q in range(4): a(ds_read('ds_read_b128', vSum[4 * q:4 * q + 4], vT[1], q * 1024))
    for src in range(1, 4):
        for q in range(4): a(ds_read('ds_read_b128', vIn[4 * q:4 * q + 4], vT[1], src * 16384 + q * 1024))
        for r in range(16): a(valu('v_add_f32', vSum[r], vSum[r], vIn[r]))
    for r in range(8): a(valu('v_cvt_pk_bf16_f32', vPk[r], vSum[2 * r], vSum[2 * r + 1]))
    a(nop(1))
    a(valu('v_permlane32_swap_b32', vPk[0], vPk[2])); a(valu('v_permlane32_swap_b32', vPk[1], vPk[3]))
    a(valu('v_permlane32_swap_b32', vPk[4], vPk[6])); a(valu('v_permlane32_swap_b32', vPk[5], vPk[7]))
    a(salu('s_lshl_b32', sTmp[0], sTT, 6)); a(salu('s_and_b32', sTmp[1], sWV, 1)); a(salu('s_lshl_b32', sTmp[1], sTmp[1], 5))
    a(salu('s_add_u32', sTmp[0], sTmp[0], sTmp[1])); a(salu('s_lshl_b32', sTmp[0], sTmp[0], 11))
    a(salu('s_lshl_b32', sTmp[1], sNT, 7)); a(salu('s_add_u32', sTmp[0], sTmp[0], sTmp[1]))
    a(salu('s_lshr_b32', sTmp[1], sWV, 1)); a(salu('s_lshl_b32', sTmp[1], sTmp[1], 6)); a(salu('s_add_u32', sTmp[0], sTmp[0], sTmp[1]))
    a(salu('s_add_u32', sTmp[0], sTmp[0], 1024))
    a(bstore(vPk[0:4], vOo, srdO, sTmp[0], 0)); a(bstore(vPk[4:8], vOo, srdO, sTmp[0], 32))
    return o

def gen(opts=None):
    opts = opts or {}
    prof = bool(int(opts.get('prof', 0)))
    ST = Stamps(60, prof, 2)
    _lab[0] = 0
    o = []; a = o.append
    o += ST.stamp(real=True) + ST.stamp()
    a(salu('s_cmp_ge_u32', None, sWG, 256)); a(branch('s_cbranch_scc1', PFX + '_end'))
    a(raw("s_load_dwordx2 s[20:21], s[0:1], 88", wr=['s20', 's21']))
    a(raw("s_load_dwordx2 s[46:47], s[0:1], 72", wr=['s46', 's47']))
    a(salu('s_and_b32', sH, sWG, 7)); a(salu('s_lshr_b32', sTmp[0], sWG, 3)); a(salu('s_and_b32', sTmp[0], sTmp[0], 3))
    a(salu('s_lshl_b32', sTT, sH, 2)); a(salu('s_add_u32', sTT, sTT, sTmp[0]))
    a(salu('s_lshl_b32', sTmp[0], sTmp[0], 3)); a(salu('s_add_u32', sH, sH, sTmp[0]))
    a(salu('s_lshr_b32', sQG, sWG, 5)); a(salu('s_mov_b32', sNT, sQG))
    a(valu('v_lshrrev_b32', vT[0], 6, V(0))); a(valu('v_and_b32', vLane, 63, V(0))); a(nop(0))
    a(valu('v_readfirstlane_b32', sWV, vT[0]))
    a(valu('v_lshlrev_b32', vL16, 4, vLane))
    a(raw("s_waitcnt lgkmcnt(0)", kind='waitlgkm0'))
    o += set_srd(srdWS, sWSP, WS_USED)
    for srd, reg in ((srdK, WS_KA), (srdV, WS_VA)):
        a(salu('s_lshl_b32', sTmp[0], sH, 16)); a(salu('s_add_u32', sTmp[0], sTmp[0], hexs(reg)))
        a(salu('s_add_u32', srd[0], sWSP[0], sTmp[0])); a(salu('s_addc_u32', srd[1], sWSP[1], 0))
        a(salu('s_and_b32', srd[1], srd[1], '0xffff'))
        a(salu('s_mov_b32', srd[2], hexs(65536))); a(salu('s_mov_b32', srd[3], '0x20000'))
    a(salu('s_lshl_b32', sTmp[1], sQG, 3)); a(salu('s_lshl_b32', sTmp[2], sWV, 1)); a(salu('s_add_u32', sTmp[1], sTmp[1], sTmp[2]))
    a(salu('s_lshl_b32', sTmp[0], sH, 6)); a(salu('s_add_u32', sTmp[0], sTmp[0], sTmp[1]))
    a(salu('s_lshl_b32', sTmp[0], sTmp[0], 10)); a(salu('s_add_u32', sQoff, sTmp[0], hexs(WS_QA)))
    a(salu('s_lshl_b32', sTmp[1], sTmp[1], 15)); a(salu('s_lshl_b32', sTmp[2], sH, 10)); a(salu('s_add_u32', sTmp[1], sTmp[1], sTmp[2]))
    a(salu('s_add_u32', sOoff, sTmp[1], hexs(WS_CTXA)))
    a(salu('s_lshl_b32', sOff, sWV, 12))
    o += a_dma(0)
    for u in range(2): a(bload(vQ[u], vL16, srdWS, sQoff, u * 1024))
    a(salu('s_lshl_b32', sTmp[0], sWV, 16))
    a(salu('s_lshl_b32', sTmp[1], sTT, 19)); a(salu('s_add_u32', sTmp[1], sTmp[1], sTmp[0]))
    a(salu('s_add_u32', sX[0], sTmp[1], hexs(WS_CTXB))); a(salu('s_add_u32', sX[1], sX[0], hexs(256 * 1024)))
    a(salu('s_lshl_b32', sTmp[1], sNT, 19)); a(salu('s_add_u32', sTmp[1], sTmp[1], sTmp[0]))
    a(salu('s_add_u32', sW[0], sTmp[1], hexs(WS_WOB))); a(salu('s_add_u32', sW[1], sW[0], hexs(256 * 1024)))
    for i in range(4): o += b_loads(i, i & 3)
    o += b_adv()
    o += a_dma(1)
    for i in range(4, 8): o += b_loads(i, i & 3)
    o += b_adv()
    o += set_srd(srdO, sOUT, 2048 * 1024 * 2)
    for r in range(4): a(valu('v_mov_b32', vT[r], '0x3f803f80'))
    a(salu('s_lshl_b32', sTmp[0], sWV, 10)); a(salu('s_add_u32', sTmp[0], sTmp[0], hexs(ONES)))
    a(valu('v_add_u32', vT[4], sTmp[0], vL16))
    a(ds_write('ds_write_b128', vT[4], V(vT[0].i, 4)))
    a(valu('v_mov_b32', vT[5], 0)); a(valu('v_mov_b32', vT[6], hexs(FLAG)))
    a(ds_write('ds_write_b32', vT[6], vT[5]))
    a(valu('v_lshrrev_b32', vT[0], 5, vLane)); a(valu('v_lshlrev_b32', vT[0], 8, vT[0]))
    a(valu('v_and_b32', vT[1], 15, vLane)); a(valu('v_lshl_add_u32', vT[0], vT[1], 4, vT[0]))
    a(valu('v_add_u32', vT[0], hexs(VBASE - 1024), vT[0]))
    a(valu('v_add_u32', vT[2], 4, vT[1])); a(valu('v_bfe_u32', vT[2], vT[2], 3, 1))
    a(valu('v_lshlrev_b32', vT[2], 6, vT[2])); a(valu('v_add_u32', vT[2], hexs(ONES), vT[2]))
    a(valu('v_and_b32', vT[3], 16, vLane))
    a(vcmp('v_cmp_eq_u32', 'vcc', 0, vT[3]))
    a(valu('v_mov_b32', vT[4], 4096)); a(valu('v_mov_b32', vT[5], 0))
    a(valu('v_cndmask_b32', V(17), vT[2], vT[0]))
    a(valu('v_cndmask_b32', vVinc, vT[5], vT[4]))
    a(salu('s_mov_b32', sMode, 0))
    a(waitvm(need=[('K', 0), ('V', 0)])); a(waitlgkm0()); a(barrier())
    o += a_sample_and_init(newlabel('m'))
    pro = o + ST.stamp()
    g2 = a_dma(2); g3 = a_dma(3)
    ex0 = [g2[:6], g2[6:], g3[:6], g3[6:]]
    B0 = [label(PFX + '_B0')] + abody(0, first=True, bbase=0, bfirst=True, extras=ex0) + abody(1, bbase=4)
    B1 = [label(PFX + '_B1')] + abody(2, bbase=0) + abody(3, bar=[('K', 3), ('V', 3)], bbase=4) + [salu('s_mov_b32', sCnt, 5)]
    BL = [label(PFX + '_BL')] + abody(0, bbase=0) + abody(1, bbase=4)
    gL = [salu('s_sub_u32', sCnt, sCnt, 1), salu('s_cmp_lg_u32', None, sCnt, 0), branch('s_cbranch_scc1', PFX + '_BL')]
    BE = abody(0, bbase=0, reload=False) + abody(1, bbase=4, reload=False)
    TL = iteration(0, qk=False, sm=True, pv=True, next_k=False, next_v=True) + iteration(1, qk=False, sm=False, pv=True, next_k=False, next_v=False)
    mid = ST.stamp()
    epi = a_epilogue(True)
    a = epi.append
    a(vcmp('v_cmp_u_f32', 'vcc', vChk, vChk))
    a(valu('v_mov_b32', vT[1], hexs(FLAG))); a(valu('v_mov_b32', vT[0], 1))
    lf = newlabel('f')
    a(nop(2)); a(branch('s_cbranch_vccz', lf))
    a(ds_write('ds_write_b32', vT[1], vT[0]))
    a(label(lf))
    a(waitlgkm0()); a(barrier())
    a(ds_read('ds_read_b32', vT[2], vT[1]))
    a(valu('v_readfirstlane_b32', sTmp[0], vT[2]))
    a(salu('s_cmp_eq_u32', None, sTmp[0], 0)); a(branch('s_cbranch_scc1', PFX + '_red'))
    o = []; a = o.append
    for u in range(2): a(valu('v_mov_b32', vM[u], NEG_INF))
    a(valu('v_mov_b32', vK, vL16)); a(salu('s_mov_b32', sCnt, 64))
    a(label(PFX + '_safe_loop'))
    a(ds_read('ds_read_b128', vKf[0], vK, KBASE))
    for u in range(2): a(mfma32(vS(0, u), vKf[0], vQ[u], 0))
    a(nop(7)); a(nop(3))
    for u in range(2):
        for r in range(0, 16, 2): a(valu('v_max3_f32', vM[u], vM[u], vS(0, u)[r], vS(0, u)[r + 1]))
    a(valu('v_add_u32', vK, 1024, vK))
    a(salu('s_sub_u32', sCnt, sCnt, 1)); a(salu('s_cmp_lg_u32', None, sCnt, 0)); a(branch('s_cbranch_scc1', PFX + '_safe_loop'))
    for u in range(2):
        a(valu('v_mov_b32', vT[u], vM[u])); a(nop(1))
        a(valu('v_permlane32_swap_b32', vT[u], vM[u]))
        a(valu('v_max_f32', vM[u], vM[u], vT[u]))
    a(salu('s_mov_b32', sMode, 1))
    o += a_sample_and_init(newlabel('m'))
    safe1 = o
    SF = abody(0, first=True) + [salu('s_mov_b32', sCnt, 15)]
    SP = [label(PFX + '_SP')] + abody(0)
    gS = [salu('s_sub_u32', sCnt, sCnt, 1), salu('s_cmp_lg_u32', None, sCnt, 0), branch('s_cbranch_scc1', PFX + '_SP')]
    STL = iteration(0, qk=False, sm=True, pv=True, next_k=False, next_v=True) + iteration(1, qk=False, sm=False, pv=True, next_k=False, next_v=False)
    sepi = a_epilogue(False) + [waitlgkm0(), barrier()]
    red = [label(PFX + '_red')] + ST.stamp() + reduce_store()
    fin = ([waitvm(n=0)] if prof else []) + ST.stamp() + ST.stamp(real=True) + ST.flush(sWG, sWV, sWSP, srdK, vT[0], vT[1], sTmp[0]) + [label(PFX + '_end')]
    code = pro + B0 + B1 + BL + gL + BE + TL + mid + epi + safe1 + SF + SP + gS + STL + sepi + red + fin
    main = pro + B0 + B1 + BL + gL + BL + gL + BE + TL + mid + epi
    traces = [T(main + red + fin), T(main + safe1 + SF + SP + gS + SP + gS + STL + sepi + red + fin)]
    resolve_waits(traces)
    fix_hazards(traces, name='fuse3', verbose=bool(int(opts.get('verbose', 0))))
    return render(code)
if __name__ == '__main__':
    t = gen({'verbose': 1}); print(len(t.splitlines()))
```

```python
from common import *
GRID = 256
LDS_BYTES = 65536
NVGPR, ACCOFF = 384, 256
PFX = 'L_o'
sWG = S(2)
srdWS, srdO = S(8, 4), S(12, 4)
sWSP, sOUT = S(20, 2), S(18, 2)
sTT, sNT, sWV = S(22), S(23), S(24)
sX = [S(25), S(26)]; sW = [S(27), S(28)]
sCnt = S(29)
sTmp = S(32, 6)
vLane = V(1); vL16 = V(2); vO = V(3); vR = V(4)
vT = [V(8 + i) for i in range(8)]
vSum = V(32, 16); vIn = V(48, 16); vPk = V(64, 8)
DEPTH = 8
def buf(i): return V(128 + 16 * i, 16)
def accB(nb, tb): return A((nb * 2 + tb) * 16, 16)
def accA(nb, tb): return A(64 + (nb * 2 + tb) * 16, 16)

def loads(i, q):
    b = buf(i)
    return [bload(b[0:4], vL16, srdWS, sX[0], q * 1024), bload(b[8:12], vL16, srdWS, sW[0], q * 1024),
            bload(b[4:8], vL16, srdWS, sX[1], q * 1024), bload(b[12:16], vL16, srdWS, sW[1], q * 1024)]
def adv(): return [salu('s_add_u32', x, x, 4096) for x in sX + sW]
def mm(i, acc, first):
    b = buf(i); o = []
    for nb in range(2):
        for tb in range(2):
            o.append(mfma32(acc(nb, tb), b[8 + 4 * nb:12 + 4 * nb], b[4 * tb:4 * tb + 4], 0 if first else acc(nb, tb)))
    return o
def setoffs(region_x, region_w, nks, per_wave):
    o = []; a = o.append
    a(salu('s_mul_i32', sTmp[0], sWV, per_wave * 1024))
    a(salu('s_mul_i32', sTmp[1], sTT, 2 * nks * 1024)); a(salu('s_add_u32', sTmp[1], sTmp[1], sTmp[0]))
    a(salu('s_add_u32', sX[0], sTmp[1], hexs(region_x))); a(salu('s_add_u32', sX[1], sX[0], hexs(nks * 1024)))
    a(salu('s_mul_i32', sTmp[1], sNT, 2 * nks * 1024)); a(salu('s_add_u32', sTmp[1], sTmp[1], sTmp[0]))
    a(salu('s_add_u32', sW[0], sTmp[1], hexs(region_w))); a(salu('s_add_u32', sW[1], sW[0], hexs(nks * 1024)))
    return o
def reduce_store(acc, colbase):
    o = []; a = o.append
    a(salu('s_lshl_b32', sTmp[0], sWV, 14)); a(valu('v_add_u32', vT[0], sTmp[0], vL16))
    for bl in range(4):
        for q in range(4):
            a(ds_write('ds_write_b128', vT[0], acc(bl >> 1, bl & 1)[4 * q:4 * q + 4], (bl * 4 + q) * 1024))
    a(waitlgkm0()); a(barrier())
    a(salu('s_lshl_b32', sTmp[0], sWV, 12)); a(valu('v_add_u32', vT[1], sTmp[0], vL16))
    for q in range(4): a(ds_read('ds_read_b128', vSum[4 * q:4 * q + 4], vT[1], q * 1024))
    for src in range(1, 4):
        for q in range(4): a(ds_read('ds_read_b128', vIn[4 * q:4 * q + 4], vT[1], src * 16384 + q * 1024))
        for r in range(16): a(valu('v_add_f32', vSum[r], vSum[r], vIn[r]))
    for r in range(8): a(valu('v_cvt_pk_bf16_f32', vPk[r], vSum[2 * r], vSum[2 * r + 1]))
    a(nop(1))
    a(valu('v_permlane32_swap_b32', vPk[0], vPk[2])); a(valu('v_permlane32_swap_b32', vPk[1], vPk[3]))
    a(valu('v_permlane32_swap_b32', vPk[4], vPk[6])); a(valu('v_permlane32_swap_b32', vPk[5], vPk[7]))
    a(salu('s_lshl_b32', sTmp[0], sTT, 6)); a(salu('s_and_b32', sTmp[1], sWV, 1)); a(salu('s_lshl_b32', sTmp[1], sTmp[1], 5))
    a(salu('s_add_u32', sTmp[0], sTmp[0], sTmp[1])); a(salu('s_lshl_b32', sTmp[0], sTmp[0], 11))
    a(salu('s_lshl_b32', sTmp[1], sNT, 7)); a(salu('s_add_u32', sTmp[0], sTmp[0], sTmp[1]))
    a(salu('s_lshr_b32', sTmp[1], sWV, 1)); a(salu('s_lshl_b32', sTmp[1], sTmp[1], 6)); a(salu('s_add_u32', sTmp[0], sTmp[0], sTmp[1]))
    a(salu('s_add_u32', sTmp[0], sTmp[0], hexs(colbase * 2)))
    a(bstore(vPk[0:4], vO, srdO, sTmp[0], 0)); a(bstore(vPk[4:8], vO, srdO, sTmp[0], 32))
    return o

def gen(opts=None):
    if (opts or {}).get('aonly', '0') == '1': return gen_a(opts)
    return gen_full(opts)

def gen_a(opts):
    prof = bool(int(opts.get('prof', 0)))
    ST = Stamps(60, prof, 3)
    o = header(ST)
    o += setoffs(WS_CTXA, WS_WOA, 32, 8)
    for i in range(DEPTH):
        o += loads(i, i & 3)
        if i & 3 == 3: o += adv()
    o += ST.stamp()
    for i in range(DEPTH): o += mm(i, accA, i == 0)
    o += ST.stamp()
    o += reduce_store(accA, 0)
    o += ([waitvm(n=0)] if prof else []) + ST.stamp() + ST.stamp(real=True) + ST.flush(sWG, sWV, sWSP, srdWS, vT[0], vT[1], sTmp[0]) + [label(PFX + '_end')]
    traces = [T(o)]
    resolve_waits(traces)
    fix_hazards(traces, name='oprojA', verbose=False)
    return render(o)

def header(ST):
    o = []; a = o.append
    o += ST.stamp(real=True) + ST.stamp()
    a(salu('s_cmp_ge_u32', None, sWG, 256)); a(branch('s_cbranch_scc1', PFX + '_end'))
    a(raw("s_load_dwordx2 s[20:21], s[0:1], 88", wr=['s20', 's21']))
    a(raw("s_load_dwordx2 s[18:19], s[0:1], 72", wr=['s18', 's19']))
    a(salu('s_and_b32', sTmp[0], sWG, 7)); a(salu('s_lshr_b32', sTmp[1], sWG, 3))
    a(salu('s_lshl_b32', sTT, sTmp[0], 2)); a(salu('s_and_b32', sTmp[2], sTmp[1], 3)); a(salu('s_add_u32', sTT, sTT, sTmp[2]))
    a(salu('s_lshr_b32', sNT, sTmp[1], 2))
    a(valu('v_lshrrev_b32', vT[0], 6, V(0))); a(valu('v_and_b32', vLane, 63, V(0))); a(nop(0))
    a(valu('v_readfirstlane_b32', sWV, vT[0]))
    a(valu('v_lshlrev_b32', vL16, 4, vLane))
    a(valu('v_and_b32', vT[0], 31, vLane)); a(valu('v_lshlrev_b32', vT[0], 11, vT[0]))
    a(valu('v_lshrrev_b32', vT[1], 5, vLane)); a(valu('v_lshl_add_u32', vO, vT[1], 4, vT[0]))
    a(raw("s_waitcnt lgkmcnt(0)", kind='waitlgkm0'))
    o += set_srd(srdWS, sWSP, WS_USED)
    o += set_srd(srdO, sOUT, 2048 * 1024 * 2)
    return o

def gen_full(opts):
    opts = opts or {}
    prof = bool(int(opts.get('prof', 0)))
    ST = Stamps(60, prof, 3)
    o = []; a = o.append
    o += header(ST)
    o += setoffs(WS_CTXB, WS_WOB, 256, 64)
    for i in range(DEPTH):
        o += loads(i, i & 3)
        if i & 3 == 3: o += adv()
    pro = o + ST.stamp()
    def body(name, first, reload, acc):
        o = [label(name)]
        for i in range(DEPTH):
            ms = mm(i, acc, first and i == 0)
            o += ms
            if reload:
                o += loads(i, i & 3)
                if i & 3 == 3: o += adv()
        return o
    F = body(PFX + '_F', True, True, accB)
    gF = [salu('s_mov_b32', sCnt, 6)]
    L = body(PFX + '_L', False, True, accB)
    gL = [salu('s_sub_u32', sCnt, sCnt, 1), salu('s_cmp_lg_u32', None, sCnt, 0), branch('s_cbranch_scc1', PFX + '_L')]
    LB = setoffs(WS_CTXA, WS_WOA, 32, 8) + body(PFX + '_LB', False, True, accB)
    LA = body(PFX + '_LA', True, False, accA)
    mid = ST.stamp()
    rB = reduce_store(accB, 512)
    rA = [waitlgkm0(), barrier()] + reduce_store(accA, 0)
    fin = ([waitvm(n=0)] if prof else []) + ST.stamp() + ST.stamp(real=True) + ST.flush(sWG, sWV, sWSP, srdWS, vT[0], vT[1], sTmp[0]) + [label(PFX + '_end')]
    code = pro + F + gF + L + gL + LB + LA + mid + rB + rA + fin
    traces = [T(pro + F + gF + L + gL + L + gL + L + gL + LB + LA + mid + rB + rA + fin)]
    resolve_waits(traces)
    fix_hazards(traces, name='oproj', verbose=bool(int(opts.get('verbose', 0))))
    return render(code)
if __name__ == '__main__':
    t = gen({'verbose': 1}); print(len(t.splitlines()))
```

```python
from common import *
import k_proj as P
import k_battn as B
from k_proj import *

LDS_BYTES = 163840
sDBG = S(100, 2)
SPIN_MAX = 400000

def configure_B():
    B.srdK, B.srdV, B.srdWS = S(60, 4), S(64, 4), P.srdWS
    B.sWSP, B.sH, B.sI, B.sWV = P.sWSP, P.sH, P.sG, P.sWV
    B.sKa, B.sKb, B.sVa, B.sVb = S(68), S(69), S(70), S(71)
    B.sKoff, B.sVoff, B.sCnt = S(72), S(73), S(74)
    B.sTmp = S(76, 6); B.sMode = S(82); B.sQoff = S(83, 2); B.sNb = S(85)
    B.vLane, B.vL16, B.vD = P.vLane, P.vL16, V(1)
    B.vKa, B.vKb, B.vVa, B.vVb = V(10), V(11), V(12), V(13)
    B.vT = [V(2 + i) for i in range(8)]
    B.vL = [[V(16), V(17)], [V(18), V(19)]]
    B.vM = [V(14), V(15)]; B.vChk = V(20)

def ids_pb():
    o = []; a = o.append
    a(salu('s_and_b32', sH, sWG, 7)); a(salu('s_lshr_b32', sTmp[0], sWG, 3)); a(salu('s_and_b32', sTmp[0], sTmp[0], 3))
    a(salu('s_lshl_b32', sTmp[0], sTmp[0], 3)); a(salu('s_add_u32', sH, sH, sTmp[0]))
    a(salu('s_lshr_b32', sG, sWG, 5))
    a(valu('v_lshrrev_b32', vT[0], 6, V(0))); a(valu('v_and_b32', vLane, 63, V(0))); a(nop(0))
    a(valu('v_readfirstlane_b32', sWV, vT[0]))
    return o

def q_xvoff():
    o = []; a = o.append; l = vLane
    a(salu('s_lshl_b32', sTmp[0], sG, 17)); a(salu('s_lshl_b32', sTmp[1], sWV, 15)); a(salu('s_add_u32', sTmp[0], sTmp[0], sTmp[1]))
    a(salu('s_sub_u32', sTmp[2], 15, sG)); a(salu('s_lshl_b32', sTmp[2], sTmp[2], 17)); a(salu('s_add_u32', sTmp[2], sTmp[2], sTmp[1]))
    a(valu('v_lshrrev_b32', vT[0], 3, l)); a(valu('v_lshlrev_b32', vT[0], 10, vT[0]))
    a(valu('v_and_b32', vT[1], 7, l)); a(valu('v_lshrrev_b32', vT[2], 4, l))
    for p_ in range(8):
        a(valu('v_add_u32', vT[3], 4 * (p_ & 1), vT[2])); a(valu('v_xor_b32', vT[3], vT[3], vT[1]))
        a(valu('v_lshl_add_u32', vT[3], vT[3], 4, vT[0]))
        a(valu('v_add_u32', vT[3], hexs((p_ & 3) * 8192 - (p_ & 3) * 1024), vT[3]))
        a(valu('v_add_u32', vXd[p_], sTmp[0] if p_ < 4 else sTmp[2], vT[3]))
    a(salu('s_mov_b32', sXoff, 0))
    return o
def q_wsetup():
    return set_srd(srdW, sPTR['B_w_q'], 4 * MB) + [salu('s_lshl_b32', sWoff, sH, 8), salu('s_lshl_b32', sTmp[2], sWV, 17), salu('s_add_u32', sWoff, sWoff, sTmp[2])] + w_dma_voff(4, 8192)

def mdiag5():
    o = []; a = o.append
    a(valu('v_and_b32', vT[0], 31, vLane)); a(valu('v_lshrrev_b32', vT[1], 5, vLane)); a(valu('v_lshlrev_b32', vT[1], 2, vT[1]))
    a(valu('v_sub_u32', vT[0], vT[0], vT[1])); a(valu('v_mov_b32', vT[2], B.NEG_INF)); a(valu('v_mov_b32', vT[3], 0))
    for r in range(16):
        kk = 8 * (r >> 2) + (r & 3)
        a(vcmp('v_cmp_le_i32', 'vcc', kk, vT[0])); a(nop(1))
        a(valu('v_cndmask_b32', vT[4], vT[2], vT[3])); a(accwr(B.aMd[r], vT[4]))
    return o

def dbg_srd(): return [salu('s_mov_b32', srdT[0], sDBG[0]), salu('s_and_b32', srdT[1], sDBG[1], '0xffff'), salu('s_mov_b32', srdT[2], 256), salu('s_mov_b32', srdT[3], '0x20000')]
def signal_snip(lbl):
    o = [salu('s_cmp_lg_u32', None, sWV, 0), branch('s_cbranch_scc1', lbl)]
    o += [salu('s_lshl_b32', sTmp[0], sH, 2), valu('v_mov_b32', vT[0], sTmp[0]), valu('v_mov_b32', vT[1], 1),
          raw("s_mov_b64 exec, 1", wr=['exec']), nop(1),
          Ins(f"buffer_atomic_add {vT[1]}, {vT[0]}, {srdT}, 0 offen sc1", 'raw_vmem', rd=vT[0].regs() + vT[1].regs() + srdT.regs()),
          raw("s_mov_b64 exec, -1", wr=['exec']), nop(3), label(lbl)]
    return o

def gen(opts=None):
    opts = opts or {}
    prof = bool(int(opts.get('prof', 0))); touch = bool(int(opts.get('touch', 1)))
    kvflags = opts.get('kvflags', 'sc1'); aflags = opts.get('aflags', '')
    P.NOSTORE = False
    configure_B(); B.set_opts(opts); B._lab[0] = 0
    ST = Stamps(86, prof, 1)
    K = Pass('K', 0, 4, 'K', C_B); Vp = Pass('V', 8, 4, 'V', None); Q = Pass('Q', 24, 4, 'K', None)
    variants = {'AQ': Pass('AQK', 16, 2, 'K', C_A), 'AK': Pass('AQK', 16, 2, 'K', None), 'AV': Pass('AV', 16, 2, 'V', None)}
    LAST = 31
    def rowstride(t): return 3072 if 16 <= t < 24 else 8192
    def NBof(t): return 2 if 16 <= t < 24 else 4
    def xi_of(t): return t if t < 8 else (None if t < 16 else t - 8)
    def xf(ps, st, tb, ks): return A((((st & 1) * 2 + tb) * 4 + ks) * 4, 4) if ps.name == 'Q' else xfrag(st, tb, ks)
    def x_reads2(t, xi):
        slot = xi % 3; out = []; st = t % 8
        for tb in range(2):
            for ks in range(4):
                addr = vXa[ks] if slot < 2 else vXb[ks]
                dst = xf(Q, st, tb, ks) if t >= 24 else xfrag(st, tb, ks)
                out.append(ds_read('ds_read_b128', dst, addr, (XSLOT[slot] if slot < 2 else 0) + tb * 4096))
        return out
    gaps = {}
    def G(t, g):
        n = NBof(t) * 8
        while g >= n: g -= n; t += 1; n = NBof(t) * 8
        return gaps.setdefault((t, g), [])
    def spread(t, ins, g0, g1):
        if not ins: return
        per = (len(ins) + (g1 - g0) - 1) // (g1 - g0)
        for i, x in enumerate(ins): G(t, g0 + i // per).append(x)
    def mfmas(ps, t):
        st = t - ps.t0; out = []
        for nb in range(ps.NB):
            for tb in range(2):
                for ks in range(4):
                    wf = vWf[nb & 1][4 * ks:4 * ks + 4]; x_ = xf(ps, st, tb, ks)
                    c = 0 if (st == 0 and ks == 0) else acc(nb, tb)
                    out.append(mfma32(acc(nb, tb), wf, x_, c) if ps.typ == 'K' else mfma32(acc(nb, tb), x_, wf, c))
        return out
    def common_fill(ps, t, extra_need=()):
        NB = ps.NB; n = NB * 8
        for nb in range(NB):
            if nb + 1 < NB: rs = w_reads(t, nb + 1, NB)
            elif t + 1 <= LAST: rs = w_reads(t + 1, 0, NBof(t + 1))
            else: rs = []
            for i, r in enumerate(rs): G(t, 8 * nb + i).append(r)
        bar = n - 9
        if t + 1 <= LAST: G(t, bar).append(waitvm(need=[('W', t + 1)] + list(extra_need))); G(t, bar).append(barrier())
        wins = []
        if t + 3 <= LAST:
            pre = []
            if t + 3 == 8: pre = switch_w('B_w_uv', [salu('s_sub_u32', sWoff, sWoff, hexs(512 * 8192))])
            if t + 3 == 16:
                pre = switch_w('A_wqkv', [salu('s_lshl_b32', sWoff, sH, 7), salu('s_mul_i32', sTmp[2], sWV, 16 * 3072), salu('s_add_u32', sWoff, sWoff, sTmp[2])])
                pre += w_dma_voff(2, 3072)
            if t + 3 == 24: pre = q_wsetup()
            wins = pre + w_dma(t + 3, NBof(t + 3), rowstride(t + 3))
        xin = xi_of(t + 1) if t + 1 <= LAST else None
        if xin is not None:
            g0 = n - 10
            G(t, g0).append(waitvm(need=[('X', xin)]))
            for i, r in enumerate(x_reads2(t + 1, xin)): G(t, g0 + i).append(r)
        xi = xi_of(t); xins = []
        if xi is not None and xi + 3 <= 23:
            pre = []
            if xi + 3 == 8: pre = switch_x('A_x')
            if xi + 3 == 16: pre = set_srd(srdX, sPTR['B_x'], 2 * MB) + q_xvoff()
            xins = pre + x_dma(xi + 3)
        if NB == 4: spread(t, xins, 8, bar); spread(t, wins, bar + 1, n)
        else: spread(t, wins + xins, bar + 1, n)

    def tagged(lst, tag):
        for x in lst:
            if x.kind == 'vstore': x.tag = tag
        return lst
    for ps in (K, Vp):
        for t in range(ps.t0, ps.t0 + 8): common_fill(ps, t)
    spread(7, epi_setup(K), 1, 5)
    for nb in range(4):
        for tb in range(2):
            b = nb * 2 + tb
            ins = cvt_block(K, nb, tb)
            for i, x in enumerate(ins): G(7, 4 * b + 7 + (i * 5) // len(ins)).append(x)
            for i, x in enumerate(store_block(K, nb, tb, kvflags)): G(8 + b, (9 if b == 0 else 3) + 6 * i).append(x)
    if touch:
        tl = touch_list()
        spread(8, [x for g in tl for x in g], 8, 23)
    spread(15, epi_setup(Vp), 11, 15)
    vcvt = []
    for nb in range(4):
        for tb in range(2):
            b = nb * 2 + tb
            for i, x in enumerate(cvt_block(Vp, nb, tb)): vcvt.append((4 * b + 7 + i // 2, x))
    for g, x in vcvt:
        if g < 32: G(15, g).append(x)
    ar = w_read_addr(2, dst=[vWa[0], vT[4]])
    spread(15, ar, 16, 23)
    G(15, 23).append(valu('v_mov_b32', vWa[1], vT[4]))

    pro = ST.stamp(real=True) + ST.stamp()
    a = pro.append
    a(salu('s_cmp_ge_u32', None, sWG, 256)); a(branch('s_cbranch_scc1', 'L_b_end'))
    a(raw("s_load_dwordx16 s[20:35], s[0:1], 0", wr=[f"s{i}" for i in range(20, 36)]))
    a(raw("s_load_dwordx2 s[36:37], s[0:1], 64", wr=['s36', 's37']))
    a(raw("s_load_dwordx2 s[38:39], s[0:1], 88", wr=['s38', 's39']))
    a(raw("s_load_dwordx2 s[100:101], s[0:1], 80", wr=['s100', 's101']))
    pro += ids_pb() + x_dma_voff() + w_dma_voff(4, 8192)
    a(salu('s_lshl_b32', sXlds, sWV, 13)); a(salu('s_lshl_b32', sWlds, sWV, 12))
    a(salu('s_lshl_b32', sXoff, sG, 18)); a(salu('s_lshl_b32', sTmp[0], sWV, 16)); a(salu('s_add_u32', sXoff, sXoff, sTmp[0]))
    a(salu('s_lshl_b32', sWoff, sH, 8)); a(salu('s_lshl_b32', sTmp[0], sWV, 17)); a(salu('s_add_u32', sWoff, sWoff, sTmp[0]))
    a(raw("s_waitcnt lgkmcnt(0)", kind='waitlgkm0'))
    pro += set_srd(srdX, sPTR['B_c_kv'], 2 * MB) + set_srd(srdW, sPTR['B_w_uk'], 4 * MB)
    start = x_dma(0) + w_dma(0, 4, 8192) + x_dma(1) + w_dma(1, 4, 8192) + x_dma(2) + w_dma(2, 4, 8192)
    start += x_read_addr() + w_read_addr(4) + [valu('v_lshlrev_b32', vL16, 4, vLane)] + set_srd(srdWS, sWSP, WS_USED)
    start += [waitvm(need=[('X', 0), ('W', 0)]), barrier()] + x_reads2(0, 0) + w_reads(0, 0, 4)
    main = []
    for ps in (K, Vp):
        for t in range(ps.t0, ps.t0 + 8):
            main.append(comment(f"stage {t} ({ps.name})"))
            for g, m in enumerate(mfmas(ps, t)): main.append(m); main += gaps.get((t, g), [])
    main = m0_peephole(main)
    def fresh(lst): return [Ins(x.text, x.kind, x.rd, x.wr) for x in lst]
    vSt = V(64)
    var_code = {}
    for vn, ps in variants.items():
        for k in [k for k in gaps if k[0] >= 16]: del gaps[k]
        for t in range(16, 24): common_fill(ps, t)
        for g, x in vcvt:
            if g >= 32: G(16, g - 32).append(Ins(x.text, x.kind, x.rd, x.wr))
        for nb in range(4):
            for tb in range(2):
                b = nb * 2 + tb
                for i, x in enumerate(tagged(store_block(Vp, nb, tb, kvflags), 'VS')): G(16 + (b * 6) // 7, (8 if b == 0 else 2) + 3 * i + (6 if b == 7 else 0)).append(x)
        spread(23, w_read_addr(4, dst=[vWa[0], vT[4], vWa[2], vWa[3]]), 0, 4)
        G(23, 9).append(valu('v_mov_b32', vWa[1], vT[4]))
        spread(23, epi_setup(ps), 4, 6)
        if ps.name == 'AV':
            l = vLane
            sv = [valu('v_bfe_u32', vT[0], l, 4, 1), valu('v_lshlrev_b32', vT[0], 16, vT[0]), valu('v_lshrrev_b32', vT[1], 5, l),
                  valu('v_lshl_add_u32', vT[0], vT[1], 8, vT[0]), valu('v_and_b32', vT[1], 15, l), valu('v_lshl_add_u32', vSt, vT[1], 4, vT[0])]
            spread(23, sv, 5, 7)
        tail = []
        for nb in range(2):
            for tb in range(2):
                b = nb * 2 + tb
                ins = cvt_block(ps, nb, tb) + store_block(ps, nb, tb, aflags, vSt)
                for i, x in enumerate(ins):
                    g = 4 * b + 7 + i // 5
                    if g < 16: G(23, g).append(x)
                    else: tail.append(x)
        code = [label(f"L_proj_{vn}")]
        for t in range(16, 24):
            code.append(comment(f"stage {t} ({vn})"))
            for g, m in enumerate(mfmas(ps, t)): code.append(m); code += gaps.get((t, g), [])
        var_code[vn] = m0_peephole(code) + tail + [branch('s_branch', 'L_Q')]
    tr = [label("L_proj_TR")] + fresh([x for g, x in vcvt if g >= 32])
    for nb in range(4):
        for tb in range(2): tr += tagged(store_block(Vp, nb, tb, kvflags), 'VS')
    trj = transpose_job(aflags)
    for x in trj:
        if x.kind == 'branch' and 'L_proj_fin' in x.text: x.text = x.text.replace('L_proj_fin', 'L_TR_done')
    tr += trj + [label('L_TR_done'), waitlgkm0(), barrier()]
    tr += set_srd(srdX, sPTR['B_x'], 2 * MB) + q_xvoff() + q_wsetup()
    tr += x_dma(16) + w_dma(24, 4, 8192) + x_dma(17) + w_dma(25, 4, 8192) + x_dma(18) + w_dma(26, 4, 8192)
    tr += w_read_addr(4)
    tr += [waitvm(need=[('X', 16), ('W', 24)]), barrier()] + x_reads2(24, 16) + w_reads(24, 0, 4)
    for k in [k for k in gaps if k[0] >= 24]: del gaps[k]
    for t in range(24, 32): common_fill(Q, t, extra_need=(['VS'] if t == 25 else []))
    G(25, 23).extend(dbg_srd() + signal_snip('L_sig'))
    spread(26, mdiag5(), 0, 22)
    vPoll = vT[2]
    G(28, 2).extend([salu('s_lshl_b32', sTmp[0], sH, 2), valu('v_mov_b32', vT[0], sTmp[0])])
    pl = bload(vPoll, vT[0], srdT, 0, 0, op='buffer_load_dword', flags='sc1', tag='POLL')
    G(28, 3).append(pl)
    chk = [waitvm(need=['POLL']), valu('v_readfirstlane_b32', sTmp[1], vPoll), salu('s_cmp_lt_u32', None, sTmp[1], 8), branch('s_cbranch_scc1', 'L_spin'), label('L_spin_ret'),
           salu('s_cmp_lg_u32', None, sWV, 0), branch('s_cbranch_scc1', 'L_noinv'), raw("buffer_inv sc1", kind='salu'), label('L_noinv')]
    G(29, 12).extend(chk)
    su = []
    su += [salu('s_lshl_b32', B.sTmp[0], sG, 2), salu('s_sub_u32', B.sNb, 64, B.sTmp[0])]
    for srd, reg in ((B.srdK, WS_KB), (B.srdV, WS_VB)):
        su += [salu('s_lshl_b32', B.sTmp[0], sH, 19), salu('s_add_u32', B.sTmp[0], B.sTmp[0], hexs(reg)),
               salu('s_add_u32', srd[0], sWSP[0], B.sTmp[0]), salu('s_addc_u32', srd[1], sWSP[1], 0), salu('s_and_b32', srd[1], srd[1], '0xffff'),
               salu('s_lshl_b32', srd[2], B.sNb, 13), salu('s_mov_b32', srd[3], '0x20000')]
    su += [salu('s_mov_b32', B.sMode, 0)] + B.ring_scalars()
    spread(29, su, 14, 22)
    G(30, 2).extend([salu('s_lshl_b32', B.sTmp[0], sWV, 11), valu('v_add_u32', B.vD, B.sTmp[0], vL16)])
    kv1 = B.dma_k(False, 0, ('K', 0)) + B.dma_k(False, 1, ('K', 1)) + B.dma_k(False, 2, ('K', 2)) + B.dma_v(False, 0, ('V', 0)) + \
          B.dma_k(False, 3, ('K', 3)) + B.dma_v(False, 1, ('V', 1)) + B.dma_v(False, 2, ('V', 2)) + B.dma_v(False, 3, ('V', 3))
    kv2 = B.dma_k(True, 0, ('K', 4)) + B.dma_k(True, 1, ('K', 5))
    spread(30, kv1[:16], 24, 32); spread(31, kv1[16:], 0, 12)
    qtail = []
    for nb in range(4):
        for u in range(2):
            b = nb * 2 + u; ac = acc(nb, u)
            ins = [valu('v_cvt_pk_bf16_f32', B.aQ(u, 2 * nb + (i >> 2))[i & 3], ac[2 * i], ac[2 * i + 1]) for i in range(8)]
            for i, x in enumerate(ins):
                g = 4 * b + 7 + i // 2
                if g < 32: G(31, g).append(x)
                else: qtail.append(x)
    qcode = [label('L_Q')] + ST.stamp()
    for t in range(24, 32):
        qcode.append(comment(f"stage {t} (Q)"))
        for g, m in enumerate(mfmas(Q, t)): qcode.append(m); qcode += gaps.get((t, g), [])
    qcode = m0_peephole(qcode) + [waitlgkm0(), barrier()] + kv2 + qtail + [branch('s_branch', 'L_b_start2')]
    spin = [label('L_spin'), salu('s_mov_b32', sTmp[3], SPIN_MAX), label('L_spin_loop'), raw("s_sleep 2"),
            bload(vPoll, vT[0], srdT, 0, 0, op='buffer_load_dword', flags='sc1'), waitvm(n=0), valu('v_readfirstlane_b32', sTmp[1], vPoll),
            salu('s_cmp_ge_u32', None, sTmp[1], 8), branch('s_cbranch_scc1', 'L_spin_ret'),
            salu('s_sub_u32', sTmp[3], sTmp[3], 1), salu('s_cmp_lg_u32', None, sTmp[3], 0), branch('s_cbranch_scc1', 'L_spin_loop'), branch('s_branch', 'L_spin_ret')]
    disp = [salu('s_cmp_ge_u32', None, sH, 24), branch('s_cbranch_scc1', 'L_proj_TR'),
            salu('s_cmp_ge_u32', None, sH, 16), branch('s_cbranch_scc1', 'L_proj_AV'),
            salu('s_cmp_ge_u32', None, sH, 8), branch('s_cbranch_scc1', 'L_proj_AK')]
    head = pro + start + main + disp
    acode, mk = B.attn_parts(ST, prof)
    pros = [head + var_code[vn] + qcode for vn in ('AQ', 'AK', 'AV')] + [head + tr + qcode]
    traces = mk(pros)
    traces.append(T(spin))
    resolve_waits(traces)
    fix_hazards(traces, name='pb', verbose=bool(int(opts.get('verbose', 0))))
    code = head + var_code['AQ'] + var_code['AK'] + var_code['AV'] + tr + qcode + spin + acode
    return render(code)

if __name__ == '__main__':
    t = gen({'verbose': 0}); print(len(t.splitlines()))
```

```python
from common import *

NAME = "proj_kernel"
LDS_BYTES = 163840
XSLOT = [0, 32768, 65536]
WBASE = 98304
WSLOT = [WBASE + 16384 * i for i in range(4)]
NOSTORE = False
TOUCH_MODE = 1
TOUCH_STAGE = 8
PKMUL = False

sWG = S(2)
PN = ['A_x', 'A_wqkv', 'A_wo', 'B_x', 'B_c_kv', 'B_w_q', 'B_w_uk', 'B_w_uv', 'B_w_o']
sPTR = {k: S(20 + 2 * i, 2) for i, k in enumerate(PN)}
sWSP = S(38, 2)
srdX, srdW, srdWS, srdT = S(8, 4), S(12, 4), S(16, 4), S(4, 4)
sG, sH, sWV = S(40), S(41), S(42)
sXoff, sWoff = S(43), S(44)
sXlds, sWlds = S(45), S(46)
sSt = S(47, 4)
sSt2 = S(60, 4) if False else S(52, 1)
sTmp = S(52, 4)
sScale = S(56, 2)
sU = S(58)
vXa = [V(1 + i) for i in range(4)]
vWa = [V(5 + i) for i in range(4)]
vXd = [V(9 + i) for i in range(8)]
vWd = [V(17 + i) for i in range(4)]
vL16 = V(21)
vT = [V(22 + i) for i in range(5)]
vLane = V(27)
vXb = [V(28 + i) for i in range(4)]
def hold(b): return V(32 + 8 * b, 8)
vTD = V(25)
vWf = [V(96, 16), V(112, 16)]
def acc(nb, tb): return V(128 + (nb * 2 + tb) * 16, 16)
def xfrag(st, tb, ks): return A(((st * 2 + tb) * 4 + ks) * 4, 4)

def ids():
    o = []; a = o.append
    a(salu('s_and_b32', sTmp[0], sWG, 7)); a(salu('s_lshr_b32', sTmp[1], sWG, 3))
    a(salu('s_and_b32', sG, sTmp[0], 1)); a(salu('s_lshl_b32', sG, sG, 2))
    a(salu('s_and_b32', sTmp[2], sTmp[1], 3)); a(salu('s_add_u32', sG, sG, sTmp[2]))
    a(salu('s_lshr_b32', sH, sTmp[0], 1)); a(salu('s_lshl_b32', sH, sH, 3))
    a(salu('s_lshr_b32', sTmp[2], sTmp[1], 2)); a(salu('s_add_u32', sH, sH, sTmp[2]))
    a(valu('v_lshrrev_b32', vT[0], 6, V(0))); a(valu('v_and_b32', vLane, 63, V(0))); a(nop(0))
    a(valu('v_readfirstlane_b32', sWV, vT[0]))
    return o
def x_dma_voff():
    o = []; a = o.append; l = vLane
    a(valu('v_lshrrev_b32', vT[0], 3, l)); a(valu('v_lshlrev_b32', vT[0], 10, vT[0]))
    a(valu('v_and_b32', vT[1], 7, l)); a(valu('v_lshrrev_b32', vT[2], 4, l))
    for p_ in range(8):
        a(valu('v_add_u32', vT[3], 4 * (p_ & 1), vT[2])); a(valu('v_xor_b32', vT[3], vT[3], vT[1]))
        a(valu('v_lshl_add_u32', vT[3], vT[3], 4, vT[0]))
        a(valu('v_add_u32', vXd[p_], hexs(p_ * 8192 - (p_ & 3) * 1024), vT[3]))
    return o
def w_dma_voff(NB, rowstride):
    o = []; a = o.append; l = vLane
    if NB == 4:
        a(valu('v_lshrrev_b32', vT[0], 4, l)); a(valu('v_lshlrev_b32', vT[1], 2, vT[0])); a(valu('v_and_b32', vT[2], 15, l))
        a(valu('v_xor_b32', vT[1], vT[1], vT[2])); a(valu('v_mul_u32_u24', vT[0], hexs(rowstride), vT[0])); a(valu('v_lshl_add_u32', vT[0], vT[1], 4, vT[0]))
        for q in range(4): a(valu('v_add_u32', vWd[q], hexs(q * (4 * rowstride - 1024)), vT[0]))
    else:
        a(valu('v_lshrrev_b32', vT[0], 3, l)); a(valu('v_bfe_u32', vT[1], l, 4, 1)); a(valu('v_lshlrev_b32', vT[1], 2, vT[1]))
        a(valu('v_and_b32', vT[2], 7, l)); a(valu('v_xor_b32', vT[1], vT[1], vT[2]))
        a(valu('v_mul_u32_u24', vT[0], hexs(rowstride), vT[0])); a(valu('v_lshl_add_u32', vT[0], vT[1], 4, vT[0]))
        for q in range(2): a(valu('v_add_u32', vWd[q], hexs(q * (8 * rowstride - 1024)), vT[0]))
    return o
def x_read_addr():
    o = []; a = o.append; l = vLane
    a(valu('v_and_b32', vT[0], 31, l)); a(valu('v_lshrrev_b32', vT[1], 5, l)); a(valu('v_bfe_u32', vT[2], vT[0], 1, 3))
    a(valu('v_lshlrev_b32', vT[3], 7, vT[0])); a(valu('v_add_u32', vT[3], sXlds, vT[3]))
    for ks in range(4):
        a(valu('v_add_u32', vT[4], 2 * ks, vT[1])); a(valu('v_xor_b32', vT[4], vT[4], vT[2]))
        a(valu('v_lshl_add_u32', vXa[ks], vT[4], 4, vT[3])); a(valu('v_add_u32', vXb[ks], '0x10000', vXa[ks]))
    return o
def w_read_addr(NB, perm=False, dst=None):
    dst = dst or vWa
    o = []; a = o.append; l = vLane
    a(valu('v_and_b32', vT[0], 15, l)); a(valu('v_lshrrev_b32', vT[1], 2, vT[0])); a(valu('v_lshrrev_b32', vT[2], 5, l))
    a(valu('v_lshl_add_u32', vT[2], vT[2], 2 if perm else 3, vT[1])); a(valu('v_lshlrev_b32', vT[2], 8 if NB == 4 else 7, vT[2]))
    a(valu('v_bfe_u32', vT[3], l, 4, 1)); a(valu('v_lshl_add_u32', vT[2], vT[3], 5, vT[2]))
    a(valu('v_and_b32', vT[3], 3, vT[0])); a(valu('v_lshl_add_u32', vT[2], vT[3], 3, vT[2]))
    a(valu('v_add_u32', vT[2], hexs(WBASE), vT[2]))
    if NB == 2: a(valu('v_lshrrev_b32', vT[1], 1, vT[1]))
    for nb in range(NB):
        a(valu('v_xor_b32', vT[3], nb, vT[1])); a(valu('v_lshl_add_u32', dst[nb], vT[3], 6, vT[2]))
    return o

def touch_load():
    i = bload(vTD, vT[4], srdT, 0, 0, op='buffer_load_dword'); i.nowaw = True; return i

def touch_list():
    groups = []
    vA = V(94); vD_ = V(95)
    def srd(name, off_ins, size):
        o = list(off_ins)
        o += [salu('s_add_u32', srdT[0], sPTR[name][0], sTmp[0]), salu('s_addc_u32', srdT[1], sPTR[name][1], 0),
              salu('s_and_b32', srdT[1], srdT[1], '0xffff'), salu('s_mov_b32', srdT[2], hexs(size)), salu('s_mov_b32', srdT[3], '0x20000')]
        return o
    g = srd('A_x', [salu('s_lshl_b32', sTmp[0], sG, 18), salu('s_and_b32', sTmp[1], sH, 7), salu('s_lshl_b32', sTmp[1], sTmp[1], 15), salu('s_add_u32', sTmp[0], sTmp[0], sTmp[1])], 32768)
    g += [valu('v_lshlrev_b32', vT[4], 7, V(0)), touch_load()]
    groups.append(g)
    g = srd('A_wqkv', [salu('s_and_b32', sTmp[0], sG, 1), salu('s_mul_i32', sTmp[0], sTmp[0], 256 * 3072), salu('s_lshl_b32', sTmp[1], sH, 7), salu('s_add_u32', sTmp[0], sTmp[0], sTmp[1])], 256 * 3072)
    g += [valu('v_mul_u32_u24', vT[4], 3072, V(0)), touch_load()]
    groups.append(g)
    for name, size in (('B_x', 2 * MB), ('B_w_q', 4 * MB)):
        per = size // 256
        g = srd(name, [salu('s_mul_i32', sTmp[0], sWG, hexs(per))], per)
        g += [valu('v_lshlrev_b32', vT[4], 7, V(0)), touch_load()]
        groups.append(g)
    return groups


class Pass:
    def __init__(s, name, t0, NB, typ, scale):
        s.name, s.t0, s.NB, s.typ, s.scale = name, t0, NB, typ, scale

def x_dma(xi):
    slot = XSLOT[xi % 3]; out = []
    for p_ in range(8):
        if p_ % 4 == 0: out.append(salu('s_add_u32', 'm0', sXlds, hexs(slot + (p_ >> 2) * 4096)))
        out.append(dma(vXd[p_], srdX, sXoff, (p_ & 3) * 1024, tag=('X', xi)))
    out.append(salu('s_add_u32', sXoff, sXoff, 128))
    return out
def w_dma(t, NB, rowstride):
    slot = WSLOT[t % 4]; out = []
    if NB == 4:
        out.append(salu('s_add_u32', 'm0', sWlds, hexs(slot)))
        for q in range(4): out.append(dma(vWd[q], srdW, sWoff, q * 1024, tag=('W', t)))
    else:
        out.append(salu('s_lshr_b32', sTmp[3], sWlds, 1)); out.append(salu('s_add_u32', 'm0', sTmp[3], hexs(slot)))
        for q in range(2): out.append(dma(vWd[q], srdW, sWoff, q * 1024, tag=('W', t)))
    out.append(salu('s_add_u32', sWoff, sWoff, hexs(64 * rowstride)))
    return out
def x_reads(st, xi):
    slot = xi % 3; out = []
    for tb in range(2):
        for ks in range(4):
            addr = vXa[ks] if slot < 2 else vXb[ks]
            out.append(ds_read('ds_read_b128', xfrag(st, tb, ks), addr, (XSLOT[slot] if slot < 2 else 0) + tb * 4096))
    return out
def w_reads(t, nb, NB):
    buf = vWf[nb & 1]; rowb = 256 if NB == 4 else 128; out = []
    for ks in range(4):
        for r2 in range(2):
            out.append(ds_read('ds_read_b64_tr_b16', buf[4 * ks + 2 * r2: 4 * ks + 2 * r2 + 2], vWa[nb], (t % 4) * 16384 + (16 * ks + 4 * r2) * rowb))
    return out
def switch_x(name): return set_srd(srdX, sPTR[name], 2 * MB) + [salu('s_sub_u32', sXoff, sXoff, 1024)]
def switch_w(name, first): return set_srd(srdW, sPTR[name], 4 * MB if name != 'A_wqkv' else 512 * 3072) + first

def cvt_block(ps, nb, tb):
    b = nb * 2 + tb; ac = acc(nb, tb); pk = hold(b); out = []
    if ps.scale:
        if PKMUL:
            for i in range(8): out.append(valu('v_pk_mul_f32', ac[2 * i:2 * i + 2], ac[2 * i:2 * i + 2], sScale))
        else:
            for i in range(16): out.append(valu('v_mul_f32', ac[i], sScale[0], ac[i]))
    for i in range(8): out.append(valu('v_cvt_pk_bf16_f32', pk[i], ac[2 * i], ac[2 * i + 1]))
    return out
def store_block(ps, nb, tb, flags, vSt=None):
    if NOSTORE: return []
    b = nb * 2 + tb; pk = hold(b); out = []
    if ps.name == 'K':
        so = sSt[tb * 2 + (nb >> 1)]
        out += [bstore(pk[0:4], vL16, srdWS, so, (nb & 1) * 2048, flags=flags), bstore(pk[4:8], vL16, srdWS, so, (nb & 1) * 2048 + 1024, flags=flags)]
    elif ps.name == 'V':
        out += [bstore(pk[0:4], vL16, srdWS, sSt[tb * 2 + 0], nb * 1024, flags=flags), bstore(pk[4:8], vL16, srdWS, sSt[tb * 2 + 1], nb * 1024, flags=flags)]
    elif ps.name == 'AQK':
        out += [salu('s_add_u32', sTmp[0], sSt[tb], hexs((2 * nb) * 65536)), bstore(pk[0:4], vL16, srdWS, sTmp[0], 0, flags=flags),
                salu('s_add_u32', sTmp[1], sSt[tb], hexs((2 * nb + 1) * 65536)), bstore(pk[4:8], vL16, srdWS, sTmp[1], 0, flags=flags)]
    elif ps.name == 'AV':
        out += [salu('s_add_u32', sTmp[0], sSt[tb], hexs((2 * nb) * 65536)), bstore(pk[0:4], vSt, srdWS, sTmp[0], 0, flags=flags), bstore(pk[4:8], vSt, srdWS, sTmp[0], 512, flags=flags)]
    return out
def epi_setup(ps):
    o = []; a = o.append
    a(salu('s_lshl_b32', sTmp[0], sG, 3)); a(salu('s_lshl_b32', sTmp[1], sWV, 1)); a(salu('s_add_u32', sTmp[0], sTmp[0], sTmp[1]))
    if ps.name in ('K', 'V'):
        base = {'K': WS_KB, 'V': WS_VB}[ps.name]
        a(salu('s_lshl_b32', sTmp[1], sH, 6)); a(salu('s_add_u32', sTmp[0], sTmp[0], sTmp[1])); a(salu('s_lshl_b32', sTmp[0], sTmp[0], 13))
        a(salu('s_add_u32', sSt[0], sTmp[0], hexs(base))); a(salu('s_add_u32', sSt[1], sSt[0], 4096))
        a(salu('s_add_u32', sSt[2], sSt[0], 8192)); a(salu('s_add_u32', sSt[3], sSt[0], 8192 + 4096))
    else:
        a(salu('s_lshr_b32', sTmp[1], sH, 3)); a(salu('s_lshl_b32', sTmp[1], sTmp[1], 21))
        a(salu('s_and_b32', sTmp[2], sH, 7)); a(salu('s_lshl_b32', sTmp[2], sTmp[2], 18)); a(salu('s_add_u32', sTmp[1], sTmp[1], sTmp[2]))
        a(salu('s_lshl_b32', sTmp[0], sTmp[0], 10)); a(salu('s_add_u32', sTmp[0], sTmp[0], sTmp[1]))
        a(salu('s_add_u32', sSt[0], sTmp[0], hexs(WS_QA))); a(salu('s_add_u32', sSt[1], sSt[0], 1024))
    if ps.scale: a(s_mov(sScale[0], f2u(ps.scale))); a(s_mov(sScale[1], f2u(ps.scale)))
    return o

def gen(store_flags="", prof=False, touch=True):
    ST = Stamps(60, prof, 0)
    K = Pass('K', 0, 4, 'K', C_B); Vp = Pass('V', 8, 4, 'V', None)
    variants = {'AQ': Pass('AQK', 16, 2, 'K', C_A), 'AK': Pass('AQK', 16, 2, 'K', None), 'AV': Pass('AV', 16, 2, 'V', None)}
    LAST = 23
    def rowstride(t): return 8192 if t < 16 else 3072
    def NBof(t): return 4 if t < 16 else 2
    def xi_of(t): return t if t < 8 else (None if t < 16 else t - 8)
    def t_of_xi(xi): return xi if xi < 8 else xi + 8
    gaps = {}
    def G(t, g):
        n = NBof(t) * 8
        while g >= n: g -= n; t += 1; n = NBof(t) * 8
        return gaps.setdefault((t, g), [])
    def spread(t, ins, g0, g1):
        if not ins: return
        per = (len(ins) + (g1 - g0) - 1) // (g1 - g0)
        for i, x in enumerate(ins): G(t, g0 + i // per).append(x)
    def mfmas(ps, t):
        st = t - ps.t0; out = []
        for nb in range(ps.NB):
            for tb in range(2):
                for ks in range(4):
                    wf = vWf[nb & 1][4 * ks:4 * ks + 4]; xf = xfrag(st, tb, ks)
                    c = 0 if (st == 0 and ks == 0) else acc(nb, tb)
                    out.append(mfma32(acc(nb, tb), wf, xf, c) if ps.typ == 'K' else mfma32(acc(nb, tb), xf, wf, c))
        return out
    def common_fill(ps, t):
        NB = ps.NB; n = NB * 8
        for nb in range(NB):
            if nb + 1 < NB: rs = w_reads(t, nb + 1, NB)
            elif t + 1 <= LAST: rs = w_reads(t + 1, 0, NBof(t + 1))
            else: rs = []
            for i, r in enumerate(rs): G(t, 8 * nb + i).append(r)
        bar = n - 9
        if t + 1 <= LAST: G(t, bar).append(waitvm(need=[('W', t + 1)])); G(t, bar).append(barrier())
        wins = []
        if t + 3 <= LAST:
            pre = []
            if t + 3 == 8: pre = switch_w('B_w_uv', [salu('s_sub_u32', sWoff, sWoff, hexs(512 * 8192))])
            if t + 3 == 16:
                pre = switch_w('A_wqkv', [salu('s_lshl_b32', sWoff, sH, 7), salu('s_mul_i32', sTmp[2], sWV, 16 * 3072), salu('s_add_u32', sWoff, sWoff, sTmp[2])])
                pre += w_dma_voff(2, 3072)
            wins = pre + w_dma(t + 3, NBof(t + 3), rowstride(t + 3))
        xin = xi_of(t + 1) if t + 1 <= LAST else None
        if xin is not None:
            g0 = n - 10
            G(t, g0).append(waitvm(need=[('X', xin)]))
            for i, r in enumerate(x_reads((t + 1) % 8, xin)): G(t, g0 + i).append(r)
        xi = xi_of(t); xins = []
        if xi is not None and xi + 3 <= 15:
            xins = (switch_x('A_x') if xi + 3 == 8 else []) + x_dma(xi + 3)
        if NB == 4: spread(t, xins, 8, bar); spread(t, wins, bar + 1, n)
        else: spread(t, wins + xins, bar + 1, n)

    for ps in (K, Vp):
        for t in range(ps.t0, ps.t0 + 8): common_fill(ps, t)
    spread(7, epi_setup(K), 1, 5)
    for nb in range(4):
        for tb in range(2):
            b = nb * 2 + tb
            ins = cvt_block(K, nb, tb)
            for i, x in enumerate(ins): G(7, 4 * b + 7 + (i * 5) // len(ins)).append(x)
            for i, x in enumerate(store_block(K, nb, tb, store_flags)): G(8 + b, (9 if b == 0 else 3) + 6 * i).append(x)
    if touch:
        tl = touch_list()
        if TOUCH_MODE == 1: spread(TOUCH_STAGE, [x for g in tl for x in g], 8, 23)
        else:
            for i, g in enumerate(tl): spread(8 + i, g, 12, 22)
    spread(15, epi_setup(Vp), 11, 15)
    vcvt = []
    for nb in range(4):
        for tb in range(2):
            b = nb * 2 + tb
            for i, x in enumerate(cvt_block(Vp, nb, tb)): vcvt.append((4 * b + 7 + i // 2, x))
    for g, x in vcvt:
        if g < 32: G(15, g).append(x)
    ar = w_read_addr(2, dst=[vWa[0], vT[4]])
    spread(15, ar, 16, 23)
    G(15, 23).append(valu('v_mov_b32', vWa[1], vT[4]))

    pro = ST.stamp(real=True) + ST.stamp()
    a = pro.append
    a(salu('s_cmp_ge_u32', None, sWG, 256)); a(branch('s_cbranch_scc1', 'L_proj_end'))
    a(raw("s_load_dwordx16 s[20:35], s[0:1], 0", wr=[f"s{i}" for i in range(20, 36)]))
    a(raw("s_load_dwordx2 s[36:37], s[0:1], 64", wr=['s36', 's37']))
    a(raw("s_load_dwordx2 s[38:39], s[0:1], 88", wr=['s38', 's39']))
    pro += ids() + x_dma_voff() + w_dma_voff(4, 8192)
    a(salu('s_lshl_b32', sXlds, sWV, 13)); a(salu('s_lshl_b32', sWlds, sWV, 12))
    a(salu('s_lshl_b32', sXoff, sG, 18)); a(salu('s_lshl_b32', sTmp[0], sWV, 16)); a(salu('s_add_u32', sXoff, sXoff, sTmp[0]))
    a(salu('s_lshl_b32', sWoff, sH, 8)); a(salu('s_lshl_b32', sTmp[0], sWV, 17)); a(salu('s_add_u32', sWoff, sWoff, sTmp[0]))
    a(raw("s_waitcnt lgkmcnt(0)", kind='waitlgkm0'))
    pro += set_srd(srdX, sPTR['B_c_kv'], 2 * MB) + set_srd(srdW, sPTR['B_w_uk'], 4 * MB)
    start = x_dma(0) + w_dma(0, 4, 8192) + x_dma(1) + w_dma(1, 4, 8192) + x_dma(2) + w_dma(2, 4, 8192)
    start += x_read_addr() + w_read_addr(4) + [valu('v_lshlrev_b32', vL16, 4, vLane)] + set_srd(srdWS, sWSP, WS_USED)
    start += [waitvm(need=[('X', 0), ('W', 0)]), barrier()] + x_reads(0, 0) + w_reads(0, 0, 4)
    main = []
    for ps in (K, Vp):
        for t in range(ps.t0, ps.t0 + 8):
            main.append(comment(f"stage {t} ({ps.name})"))
            if t in (0, 1, 2, 4, 8, 9, 10, 12): main += ST.stamp()
            for g, m in enumerate(mfmas(ps, t)): main.append(m); main += gaps.get((t, g), [])
    main = m0_peephole(main)
    def fresh(lst): return [Ins(x.text, x.kind, x.rd, x.wr) for x in lst]
    var_code = {}
    for vn, ps in variants.items():
        for k in [k for k in gaps if k[0] >= 16]: del gaps[k]
        for t in range(16, 24): common_fill(ps, t)
        for g, x in vcvt:
            if g >= 32:
                y = Ins(x.text, x.kind, x.rd, x.wr); G(16, g - 32).append(y)
        for nb in range(4):
            for tb in range(2):
                b = nb * 2 + tb
                t_ = 16 + min(b, 6) if b < 7 else 22
                for i, x in enumerate(store_block(Vp, nb, tb, store_flags)): G(16 + (b * 6) // 7, (8 if b == 0 else 2) + 3 * i + (6 if b == 7 else 0)).append(x)
        spread(23, epi_setup(ps), 1, 4)
        vSt = vXd[0]
        if ps.name == 'AV':
            l = vLane
            sv = [valu('v_bfe_u32', vT[0], l, 4, 1), valu('v_lshlrev_b32', vT[0], 16, vT[0]), valu('v_lshrrev_b32', vT[1], 5, l),
                  valu('v_lshl_add_u32', vT[0], vT[1], 8, vT[0]), valu('v_and_b32', vT[1], 15, l), valu('v_lshl_add_u32', vSt, vT[1], 4, vT[0])]
            spread(23, sv, 4, 7)
        tail = []
        for nb in range(2):
            for tb in range(2):
                b = nb * 2 + tb
                ins = cvt_block(ps, nb, tb) + store_block(ps, nb, tb, store_flags, vSt)
                for i, x in enumerate(ins):
                    g = 4 * b + 7 + i // 5
                    if g < 16: G(23, g).append(x)
                    else: tail.append(x)
        code = [label(f"L_proj_{vn}")]
        for t in range(16, 24):
            code.append(comment(f"stage {t} ({vn})"))
            for g, m in enumerate(mfmas(ps, t)): code.append(m); code += gaps.get((t, g), [])
        code = m0_peephole(code) + tail + [branch('s_branch', 'L_proj_fin')]
        var_code[vn] = code
    tr = [label("L_proj_TR")] + fresh([x for g, x in vcvt if g >= 32])
    for nb in range(4):
        for tb in range(2): tr += store_block(Vp, nb, tb, store_flags)
    tr += transpose_job(store_flags) + [branch('s_branch', 'L_proj_fin')]
    disp = ST.stamp() + [salu('s_cmp_ge_u32', None, sH, 24), branch('s_cbranch_scc1', 'L_proj_TR'),
            salu('s_cmp_ge_u32', None, sH, 16), branch('s_cbranch_scc1', 'L_proj_AV'),
            salu('s_cmp_ge_u32', None, sH, 8), branch('s_cbranch_scc1', 'L_proj_AK')]
    fin = [label('L_proj_fin')] + [waitvm(n=0)] * (1 if prof else 0) + ST.stamp() + ST.stamp(real=True) + ST.flush(sWG, sWV, sWSP, srdX, vT[0], vT[1], sTmp[0])
    head = pro + start + main + disp
    traces = [T(head + var_code[vn] + fin) for vn in ('AQ', 'AK', 'AV')] + [T(head + tr + fin)]
    resolve_waits(traces)
    fix_hazards(traces, name='proj', verbose=False)
    return render(head + var_code['AQ'] + var_code['AK'] + var_code['AV'] + tr + fin + [label('L_proj_end')])

def transpose_job(flags):
    o = []; a = o.append
    sIdx = sU
    a(waitvm(n=0)); a(waitlgkm0()); a(barrier())
    a(salu('s_lshl_b32', sIdx, sG, 3)); a(salu('s_add_u32', sIdx, sIdx, sH)); a(salu('s_sub_u32', sIdx, sIdx, 24))
    o += w_read_addr(4, perm=True) + w_dma_voff(4, 1024)
    o += set_srd(srdW, sPTR['B_w_o'], 4 * MB)
    a(salu('s_lshl_b32', sWoff, sIdx, 16)); a(salu('s_lshl_b32', sTmp[0], sWV, 14)); a(salu('s_add_u32', sWoff, sWoff, sTmp[0]))
    for nt in range(4):
        a(salu('s_add_u32', 'm0', sWlds, hexs(WSLOT[nt])))
        for q in range(4): a(dma(vWd[q], srdW, sWoff, q * 1024, tag=('TR', nt, q)))
        a(salu('s_add_u32', sWoff, sWoff, 256))
    o += set_srd(srdW, sPTR['A_wo'], 512 * 1024)
    a(salu('s_lshr_b32', sTmp[0], sIdx, 2)); a(salu('s_and_b32', sTmp[0], sTmp[0], 7)); a(salu('s_lshl_b32', sWoff, sTmp[0], 16))
    a(salu('s_and_b32', sTmp[1], sIdx, 3)); a(salu('s_lshl_b32', sTmp[1], sTmp[1], 8)); a(salu('s_add_u32', sWoff, sWoff, sTmp[1]))
    a(salu('s_lshl_b32', sTmp[0], sWV, 14)); a(salu('s_add_u32', sWoff, sWoff, sTmp[0]))
    a(salu('s_mov_b32', 'm0', sWlds))
    for q in range(4): a(dma(vWd[q], srdW, sWoff, q * 1024, tag=('TRA', q)))
    a(waitvm(n=0)); a(barrier())
    l = vLane
    a(valu('v_and_b32', vT[0], 15, l)); a(valu('v_lshrrev_b32', vT[1], 2, vT[0]))
    a(valu('v_xor_b32', vT[1], sWV, vT[1])); a(valu('v_lshlrev_b32', vT[1], 6, vT[1]))
    a(valu('v_lshrrev_b32', vT[2], 2, vT[0])); a(valu('v_lshlrev_b32', vT[2], 6, vT[2]))
    a(valu('v_sub_u32', vT[2], vWa[0], vT[2])); a(valu('v_add_u32', vT[3], vT[2], vT[1]))
    a(valu('v_subrev_u32', vT[4], hexs(WBASE), vT[3]))
    a(salu('s_lshl_b32', sTmp[0], sWV, 18)); a(salu('s_lshl_b32', sTmp[1], sIdx, 12)); a(salu('s_add_u32', sTmp[0], sTmp[0], sTmp[1]))
    a(salu('s_add_u32', sSt[0], sTmp[0], hexs(WS_WOB)))
    bufs = [V(128 + 16 * i, 16) for i in range(5)]
    for nt in range(4):
        for ks in range(4):
            for r2 in range(2):
                a(ds_read('ds_read_b64_tr_b16', bufs[nt][4 * ks + 2 * r2:4 * ks + 2 * r2 + 2], vT[3], nt * 16384 + (16 * ks + 8 * r2) * 256))
    for ks in range(4):
        for r2 in range(2):
            a(ds_read('ds_read_b64_tr_b16', bufs[4][4 * ks + 2 * r2:4 * ks + 2 * r2 + 2], vT[4], (16 * ks + 8 * r2) * 256))
    for nt in range(4):
        for ks in range(4): a(bstore(bufs[nt][4 * ks:4 * ks + 4], vL16, srdWS, sSt[0], ks * 1024, flags=flags))
        a(salu('s_add_u32', sSt[0], sSt[0], hexs(4 * 256 * 1024)))
    a(salu('s_cmp_ge_u32', None, sIdx, 32)); a(branch('s_cbranch_scc1', 'L_proj_fin'))
    a(salu('s_and_b32', sTmp[0], sIdx, 3)); a(salu('s_lshl_b32', sTmp[0], sTmp[0], 2)); a(salu('s_add_u32', sTmp[0], sTmp[0], sWV))
    a(salu('s_lshl_b32', sTmp[0], sTmp[0], 15)); a(salu('s_lshr_b32', sTmp[1], sIdx, 2)); a(salu('s_lshl_b32', sTmp[1], sTmp[1], 12))
    a(salu('s_add_u32', sTmp[0], sTmp[0], sTmp[1])); a(salu('s_add_u32', sSt[0], sTmp[0], hexs(WS_WOA)))
    for ks in range(4): a(bstore(bufs[4][4 * ks:4 * ks + 4], vL16, srdWS, sSt[0], ks * 1024, flags=flags))
    return o

if __name__ == "__main__":
    txt = gen(); print(len(txt.splitlines()), "lines")
```

```python
import sys, importlib
from common import *
HEADER = open('concat_heads__mha_block__compressed_kv_cla__prompt.s.ref').read().split('; Override launch geometry')[0]

def assemble(kernels):
    s = HEADER
    for k in kernels:
        for l in k['launches']:
            s += f"; @launch kernel={k['name']} grid=({l[0]},1,1) block=({l[1]},1,1) lds={l[2]}\n"
    s += '.amdgcn_target "amdgcn-amd-amdhsa--gfx950"\n'
    seen = set()
    for k in kernels:
        if k['name'] in seen: continue
        seen.add(k['name'])
        s += kernel_text(k['name'], k['body'], k['nvgpr'], k['accoff'])
    s += '.section .rodata,"a"\n'
    seen = set()
    for k in kernels:
        if k['name'] in seen: continue
        seen.add(k['name'])
        s += ".p2align 6\n" + kernel_desc(k['name'], k['nvgpr'], k['accoff'])
    return s

def main(out, which, opts):
    ks = []
    if 'proj' in which:
        import k_proj
        k_proj.NOSTORE = bool(int(opts.get('nostore', 0)))
        k_proj.TOUCH_STAGE = int(opts.get('tstage', 8))
        ks.append(dict(name='proj_kernel', body=k_proj.gen(store_flags=opts.get('proj_flags', ''), prof=bool(int(opts.get('prof', 0))), touch=bool(int(opts.get('touch', 1)))), nvgpr=512, accoff=256, launches=[(256, 256, k_proj.LDS_BYTES)]))
    if 'pb' in which:
        import k_pb
        ks.append(dict(name='pb_kernel', body=k_pb.gen(opts), nvgpr=512, accoff=256, launches=[(256, 256, k_pb.LDS_BYTES)]))
    if 'battn' in which:
        import k_battn
        ks.append(dict(name='battn_kernel', body=k_battn.gen(opts), nvgpr=512, accoff=256, launches=[(256, 256, k_battn.LDS_BYTES)]))
    if 'aattn' in which:
        import k_aattn
        ks.append(dict(name='aattn_kernel', body=k_aattn.gen(opts), nvgpr=k_aattn.NVGPR, accoff=k_aattn.ACCOFF, launches=[(256, 256, k_aattn.LDS_BYTES)]))
    if 'fuse3' in which:
        import k_fuse3
        ks.append(dict(name='fuse3_kernel', body=k_fuse3.gen(opts), nvgpr=k_fuse3.NVGPR, accoff=k_fuse3.ACCOFF, launches=[(256, 256, k_fuse3.LDS_BYTES)]))
    if 'oproj' in which:
        import k_oproj
        ks.append(dict(name='oproj_kernel', body=k_oproj.gen(opts), nvgpr=k_oproj.NVGPR, accoff=k_oproj.ACCOFF, launches=[(k_oproj.GRID, 256, k_oproj.LDS_BYTES)]))
    open(out, 'w').write(assemble(ks))

if __name__ == '__main__':
    out = sys.argv[1]; which = sys.argv[2].split(',')
    opts = dict(a.split('=', 1) for a in sys.argv[3:])
    main(out, which, opts)
```

```python
from fw import *

MB = 1 << 20
import os
WS_SHIFT = int(os.environ.get('WS_SHIFT_MB', 0)) * (1 << 20)
WS_QB = 0
WS_KB = 16 * MB + WS_SHIFT
WS_VB = 32 * MB + WS_SHIFT
WS_CTXB = 48 * MB + WS_SHIFT
WS_QA = 64 * MB + WS_SHIFT
WS_KA = 66 * MB + WS_SHIFT
WS_VA = 68 * MB + WS_SHIFT
WS_CTXA = 70 * MB + WS_SHIFT
WS_WOB = 72 * MB + WS_SHIFT
WS_WOA = 76 * MB + WS_SHIFT
WS_FLAG = 77 * MB + WS_SHIFT
FL_KV, FL_A, FL_B, FL_C = WS_FLAG, WS_FLAG + 8192, WS_FLAG + 16384, WS_FLAG + 24576
WS_USED = 78 * MB + WS_SHIFT
WS_SIZE = 268435456

KA = dict(A_x=0, A_wqkv=8, A_wo=16, B_x=24, B_c_kv=32, B_w_q=40, B_w_uk=48, B_w_uv=56, B_w_o=64, out=72, dbg=80, ws=88)

import struct
def f2u(x): return struct.unpack('<I', struct.pack('<f', x))[0]
LOG2E = 1.4426950408889634
C_B = (128 ** -0.5) * LOG2E
C_A = 0.25 * LOG2E

def s_mov(d, x): return salu('s_mov_b32', d, x if isinstance(x, (R, str)) else hexs(x))
def hexs(x):
    x &= 0xffffffff
    return str(x) if x <= 64 else hex(x)
def set_srd(srd, ptr, size):
    return [salu('s_mov_b32', srd[0], ptr[0]), salu('s_and_b32', srd[1], ptr[1], '0xffff'),
            salu('s_mov_b32', srd[2], hexs(size)), salu('s_mov_b32', srd[3], '0x20000')]

def kernel_text(name, body, nvgpr, accoff, nsgpr=102):
    return f""".text
.globl {name}
.p2align 8
.type {name},@function
{name}:
{body}
  s_endpgm
"""
def kernel_desc(name, nvgpr, accoff, nsgpr=102):
    return f""".amdhsa_kernel {name}
  .amdhsa_next_free_vgpr {nvgpr}
  .amdhsa_next_free_sgpr {nsgpr}
  .amdhsa_accum_offset {accoff}
  .amdhsa_group_segment_fixed_size 0
  .amdhsa_kernarg_size 96
  .amdhsa_user_sgpr_count 2
  .amdhsa_user_sgpr_kernarg_segment_ptr 1
  .amdhsa_system_sgpr_workgroup_id_x 1
.end_amdhsa_kernel
"""

WS_PROF = 200 * MB
class Stamps:
    def __init__(self, base, enabled, kernel_slot):
        self.base, self.en, self.n, self.slot = base, enabled, 0, kernel_slot
    def stamp(self, real=False):
        if not self.en: return []
        r = S(self.base + 2 * self.n, 2); self.n += 1
        op = 's_memrealtime' if real else 's_memtime'
        return [raw(f"{op} {r}", kind='salu', wr=r.regs())]
    def flush(self, sWG, sWV, wsptr, srd, vtmp, vtmp2, stmp):
        if not self.en: return []
        o = [waitlgkm0()]
        o += [salu('s_mov_b32', srd[0], wsptr[0]), salu('s_and_b32', srd[1], wsptr[1], '0xffff'), salu('s_mov_b32', srd[2], hexs(WS_SIZE)), salu('s_mov_b32', srd[3], '0x20000')]
        o.append(salu('s_lshl_b32', stmp, sWG, 3)); o.append(salu('s_add_u32', stmp, stmp, sWV)); o.append(salu('s_lshl_b32', stmp, stmp, 7))
        o.append(salu('s_add_u32', stmp, stmp, hexs(WS_PROF + self.slot * MB)))
        o.append(valu('v_mov_b32', vtmp2, 0))
        for i in range(self.n):
            o.append(valu('v_mov_b32', vtmp, S(self.base + 2 * i)))
            o.append(bstore(vtmp, vtmp2, srd, stmp, 4 * i, op='buffer_store_dword'))
        return o

class Stamps2:
    def __init__(self, base, enabled, kernel_slot, vS):
        self.base, self.en, self.n, self.slot, self.vS = base, enabled, 0, kernel_slot, vS
        self.names = []
        self.early = []
    def pair(self, k): return S(self.base + 2 * (k % 3), 2)
    def stamp(self, name='', real=False, defer=False):
        if not self.en: return []
        k = self.n; self.n += 1; self.names.append(name)
        o = []
        if k >= 2 and not defer:
            o.append(Ins(f"v_writelane_b32 {self.vS}, {self.pair(k - 2)[0]}, {k - 2}", 'valu', [str(self.pair(k - 2)[0])], [str(self.vS)]))
        r = self.pair(k)
        o.append(raw(f"{'s_memrealtime' if real else 's_memtime'} {r}", kind='salu', wr=r.regs()))
        return o
    def flush(self, sWG, sWV, wsptr, srd, vtmp, vtmp2, stmp):
        if not self.en: return []
        o = [waitlgkm0()]
        for k in (self.n - 2, self.n - 1):
            o.append(Ins(f"v_writelane_b32 {self.vS}, {self.pair(k)[0]}, {k}", 'valu', [str(self.pair(k)[0])], [str(self.vS)]))
        o += [salu('s_mov_b32', srd[0], wsptr[0]), salu('s_and_b32', srd[1], wsptr[1], '0xffff'), salu('s_mov_b32', srd[2], hexs(WS_SIZE)), salu('s_mov_b32', srd[3], '0x20000')]
        o.append(salu('s_lshl_b32', stmp, sWG, 2)); o.append(salu('s_add_u32', stmp, stmp, sWV)); o.append(salu('s_lshl_b32', stmp, stmp, 8))
        o.append(salu('s_add_u32', stmp, stmp, hexs(WS_PROF + self.slot * MB)))
        o.append(Ins(f"v_mbcnt_lo_u32_b32 {vtmp}, -1, 0", 'valu', [], [str(vtmp)]))
        o.append(Ins(f"v_mbcnt_hi_u32_b32 {vtmp}, -1, {vtmp}", 'valu', [str(vtmp)], [str(vtmp)]))
        o.append(valu('v_lshlrev_b32', vtmp, 2, vtmp))
        o.append(bstore(self.vS, vtmp, srd, stmp, 0, op='buffer_store_dword'))
        return o
```

```python
from common import *
import qproj

LDS_BYTES = 163840
KRING, VRING, FLAG = 0, 65536, 131072
NEG_INF = '0xff800000'

sWG = S(2)
srdK, srdV, srdWS = S(8, 4), S(12, 4), S(16, 4)
sWSP = S(20, 2)
sH, sI, sWV = S(22), S(23), S(24)
sKa, sKb, sVa, sVb = S(25), S(26), S(27), S(28)
sKoff, sVoff = S(29), S(30)
sCnt = S(31)
sTmp = S(32, 6)
sMode = S(38)
sQoff = S(39, 2)
sNb = S(41)
sExec = S(42, 2)
vLane = V(1); vL16 = V(2); vD = V(3)
vKa, vKb, vVa, vVb = V(4), V(5), V(6), V(7)
vT = [V(8 + i) for i in range(8)]
vL = [[V(16), V(17)], [V(18), V(19)]]
vM = [V(20), V(21)]
vChk = V(22)
aMd = A(128, 16)
sPX, sPW = S(44, 2), S(46, 2)
srdX, srdW = S(48, 4), S(52, 4)
sXoff, sWoff, sXlds, sWlds = S(56), S(57), S(58), S(59)
sScale = S(6, 2)
def vS(par, u): return V(128 + (par * 2 + u) * 16, 16)
def vP(par, u): return V(192 + (par * 2 + u) * 8, 8)
def vC(u): return V(224 + 16 * u, 16)
def aO(u, db): return A((u * 4 + db) * 16, 16)
def aQ(u, s): return V(32 + (u * 8 + s) * 4, 4)
def aK(s): return A(192 + 4 * s, 4)
def aV(f): return A(224 + 4 * f, 4)
PFN = 5
PAIRW = True
DDUAL, DSINGLE = 8, 6

_lab = [0]
def newlabel(p):
    _lab[0] += 1
    return f"L_b_{p}_{_lab[0]}"

PKADD = False
def sm_ops(par, u):
    s = vS(par, u); p = vP(par, u)
    ops = []
    def tailops(r):
        if PKADD: return [valu('v_pk_add_f32', V(vL[u][0].i, 2), V(vL[u][0].i, 2), s[r:r + 2]), valu('v_cvt_pk_bf16_f32', p[r // 2], s[r], s[r + 1])]
        return [valu('v_add_f32', vL[u][0], vL[u][0], s[r]), valu('v_add_f32', vL[u][1], vL[u][1], s[r + 1]),
                valu('v_cvt_pk_bf16_f32', p[r // 2], s[r], s[r + 1])]
    for r in range(0, 16, 2):
        ops += [valu('v_exp_f32', s[r], s[r]), valu('v_exp_f32', s[r + 1], s[r + 1])]
        if r >= 2: ops += tailops(r - 2)
    ops += tailops(14)
    return ops

def k_read(s, half_other, slot):
    return ds_read('ds_read_b128', aK(s), vKb if half_other else vKa, slot * 8192 + s * 1024)
def v_read(f, half_other, slot):
    return ds_read('ds_read_b128', aV(f), vVb if half_other else vVa, slot * 8192 + f * 1024)

def dma_k(half_other, slot, tag):
    return [salu('s_add_u32', 'm0', sKb if half_other else sKa, hexs(slot * 8192)),
            dma(vD, srdK, sKoff, 0, tag=tag), dma(vD, srdK, sKoff, 1024, tag=tag), salu('s_add_u32', sKoff, sKoff, 8192)]
def dma_v(half_other, slot, tag):
    return [salu('s_add_u32', 'm0', sVb if half_other else sVa, hexs(slot * 8192)),
            dma(vD, srdV, sVoff, 0, tag=tag), dma(vD, srdV, sVoff, 1024, tag=tag), salu('s_add_u32', sVoff, sVoff, 8192)]

def event(u, it):
    o = []
    l1, l2 = newlabel('ev'), newlabel('ev')
    o += [salu('s_cmp_lg_u32', None, sWV, it), branch('s_cbranch_scc1', l1)]
    o += add_mdiag(vC(u))
    o += [label(l1)]
    if it >= 1:
        o += [salu('s_cmp_lg_u32', None, sWV, it - 1), branch('s_cbranch_scc1', l2)]
        o += [valu('v_mov_b32', vC(u)[r], NEG_INF) for r in range(16)]
        o += [label(l2)]
    o.append(nop(1))
    return o

def iteration(it, qk, sm, pv, first_pv=False, bar=False, dmas=True, prefetch=True, events=(), have_prefetched=True, extra_end=()):
    par = it & 1
    ms = []; kfirst = {}; vfirst = {}
    for s in range(8):
        for u in qk:
            kfirst.setdefault(s, len(ms))
            ms.append(mfma32(vS(par, u), aK(s), aQ(u, s), vC(u) if s == 0 else vS(par, u)))
    for f in range(8):
        ks, db = f >> 2, f & 3
        for u in pv:
            vfirst.setdefault(f, len(ms))
            c = 0 if (first_pv and ks == 0) else aO(u, db)
            ms.append(mfma32(aO(u, db), aV(f), vP(par, u)[4 * ks:4 * ks + 4], c))
    n = len(ms)
    if PAIRW:
        for s_ in range(0, 8, 2):
            if s_ in kfirst and s_ + 1 in kfirst: ms[kfirst[s_]].xdep |= set(aK(s_ + 1).regs())
            if s_ in vfirst and s_ + 1 in vfirst: ms[vfirst[s_]].xdep |= set(aV(s_ + 1).regs())
    dual = max(len(qk), len(pv)) == 2
    D = DDUAL if dual else DSINGLE
    pre = []
    gaps = [[] for _ in range(max(n, 1))]
    for u in events: pre += event(u, it)
    barr = []
    if bar:
        barr = [waitvm(need=lambda c, it=it: [('K', 4 * c['m'] + it + 2)]), barrier()]
    kreads = []
    for s in range(8):
        if s in kfirst and (s >= PFN or not have_prefetched):
            kreads.append((kfirst[s] - D, k_read(s, False, it)))
    vo, vs = (True, it + 2) if it < 2 else (False, it - 2)
    vreads = [(vfirst[f] - D, v_read(f, vo, vs)) for f in range(8) if f in vfirst]
    pf = []
    if prefetch:
        po, psl = (False, it + 1) if it < 3 else (True, 0)
        pf = [k_read(s, po, psl) for s in range(PFN)]
    dm = []
    if dmas:
        if it == 0:   dm = dma_k(True, 2, lambda c: ('K', 4 * c['m'] + 6)) + dma_v(True, 0, lambda c: ('V', 4 * c['m'] + 4))
        elif it == 1: dm = dma_k(True, 3, lambda c: ('K', 4 * c['m'] + 7)) + dma_v(True, 1, lambda c: ('V', 4 * c['m'] + 5))
        elif it == 2: dm = dma_k(False, 0, lambda c: ('K', 4 * c['m'] + 8)) + dma_v(True, 2, lambda c: ('V', 4 * c['m'] + 6))
        else:         dm = dma_k(False, 1, lambda c: ('K', 4 * c['m'] + 9)) + dma_v(True, 3, lambda c: ('V', 4 * c['m'] + 7))
    smo = []
    for u in sm: smo += sm_ops(par ^ 1, u)
    if n == 0:
        return pre + barr + dm + smo + pf + list(extra_end)
    if qk:
        gaps[0] += barr
        for g, r in kreads + vreads: gaps[max(g, 0)].append(r)
    else:
        pre += barr
        for g, r in vreads:
            if g < 0: pre.append(r)
            else: gaps[g].append(r)
    for i, r in enumerate(pf):
        gaps[max(n - 1 - (PFN - 1 - i) - (1 if dual else 0), 0)].append(r)
    if dm:
        g0 = 1; span = max(n - 3, 1)
        for i, x in enumerate(dm): gaps[min(g0 + (i * span) // len(dm), n - 1)].append(x)
    cap = [24 - sum(x.cost for x in gaps[g]) for g in range(n)]
    tot = sum(x.cost for x in smo)
    free = sum(max(c, 0) for c in cap)
    k = 0; acc_need = 0.0; placed = 0
    for g in range(n):
        share = (max(cap[g], 0) / free if free > 0 else 1.0 / n) * tot
        acc_need += share
        while k < len(smo) and (placed + smo[k].cost / 2 <= acc_need + 1e-6 or g == n - 1):
            gaps[g].append(smo[k]); placed += smo[k].cost; k += 1
    out = list(pre)
    for g in range(n):
        out.append(ms[g]); out += gaps[g]
    out += list(extra_end)
    out = m0_peephole(out)
    seen = set()
    for x in out:
        if x.kind == 'ds_read': seen |= x.wr
        if x.kind == 'mfma32':
            for r in x.srcab:
                if r[0] == 'a' and int(r[1:]) >= 224: assert r in seen, ("V frag used before read", x.text)
                if r[0] == 'a' and 192 + 4 * PFN <= int(r[1:]) < 224: assert r in seen, ("K frag used before read", x.text)
    return out

def toggles():
    return [valu('v_xor_b32', x, '0x8000', x) for x in (vKa, vKb, vVa, vVb)] + \
           [salu('s_xor_b32', x, x, '0x8000') for x in (sKa, sKb, sVa, sVb)]

FIRST_BODY_EXTRA = None
def body(name, first, t0, t1):
    o = [label(name)]
    for it in range(4):
        qk, sm, pv, ev = [], [], [], []
        for u, mode in ((0, t0), (1, t1)):
            if mode in ('full', 'mask'):
                if not (first and it == 0): qk.append(u)
                if not (first and it == 0): sm.append(u)
                if not (first and it < 2): pv.append(u)
                if mode == 'mask' and not (first and it == 0): ev.append(u)
            elif mode == 'drain':
                if it == 0: sm.append(u)
                if it < 2: pv.append(u)
        last = (t1 == 'mask' and it == 3)
        o.append(comment(f"{name} it{it} qk={qk} sm={sm} pv={pv}"))
        ee = list(toggles()) if it == 3 else []
        if first and it == 3 and FIRST_BODY_EXTRA is not None: ee += FIRST_BODY_EXTRA()
        o += iteration(it, qk, sm, pv, first_pv=(first and it in (2,)), bar=(it % 2 == 0), prefetch=not last, events=ev, extra_end=ee)
    return o

def tail():
    o = [label('L_b_tail'), comment('tail')]
    o += iteration(0, [], [1], [1], bar=True, dmas=False, prefetch=False)
    o += iteration(1, [], [], [1], bar=False, dmas=False, prefetch=False)
    return o

def epilogue(u):
    o = []; a = o.append
    tmp = vS(0, u)
    pk = vP(0, u)
    a(valu('v_add_f32', vL[u][0], vL[u][0], vL[u][1]))
    a(valu('v_mov_b32', vT[0], vL[u][0]))
    a(nop(1))
    a(valu('v_permlane32_swap_b32', vT[0], vL[u][0]))
    a(valu('v_add_f32', vT[0], vT[0], vL[u][0]))
    a(valu('v_mov_b32', vT[2], hexs(f2u(2.0 ** 100))))
    a(vcmp('v_cmp_nle_f32', 'vcc', vT[0], vT[2]))
    a(valu('v_rcp_f32', vT[1], vT[0]))
    a(valu('v_mov_b32', vT[3], '0x7fc00000'))
    a(valu('v_cndmask_b32', vChk, vChk, vT[3]))
    a(valu('v_mov_b32', vT[6], vT[1])); a(valu('v_mov_b32', vT[7], vT[1]))
    for db in range(4):
        for r in range(16): a(accrd(tmp[r], aO(u, db)[r]))
        for r in range(8): a(valu('v_pk_mul_f32', tmp[2 * r:2 * r + 2], tmp[2 * r:2 * r + 2], V(vT[6].i, 2)))
        for r in range(8): a(valu('v_cvt_pk_bf16_f32', pk[r], tmp[2 * r], tmp[2 * r + 1]))
        for r in range(8): a(valu('v_dot2_f32_bf16', vChk, pk[r], vT[4], vChk))
        a(bstore(pk[0:4], vL16, srdWS, sQoff[u], (2 * db) * 1024 % 4096) if db < 2 else bstore(pk[0:4], vL16, srdWS, sTmp[u], (2 * db - 4) * 1024))
        a(bstore(pk[4:8], vL16, srdWS, sQoff[u], (2 * db + 1) * 1024) if db < 2 else bstore(pk[4:8], vL16, srdWS, sTmp[u], (2 * db - 3) * 1024))
    return o

def epi_offsets(u):
    o = []; a = o.append
    if u == 0: a(salu('s_lshl_b32', sTmp[2], sI, 2))
    else:
        a(salu('s_sub_u32', sTmp[2], 15, sI)); a(salu('s_lshl_b32', sTmp[2], sTmp[2], 2))
    a(salu('s_add_u32', sTmp[2], sTmp[2], sWV))
    a(salu('s_lshl_b32', sTmp[2], sTmp[2], 18))
    a(salu('s_lshl_b32', sTmp[3], sH, 13))
    a(salu('s_add_u32', sTmp[2], sTmp[2], sTmp[3]))
    a(salu('s_add_u32', sQoff[u], sTmp[2], hexs(WS_CTXB)))
    a(salu('s_add_u32', sTmp[u], sQoff[u], 4096))
    a(valu('v_mov_b32', vT[4], 0))
    return o

def mdiag():
    o = []; a = o.append
    a(valu('v_and_b32', vT[0], 31, vLane)); a(valu('v_lshrrev_b32', vT[1], 5, vLane)); a(valu('v_lshlrev_b32', vT[1], 2, vT[1]))
    a(valu('v_sub_u32', vT[0], vT[0], vT[1]))
    a(valu('v_mov_b32', vT[2], NEG_INF)); a(valu('v_mov_b32', vT[3], 0))
    for r in range(16):
        kk = 8 * (r >> 2) + (r & 3)
        a(vcmp('v_cmp_le_i32', 'vcc', kk, vT[0]))
        a(nop(1))
        a(valu('v_cndmask_b32', vT[4 + (r & 1)], vT[2], vT[3]))
        a(accwr(aMd[r], vT[4 + (r & 1)]))
    return o
def add_mdiag(dst):
    o = []
    for r in range(16):
        o.append(accrd(vT[6 + (r & 1)], aMd[r]))
        o.append(valu('v_add_f32', dst[r], dst[r], vT[6 + (r & 1)]))
    return o

QP = qproj.QP(vLane=vLane, vXa=[V(4), V(5), V(6), V(7)], vWa=[V(16), V(17), V(18), V(19)], vXd=[V(20), V(21), V(22), V(23), V(24), V(25), V(26), V(27)],
              vWd=[V(28), V(29), V(30), V(31)], vT=vT, vXb=[V(112 - 16 + 0 + 0 + 0 + 0), None, None, None], srdX=srdX, srdW=srdW, sXoff=sXoff, sWoff=sWoff,
              sXlds=sXlds, sWlds=sWlds, sWV=sWV, sH=sH, sI=sI, sTmp=sTmp, sScale=sScale, vQ=aQ)
QP.vXb = [V(32), V(33), V(34), V(35)]

def prologue_setup(ST=None):
    o = []; a = o.append
    a(salu('s_cmp_ge_u32', None, sWG, 256)); a(branch('s_cbranch_scc1', 'L_b_end'))
    a(raw("s_load_dwordx2 s[20:21], s[0:1], 88", wr=['s20', 's21']))
    a(raw("s_load_dwordx2 s[44:45], s[0:1], 24", wr=['s44', 's45']))
    a(raw("s_load_dwordx2 s[46:47], s[0:1], 40", wr=['s46', 's47']))
    a(salu('s_and_b32', sH, sWG, 7)); a(salu('s_lshr_b32', sTmp[0], sWG, 3)); a(salu('s_and_b32', sTmp[0], sTmp[0], 3))
    a(salu('s_lshl_b32', sTmp[0], sTmp[0], 3)); a(salu('s_add_u32', sH, sH, sTmp[0]))
    a(salu('s_lshr_b32', sI, sWG, 5))
    a(valu('v_lshrrev_b32', vT[0], 6, V(0))); a(valu('v_and_b32', vLane, 63, V(0))); a(nop(0))
    a(valu('v_readfirstlane_b32', sWV, vT[0]))
    a(valu('v_lshlrev_b32', vL16, 4, vLane))
    a(nop(2))
    o += QP.setup_early()
    a(raw("s_waitcnt lgkmcnt(0)", kind='waitlgkm0'))
    o += set_srd(srdX, sPX, 2 * MB) + set_srd(srdW, sPW, 4 * MB)
    o += QP.first_dmas()
    o += QP.setup_late()
    o += mdiag()
    a(salu('s_lshl_b32', sTmp[0], sWV, 11))
    a(valu('v_add_u32', vD, sTmp[0], vL16))
    o += set_srd(srdWS, sWSP, WS_USED)
    a(salu('s_lshl_b32', sTmp[0], sI, 2)); a(salu('s_sub_u32', sNb, 64, sTmp[0]))
    for srd, reg in ((srdK, WS_KB), (srdV, WS_VB)):
        a(salu('s_lshl_b32', sTmp[0], sH, 19)); a(salu('s_add_u32', sTmp[0], sTmp[0], hexs(reg)))
        a(salu('s_add_u32', srd[0], sWSP[0], sTmp[0])); a(salu('s_addc_u32', srd[1], sWSP[1], 0))
        a(salu('s_and_b32', srd[1], srd[1], '0xffff'))
        a(salu('s_lshl_b32', srd[2], sNb, 13)); a(salu('s_mov_b32', srd[3], '0x20000'))
    a(salu('s_mov_b32', sMode, 0))
    o += ring_scalars()
    kv1 = dma_k(False, 0, ('K', 0)) + dma_k(False, 1, ('K', 1)) + dma_k(False, 2, ('K', 2)) + dma_v(False, 0, ('V', 0)) + \
          dma_k(False, 3, ('K', 3)) + dma_v(False, 1, ('V', 1)) + dma_v(False, 2, ('V', 2)) + dma_v(False, 3, ('V', 3))
    kv2 = dma_k(True, 0, ('K', 4)) + dma_k(True, 1, ('K', 5))
    o += QP.run(kv1, kv2, ST)
    a(branch('s_branch', 'L_b_start2'))
    return o

def ring_scalars():
    o = []; a = o.append
    a(salu('s_lshl_b32', sTmp[0], sWV, 11))
    a(salu('s_mov_b32', sKa, sTmp[0])); a(salu('s_add_u32', sKb, sKa, '0x8000'))
    a(salu('s_add_u32', sVa, sKa, hexs(VRING))); a(salu('s_add_u32', sVb, sVa, '0x8000'))
    a(salu('s_mov_b32', sKoff, 0)); a(salu('s_mov_b32', sVoff, 0))
    return o

def start_safe():
    o = [label('L_b_start')]
    o += ring_scalars()
    o += dma_k(False, 0, ('K', 0)) + dma_k(False, 1, ('K', 1)) + dma_k(False, 2, ('K', 2)) + dma_v(False, 0, ('V', 0)) + dma_k(False, 3, ('K', 3)) + dma_v(False, 1, ('V', 1))
    o += dma_v(False, 2, ('V', 2)) + dma_v(False, 3, ('V', 3)) + dma_k(True, 0, ('K', 4)) + dma_k(True, 1, ('K', 5))
    return o

def start():
    o = []; a = o.append
    a(label('L_b_start2'))
    a(valu('v_mov_b32', vKa, vL16)); a(valu('v_add_u32', vKb, '0x8000', vL16))
    a(valu('v_add_u32', vVa, hexs(VRING), vL16)); a(valu('v_add_u32', vVb, '0x8000', vVa))
    a(valu('v_mov_b32', vT[0], 0)); a(valu('v_mov_b32', vT[1], hexs(FLAG)))
    for u in range(2):
        for x in vL[u]: a(valu('v_mov_b32', x, 0))
    a(valu('v_mov_b32', vChk, 0))
    a(ds_write('ds_write_b32', vT[1], vT[0]))
    a(waitvm(need=[('K', 0)])); a(waitlgkm0()); a(barrier())
    for s in range(8): a(k_read(s, False, 0))
    for s in range(8):
        for u in range(2):
            a(mfma32(vS(0, u), aK(s), aQ(u, s), 0 if s == 0 else vS(0, u)))
    a(nop(7)); a(nop(3))
    l1 = newlabel('p')
    a(salu('s_or_b32', sTmp[0], sI, sWV)); a(salu('s_cmp_lg_u32', None, sTmp[0], 0)); a(branch('s_cbranch_scc1', l1))
    o += add_mdiag(vS(0, 0))
    a(label(l1))
    l2 = newlabel('p')
    a(salu('s_cmp_lg_u32', None, sMode, 0)); a(branch('s_cbranch_scc1', l2))
    for u in range(2):
        s_ = vS(0, u)
        a(valu('v_max3_f32', vM[u], s_[0], s_[1], s_[2]))
        for r in range(3, 15, 2): a(valu('v_max3_f32', vM[u], vM[u], s_[r], s_[r + 1]))
        a(valu('v_max_f32', vM[u], vM[u], s_[15]))
        a(valu('v_mov_b32', vT[u], vM[u]))
        a(nop(1))
        a(valu('v_permlane32_swap_b32', vT[u], vM[u]))
        a(valu('v_max_f32', vM[u], vM[u], vT[u]))
    a(label(l2))
    for u in range(2):
        for r in range(16): a(valu('v_sub_f32', vS(0, u)[r], vS(0, u)[r], vM[u]))
        for r in range(16): a(valu('v_sub_f32', vC(u)[r], 0, vM[u]))
    return o

def set_opts(opts):
    global PKADD, PAIRW, DDUAL, DSINGLE, PFN
    PKADD = bool(int(opts.get('pkadd', 0))); PAIRW = bool(int(opts.get('pairw', 1)))
    DDUAL = int(opts.get('ddual', 8)); DSINGLE = int(opts.get('dsingle', 6)); PFN = int(opts.get('pfn', 5))

def stampn(ST, name, real=False):
    return ST.stamp(name, real=real) if isinstance(ST, Stamps2) else ST.stamp(real=real)

def attn_parts(ST, prof, fin_extra=None):
    st0 = start_safe()
    st = start() + stampn(ST, 'attn')
    F  = body('L_b_F', True, 'full', 'full')
    FM = body('L_b_FM', True, 'mask', 'full')
    D  = body('L_b_D', False, 'full', 'full')
    DM = body('L_b_DM', False, 'mask', 'full')
    TD = body('L_b_TD', False, 'drain', 'full')
    TDM = body('L_b_TDM', False, 'drain', 'mask')
    SF = body('L_b_SF', False, 'off', 'full')
    SM_ = body('L_b_SM', False, 'off', 'mask')
    TL = tail()
    e0a = epi_offsets(0) + epilogue(0); e0b = epi_offsets(0) + epilogue(0)
    e1 = epi_offsets(1) + epilogue(1)
    g_sel = [salu('s_cmp_eq_u32', None, sI, 0), branch('s_cbranch_scc1', 'L_b_FM')]
    g_F = [salu('s_sub_u32', sCnt, sI, 1), salu('s_cmp_eq_u32', None, sCnt, 0), branch('s_cbranch_scc1', 'L_b_DM')]
    g_D = [salu('s_sub_u32', sCnt, sCnt, 1), salu('s_cmp_lg_u32', None, sCnt, 0), branch('s_cbranch_scc1', 'L_b_D')]
    g_DM = [salu('s_cmp_eq_u32', None, sI, 7), branch('s_cbranch_scc1', 'L_b_TDM'), branch('s_branch', 'L_b_TD')]
    g_TD_post = [salu('s_lshl_b32', sCnt, sI, 1), salu('s_sub_u32', sCnt, 13, sCnt)]
    g_SF = [salu('s_sub_u32', sCnt, sCnt, 1), salu('s_cmp_lg_u32', None, sCnt, 0), branch('s_cbranch_scc1', 'L_b_SF')]
    g_SM = [branch('s_branch', 'L_b_tail')]
    chk = []; a = chk.append
    a(vcmp('v_cmp_u_f32', 'vcc', vChk, vChk))
    a(valu('v_mov_b32', vT[1], hexs(FLAG))); a(valu('v_mov_b32', vT[0], 1))
    lf = newlabel('f')
    a(nop(2))
    a(branch('s_cbranch_vccz', lf))
    a(ds_write('ds_write_b32', vT[1], vT[0]))
    a(label(lf))
    a(waitlgkm0()); a(barrier())
    a(ds_read('ds_read_b32', vT[2], vT[1]))
    a(valu('v_readfirstlane_b32', sTmp[0], vT[2]))
    a(salu('s_cmp_eq_u32', None, sTmp[0], 0)); a(branch('s_cbranch_scc1', 'L_b_fin'))
    a(salu('s_cmp_lg_u32', None, sMode, 0)); a(branch('s_cbranch_scc1', 'L_b_fin'))
    safe = maxpass()
    sE0 = stampn(ST, 'e0')
    e0a = sE0 + e0a; e0b = [Ins(x.text, x.kind, x.rd, x.wr) for x in sE0] + e0b
    mid = stampn(ST, 'tailend')
    fin = [label('L_b_fin')] + ([waitvm(n=0)] if prof else []) + stampn(ST, 'end') + stampn(ST, 'realend', True) + ST.flush(sWG, sWV, sWSP, srdK, vT[0], vT[1], sTmp[0]) + [label('L_b_end')]
    code = st0 + st + g_sel + F + g_F + D + g_D + DM + g_DM + FM + TD + e0a + g_TD_post + SF + g_SF + SM_ + g_SM + TDM + e0b + TL + mid + e1 + chk + safe + fin
    def tr(seq):
        out = []
        for seg, m in seq: out += T(seg, m=m)
        return out
    def make_traces(pros):
        traces = []
        for n_, i in enumerate((0, 1, 2, 3, 6, 7)):
            seq = [(pros[n_ % len(pros)], 0), (st, 0), (g_sel, 0)]
            if i == 0: seq += [(FM, 0)]
            else:
                seq += [(F, 0), (g_F, 0)]
                for m in range(1, i): seq += [(D, m), (g_D, m)]
                seq += [(DM, i), (g_DM, i)]
            if i == 7: seq += [(TDM, 8), (e0b, 8)]
            else:
                seq += [(TD, i + 1), (e0a, i + 1), (g_TD_post, i + 1)]
                for m in range(i + 2, 15 - i): seq += [(SF, m), (g_SF, m)]
                seq += [(SM_, 15 - i), (g_SM, 15 - i)]
            seq += [(TL, 16 - i), (mid, 0), (e1, 0), (chk, 0), (safe, 0), (st0, 0), (st, 0), (g_sel, 0), (F, 0)]
            traces.append(tr(seq))
        for p in pros:
            traces.append(tr([(p, 0), (st, 0), (g_sel, 0), (FM, 0), (TD, 1)]))
            traces.append(tr([(p, 0), (st, 0), (g_sel, 0), (F, 0), (g_F, 0), (D, 1)]))
        return traces
    return code, make_traces

def gen(opts=None):
    opts = opts or {}
    set_opts(opts)
    prof = bool(int(opts.get('prof', 0)))
    ST = Stamps(60, prof, 1)
    _lab[0] = 0
    pro = ST.stamp(real=True) + ST.stamp() + prologue_setup(ST)
    code, mk = attn_parts(ST, prof)
    traces = mk([pro])
    resolve_waits(traces)
    fix_hazards(traces, name='battn', verbose=bool(int(opts.get('verbose', 0))))
    return render(pro + code)

def maxpass():
    o = []; a = o.append
    a(label('L_b_safe'))
    a(waitvm(n=0)); a(waitlgkm0()); a(barrier())
    for u in range(2): a(valu('v_mov_b32', vM[u], NEG_INF))
    a(salu('s_mov_b32', sKoff, 0)); a(salu('s_mov_b32', sCnt, 0))
    a(salu('s_lshl_b32', sKa, sWV, 11))
    a(salu('s_lshl_b32', sTmp[2], sI, 2)); a(salu('s_add_u32', sTmp[2], sTmp[2], sWV))
    a(salu('s_sub_u32', sTmp[3], 15, sI)); a(salu('s_lshl_b32', sTmp[3], sTmp[3], 2)); a(salu('s_add_u32', sTmp[3], sTmp[3], sWV))
    a(valu('v_mov_b32', vKa, vL16))
    a(label('L_b_safe_loop'))
    o += dma_k(False, 0, ('KS', 0))
    a(waitvm(n=0)); a(barrier())
    for s in range(8): a(k_read(s, False, 0))
    for u in range(2):
        lskip, ldiag, ljoin = newlabel('s'), newlabel('s'), newlabel('s')
        rb = sTmp[2 + u]; s_ = vS(0, u)
        a(salu('s_cmp_gt_u32', None, sCnt, rb)); a(branch('s_cbranch_scc1', lskip))
        for s in range(8): a(mfma32(s_, aK(s), aQ(u, s), 0 if s == 0 else s_))
        a(nop(7)); a(nop(3))
        a(salu('s_cmp_lg_u32', None, sCnt, rb)); a(branch('s_cbranch_scc1', ljoin))
        o += add_mdiag(s_)
        a(label(ljoin))
        for r in range(0, 16, 2): a(valu('v_max3_f32', vM[u], vM[u], s_[r], s_[r + 1]))
        a(label(lskip))
    a(waitlgkm0()); a(barrier())
    a(salu('s_add_u32', sCnt, sCnt, 1)); a(salu('s_cmp_lt_u32', None, sCnt, sNb)); a(branch('s_cbranch_scc1', 'L_b_safe_loop'))
    for u in range(2):
        a(valu('v_mov_b32', vT[u], vM[u])); a(nop(1))
        a(valu('v_permlane32_swap_b32', vT[u], vM[u]))
        a(valu('v_max_f32', vM[u], vM[u], vT[u]))
    a(salu('s_mov_b32', sMode, 1))
    a(branch('s_branch', 'L_b_start'))
    return o

if __name__ == '__main__':
    t = gen({'verbose': 1})
    print(len(t.splitlines()))
```

```python
from common import *
import k_proj as P
import k_battn as B
from k_proj import *

LDS_BYTES = 163840
sDBG = S(100, 2)
SPIN_MAX = 400000

def configure_B():
    B.srdK, B.srdV, B.srdWS = S(60, 4), S(64, 4), P.srdWS
    B.sWSP, B.sH, B.sI, B.sWV = P.sWSP, P.sH, P.sG, P.sWV
    B.sKa, B.sKb, B.sVa, B.sVb = S(68), S(69), S(70), S(71)
    B.sKoff, B.sVoff, B.sCnt = S(72), S(73), S(74)
    B.sTmp = S(76, 6); B.sMode = S(82); B.sQoff = S(83, 2); B.sNb = S(85)
    B.vLane, B.vL16, B.vD = P.vLane, P.vL16, V(1)
    B.vKa, B.vKb, B.vVa, B.vVb = V(10), V(11), V(12), V(13)
    B.vT = [V(2 + i) for i in range(8)]
    B.vL = [[V(16), V(17)], [V(18), V(19)]]
    B.vM = [V(14), V(15)]; B.vChk = V(20)

def ids_pb():
    o = []; a = o.append
    a(salu('s_and_b32', sH, sWG, 7)); a(salu('s_lshr_b32', sTmp[0], sWG, 3)); a(salu('s_and_b32', sTmp[0], sTmp[0], 3))
    a(salu('s_lshl_b32', sTmp[0], sTmp[0], 3)); a(salu('s_add_u32', sH, sH, sTmp[0]))
    a(salu('s_lshr_b32', sG, sWG, 5))
    a(valu('v_lshrrev_b32', vT[0], 6, V(0))); a(valu('v_and_b32', vLane, 63, V(0))); a(nop(0))
    a(valu('v_readfirstlane_b32', sWV, vT[0]))
    return o

def q_xvoff():
    o = []; a = o.append; l = vLane
    a(salu('s_lshl_b32', sTmp[0], sG, 17)); a(salu('s_lshl_b32', sTmp[1], sWV, 15)); a(salu('s_add_u32', sTmp[0], sTmp[0], sTmp[1]))
    a(salu('s_sub_u32', sTmp[2], 15, sG)); a(salu('s_lshl_b32', sTmp[2], sTmp[2], 17)); a(salu('s_add_u32', sTmp[2], sTmp[2], sTmp[1]))
    a(valu('v_lshrrev_b32', vT[0], 3, l)); a(valu('v_lshlrev_b32', vT[0], 10, vT[0]))
    a(valu('v_and_b32', vT[1], 7, l)); a(valu('v_lshrrev_b32', vT[2], 4, l))
    for p_ in range(8):
        a(valu('v_add_u32', vT[3], 4 * (p_ & 1), vT[2])); a(valu('v_xor_b32', vT[3], vT[3], vT[1]))
        a(valu('v_lshl_add_u32', vT[3], vT[3], 4, vT[0]))
        a(valu('v_add_u32', vT[3], hexs((p_ & 3) * 8192 - (p_ & 3) * 1024), vT[3]))
        a(valu('v_add_u32', vXd[p_], sTmp[0] if p_ < 4 else sTmp[2], vT[3]))
    a(salu('s_mov_b32', sXoff, 0))
    return o
def q_wsetup():
    return set_srd(srdW, sPTR['B_w_q'], 4 * MB) + [salu('s_lshl_b32', sWoff, sH, 8), salu('s_lshl_b32', sTmp[2], sWV, 17), salu('s_add_u32', sWoff, sWoff, sTmp[2])] + w_dma_voff(4, 8192)

def mdiag5():
    o = []; a = o.append
    a(valu('v_and_b32', vT[0], 31, vLane)); a(valu('v_lshrrev_b32', vT[1], 5, vLane)); a(valu('v_lshlrev_b32', vT[1], 2, vT[1]))
    a(valu('v_sub_u32', vT[0], vT[0], vT[1])); a(valu('v_mov_b32', vT[2], B.NEG_INF)); a(valu('v_mov_b32', vT[3], 0))
    for r in range(16):
        kk = 8 * (r >> 2) + (r & 3)
        a(vcmp('v_cmp_le_i32', 'vcc', kk, vT[0])); a(nop(1))
        a(valu('v_cndmask_b32', vT[4], vT[2], vT[3])); a(accwr(B.aMd[r], vT[4]))
    return o

def dbg_srd(): return [salu('s_mov_b32', srdT[0], sDBG[0]), salu('s_and_b32', srdT[1], sDBG[1], '0xffff'), salu('s_mov_b32', srdT[2], 256), salu('s_mov_b32', srdT[3], '0x20000')]
def signal_snip(lbl):
    o = [salu('s_cmp_lg_u32', None, sWV, 0), branch('s_cbranch_scc1', lbl)]
    o += [salu('s_lshl_b32', sTmp[0], sH, 2), valu('v_mov_b32', vT[0], sTmp[0]), valu('v_mov_b32', vT[1], 1),
          raw("s_mov_b64 exec, 1", wr=['exec']), nop(1),
          Ins(f"buffer_atomic_add {vT[1]}, {vT[0]}, {srdT}, 0 offen sc1", 'raw_vmem', rd=vT[0].regs() + vT[1].regs() + srdT.regs()),
          raw("s_mov_b64 exec, -1", wr=['exec']), nop(3), label(lbl)]
    return o

def gen(opts=None):
    opts = opts or {}
    prof = bool(int(opts.get('prof', 0))); touch = bool(int(opts.get('touch', 1)))
    kvflags = opts.get('kvflags', 'sc1'); aflags = opts.get('aflags', '')
    P.NOSTORE = False; P.PBMAP = True
    configure_B(); B.set_opts(opts); B._lab[0] = 0
    ST = Stamps2(86, prof, 1, V(0))
    K = Pass('K', 0, 4, 'K', C_B); Vp = Pass('V', 8, 4, 'V', None); Q = Pass('Q', 24, 4, 'K', None)
    variants = {'AQ': Pass('AQK', 16, 2, 'K', C_A), 'AK': Pass('AQK', 16, 2, 'K', None), 'AV': Pass('AV', 16, 2, 'V', None)}
    LAST = 31
    def rowstride(t): return 3072 if 16 <= t < 24 else 8192
    def NBof(t): return 2 if 16 <= t < 24 else 4
    def xi_of(t): return t if t < 8 else (None if t < 16 else t - 8)
    def xf(ps, st, tb, ks): return A((((st & 1) * 2 + tb) * 4 + ks) * 4, 4) if ps.name == 'Q' else xfrag(st, tb, ks)
    def x_reads2(t, xi):
        slot = xi % 3; out = []; st = t % 8
        for tb in range(2):
            for ks in range(4):
                addr = vXa[ks] if slot < 2 else vXb[ks]
                dst = xf(Q, st, tb, ks) if t >= 24 else xfrag(st, tb, ks)
                out.append(ds_read('ds_read_b128', dst, addr, (XSLOT[slot] if slot < 2 else 0) + tb * 4096))
        return out
    gaps = {}
    def G(t, g):
        n = NBof(t) * 8
        while g >= n: g -= n; t += 1; n = NBof(t) * 8
        return gaps.setdefault((t, g), [])
    def spread(t, ins, g0, g1):
        if not ins: return
        per = (len(ins) + (g1 - g0) - 1) // (g1 - g0)
        for i, x in enumerate(ins): G(t, g0 + i // per).append(x)
    def mfmas(ps, t):
        st = t - ps.t0; out = []
        for nb in range(ps.NB):
            for tb in range(2):
                for ks in range(4):
                    wf = vWf[nb & 1][4 * ks:4 * ks + 4]; x_ = xf(ps, st, tb, ks)
                    c = 0 if (st == 0 and ks == 0) else acc(nb, tb)
                    out.append(mfma32(acc(nb, tb), wf, x_, c) if ps.typ == 'K' else mfma32(acc(nb, tb), x_, wf, c))
        return out
    def common_fill(ps, t, extra_need=()):
        NB = ps.NB; n = NB * 8
        for nb in range(NB):
            if nb + 1 < NB: rs = w_reads(t, nb + 1, NB)
            elif t + 1 <= LAST: rs = w_reads(t + 1, 0, NBof(t + 1))
            else: rs = []
            for i, r in enumerate(rs): G(t, 8 * nb + i).append(r)
        bar = n - 9
        if t + 1 <= LAST: G(t, bar).append(waitvm(need=[('W', t + 1)] + list(extra_need))); G(t, bar).append(barrier())
        wins = []
        if t + 3 <= LAST:
            pre = []
            if t + 3 == 8: pre = switch_w('B_w_uv', [salu('s_sub_u32', sWoff, sWoff, hexs(512 * 8192))])
            if t + 3 == 16:
                pre = switch_w('A_wqkv', [salu('s_lshl_b32', sWoff, sH, 7), salu('s_mul_i32', sTmp[2], sWV, 16 * 3072), salu('s_add_u32', sWoff, sWoff, sTmp[2])])
                pre += w_dma_voff(2, 3072)
            if t + 3 == 24: pre = q_wsetup()
            wins = pre + w_dma(t + 3, NBof(t + 3), rowstride(t + 3))
        xin = xi_of(t + 1) if t + 1 <= LAST else None
        if xin is not None:
            g0 = n - 10
            G(t, g0).append(waitvm(need=[('X', xin)]))
            for i, r in enumerate(x_reads2(t + 1, xin)): G(t, g0 + i).append(r)
        xi = xi_of(t); xins = []
        if xi is not None and xi + 3 <= 23:
            pre = []
            if xi + 3 == 8: pre = switch_x('A_x')
            if xi + 3 == 16: pre = set_srd(srdX, sPTR['B_x'], 2 * MB) + q_xvoff()
            xins = pre + x_dma(xi + 3)
        if NB == 4: spread(t, xins, 8, bar); spread(t, wins, bar + 1, n)
        else: spread(t, wins + xins, bar + 1, n)

    def tagged(lst, tag):
        for x in lst:
            if x.kind == 'vstore': x.tag = tag
        return lst
    for ps in (K, Vp):
        for t in range(ps.t0, ps.t0 + 8): common_fill(ps, t)
    spread(7, epi_setup(K), 1, 5)
    for nb in range(4):
        for tb in range(2):
            b = nb * 2 + tb
            ins = cvt_block(K, nb, tb)
            for i, x in enumerate(ins): G(7, 4 * b + 7 + (i * 5) // len(ins)).append(x)
            for i, x in enumerate(store_block(K, nb, tb, kvflags)): G(8 + b, (9 if b == 0 else 3) + 6 * i).append(x)
    if touch:
        tl = touch_list()
        ts = int(opts.get('tstage', 12))
        nA = 3
        la = [x for g in tl[:nA] for x in g]; lq = [x for g in tl[nA:] for x in g] if int(opts.get('touchq', 1)) else []
        tq = int(opts.get('tstageq', 8))
        if tq == ts: spread(ts, la + lq, 8, 23)
        else: spread(ts, la, 8, 23); spread(tq, lq, 8, 23)
    spread(15, epi_setup(Vp), 11, 15)
    vcvt = []
    for nb in range(4):
        for tb in range(2):
            b = nb * 2 + tb
            for i, x in enumerate(cvt_block(Vp, nb, tb)): vcvt.append((4 * b + 7 + i // 2, x))
    for g, x in vcvt:
        if g < 32: G(15, g).append(x)
    ar = w_read_addr(2, dst=[vWa[0], vT[4]])
    spread(15, ar, 16, 23)
    G(15, 23).append(valu('v_mov_b32', vWa[1], vT[4]))

    pro = ST.stamp('real0', real=True) + ST.stamp('t0')
    a = pro.append
    a(salu('s_cmp_ge_u32', None, sWG, 256)); a(branch('s_cbranch_scc1', 'L_b_end'))
    a(raw("s_load_dwordx16 s[20:35], s[0:1], 0", wr=[f"s{i}" for i in range(20, 36)]))
    a(raw("s_load_dwordx2 s[36:37], s[0:1], 64", wr=['s36', 's37']))
    a(raw("s_load_dwordx2 s[38:39], s[0:1], 88", wr=['s38', 's39']))
    a(raw("s_load_dwordx2 s[100:101], s[0:1], 80", wr=['s100', 's101']))
    pro += ids_pb() + x_dma_voff() + w_dma_voff(4, 8192)
    a(salu('s_lshl_b32', sXlds, sWV, 13)); a(salu('s_lshl_b32', sWlds, sWV, 12))
    a(salu('s_lshl_b32', sXoff, sG, 18)); a(salu('s_lshl_b32', sTmp[0], sWV, 16)); a(salu('s_add_u32', sXoff, sXoff, sTmp[0]))
    a(salu('s_lshl_b32', sWoff, sH, 8)); a(salu('s_lshl_b32', sTmp[0], sWV, 17)); a(salu('s_add_u32', sWoff, sWoff, sTmp[0]))
    a(raw("s_waitcnt lgkmcnt(0)", kind='waitlgkm0'))
    pro += set_srd(srdX, sPTR['B_c_kv'], 2 * MB) + set_srd(srdW, sPTR['B_w_uk'], 4 * MB)
    start = x_dma(0) + w_dma(0, 4, 8192) + x_dma(1) + w_dma(1, 4, 8192) + x_dma(2) + w_dma(2, 4, 8192)
    start += x_read_addr() + w_read_addr(4) + [valu('v_lshlrev_b32', vL16, 4, vLane)] + set_srd(srdWS, sWSP, WS_USED)
    start += [waitvm(need=[('X', 0), ('W', 0)]), barrier()] + x_reads2(0, 0) + w_reads(0, 0, 4)
    main = []
    for ps in (K, Vp):
        for t in range(ps.t0, ps.t0 + 8):
            main.append(comment(f"stage {t} ({ps.name})"))
            if t in (0, 1, 4, 8, 9, 10, 12): main += ST.stamp(f"st{t}")
            for g, m in enumerate(mfmas(ps, t)): main.append(m); main += gaps.get((t, g), [])
    main = m0_peephole(main)
    def fresh(lst): return [Ins(x.text, x.kind, x.rd, x.wr) for x in lst]
    vSt = vXb[0]
    sStA = S(96, 2)
    DISP = ST.stamp('disp')
    ASTAMP = {t: ST.stamp(f'a{t}') for t in (17, 18, 20, 21, 22, 23)}
    ATAIL = ST.stamp('atail')
    var_code = {}
    for vn, ps in variants.items():
        for k in [k for k in gaps if k[0] >= 16]: del gaps[k]
        for t in range(16, 24): common_fill(ps, t)
        for g, x in vcvt:
            if g >= 32: G(16, g - 32).append(Ins(x.text, x.kind, x.rd, x.wr))
        spread(23, w_read_addr(4, dst=[vWa[0], vT[4], vWa[2], vWa[3]]), 0, 4)
        G(23, 9).append(valu('v_mov_b32', vWa[1], vT[4]))
        spread(23, epi_setup(ps, sStA), 4, 6)
        if ps.name == 'AV':
            l = vLane
            sv = [valu('v_bfe_u32', vT[0], l, 4, 1), valu('v_lshlrev_b32', vT[0], 16, vT[0]), valu('v_lshrrev_b32', vT[1], 5, l),
                  valu('v_lshl_add_u32', vT[0], vT[1], 8, vT[0]), valu('v_and_b32', vT[1], 15, l), valu('v_lshl_add_u32', vSt, vT[1], 4, vT[0])]
            spread(23, sv, 5, 7)
        tail = []
        for nb in range(2):
            for tb in range(2):
                b = nb * 2 + tb
                pk = acc(nb, tb)[0:8]
                ins = cvt_block(ps, nb, tb, pk) + store_block(ps, nb, tb, aflags, vSt, pk, sStA)
                for i, x in enumerate(ins):
                    g = 4 * b + 7 + i // 5
                    if g < 16: G(23, g).append(x)
                    else: tail.append(x)
        code = [label(f"L_proj_{vn}")]
        for t in range(16, 24):
            code.append(comment(f"stage {t} ({vn})"))
            code += fresh(ASTAMP.get(t, []))
            for g, m in enumerate(mfmas(ps, t)): code.append(m); code += gaps.get((t, g), [])
        if ps.name == 'AV': tail.append(valu('v_add_u32', vXb[0], '0x10000', vXa[0]))
        var_code[vn] = m0_peephole(code) + fresh(ATAIL) + tail + [branch('s_branch', 'L_Q')]
    tr = [label("L_proj_TR")] + fresh([x for g, x in vcvt if g >= 32])
    for t in (17, 18, 20, 21, 22, 23): tr += fresh(ASTAMP[t])
    tr += fresh(ATAIL)
    trj = transpose_job(aflags, sStA)
    for x in trj:
        if x.kind == 'branch' and 'L_proj_fin' in x.text: x.text = x.text.replace('L_proj_fin', 'L_TR_done')
    tr += trj + [label('L_TR_done'), waitlgkm0(), barrier()]
    tr += set_srd(srdX, sPTR['B_x'], 2 * MB) + q_xvoff() + q_wsetup()
    tr += x_dma(16) + w_dma(24, 4, 8192) + x_dma(17) + w_dma(25, 4, 8192) + x_dma(18) + w_dma(26, 4, 8192)
    tr += w_read_addr(4)
    tr += [waitvm(need=[('X', 16), ('W', 24)]), barrier()] + x_reads2(24, 16) + w_reads(24, 0, 4)
    for k in [k for k in gaps if k[0] >= 24]: del gaps[k]
    for t in range(24, 32): common_fill(Q, t, extra_need=(['VS'] if t == 26 else []))
    vst = []
    for nb in range(4):
        for tb in range(2): vst += tagged(store_block(Vp, nb, tb, kvflags), 'VS')
    spread(24, vst, 0, 16)
    G(26, 23).extend(dbg_srd() + signal_snip('L_sig'))
    spread(25, mdiag5(), 0, 22)
    vPoll = vT[2]
    G(28, 2).extend([salu('s_lshl_b32', sTmp[0], sH, 2), valu('v_mov_b32', vT[0], sTmp[0])])
    pl = bload(vPoll, vT[0], srdT, 0, 0, op='buffer_load_dword', flags='sc1', tag='POLL')
    G(28, 3).append(pl)
    chk = [waitvm(need=['POLL']), valu('v_readfirstlane_b32', sTmp[1], vPoll), salu('s_cmp_lt_u32', None, sTmp[1], 8), branch('s_cbranch_scc1', 'L_spin'), label('L_spin_ret'),
           salu('s_cmp_lg_u32', None, sWV, 0), branch('s_cbranch_scc1', 'L_noinv'), raw("buffer_inv sc1", kind='salu'), label('L_noinv')]
    G(29, 12).extend(chk)
    su = []
    su += [salu('s_lshl_b32', B.sTmp[0], sG, 2), salu('s_sub_u32', B.sNb, 64, B.sTmp[0])]
    for srd, reg in ((B.srdK, WS_KB), (B.srdV, WS_VB)):
        su += [salu('s_lshl_b32', B.sTmp[0], sH, 19), salu('s_add_u32', B.sTmp[0], B.sTmp[0], hexs(reg)),
               salu('s_add_u32', srd[0], sWSP[0], B.sTmp[0]), salu('s_addc_u32', srd[1], sWSP[1], 0), salu('s_and_b32', srd[1], srd[1], '0xffff'),
               salu('s_lshl_b32', srd[2], B.sNb, 13), salu('s_mov_b32', srd[3], '0x20000')]
    su += [salu('s_mov_b32', B.sMode, 0)] + B.ring_scalars()
    spread(29, su, 14, 22)
    G(30, 2).extend([salu('s_lshl_b32', B.sTmp[0], sWV, 11), valu('v_add_u32', B.vD, B.sTmp[0], vL16)])
    kv1 = B.dma_k(False, 0, ('K', 0)) + B.dma_k(False, 1, ('K', 1)) + B.dma_k(False, 2, ('K', 2)) + B.dma_v(False, 0, ('V', 0)) + \
          B.dma_k(False, 3, ('K', 3)) + B.dma_v(False, 1, ('V', 1)) + B.dma_v(False, 2, ('V', 2)) + B.dma_v(False, 3, ('V', 3))
    kv2 = B.dma_k(True, 0, ('K', 4)) + B.dma_k(True, 1, ('K', 5))
    spread(30, kv1[:16], 24, 32); spread(31, kv1[16:], 0, 12)
    qtail = []
    for nb in range(4):
        for u in range(2):
            b = nb * 2 + u; ac = acc(nb, u)
            ins = [valu('v_cvt_pk_bf16_f32', B.aQ(u, 2 * nb + (i >> 2))[i & 3], ac[2 * i], ac[2 * i + 1]) for i in range(8)]
            for i, x in enumerate(ins):
                g = 4 * b + 7 + i // 2
                if g < 32: G(31, g).append(x)
                else: qtail.append(x)
    qcode = [label('L_Q')]
    for t in range(24, 32):
        qcode.append(comment(f"stage {t} (Q)"))
        if t in (24, 25, 26, 28, 29, 30, 31): qcode += ST.stamp(f"q{t}")
        for g, m in enumerate(mfmas(Q, t)): qcode.append(m); qcode += gaps.get((t, g), [])
    qcode = m0_peephole(qcode) + ST.stamp('qend') + [waitlgkm0(), barrier()] + kv2 + qtail + [branch('s_branch', 'L_b_start2')]
    spin = [label('L_spin'), salu('s_mov_b32', sTmp[3], SPIN_MAX), label('L_spin_loop'), raw("s_sleep 2"),
            bload(vPoll, vT[0], srdT, 0, 0, op='buffer_load_dword', flags='sc1'), waitvm(n=0), valu('v_readfirstlane_b32', sTmp[1], vPoll),
            salu('s_cmp_ge_u32', None, sTmp[1], 8), branch('s_cbranch_scc1', 'L_spin_ret'),
            salu('s_sub_u32', sTmp[3], sTmp[3], 1), salu('s_cmp_lg_u32', None, sTmp[3], 0), branch('s_cbranch_scc1', 'L_spin_loop'), branch('s_branch', 'L_spin_ret')]
    disp = DISP + [salu('s_cmp_ge_u32', None, sH, 24), branch('s_cbranch_scc1', 'L_proj_TR'),
            salu('s_cmp_ge_u32', None, sH, 16), branch('s_cbranch_scc1', 'L_proj_AV'),
            salu('s_cmp_ge_u32', None, sH, 8), branch('s_cbranch_scc1', 'L_proj_AK')]
    head = pro + start + main + disp
    acode, mk = B.attn_parts(ST, prof)
    pros = [head + var_code[vn] + qcode for vn in ('AQ', 'AK', 'AV')] + [head + tr + qcode]
    traces = mk(pros)
    traces.append(T(spin))
    resolve_waits(traces)
    fix_hazards(traces, name='pb', verbose=bool(int(opts.get('verbose', 0))))
    code = head + var_code['AQ'] + var_code['AK'] + var_code['AV'] + tr + qcode + spin + acode
    global LAST_STAMPS
    LAST_STAMPS = list(getattr(ST, 'names', []))
    return render(code)

if __name__ == '__main__':
    t = gen({'verbose': 0}); print(len(t.splitlines()))
```

```python
from common import *

NAME = "proj_kernel"
LDS_BYTES = 163840
XSLOT = [0, 32768, 65536]
WBASE = 98304
WSLOT = [WBASE + 16384 * i for i in range(4)]
NOSTORE = False
TOUCH_MODE = 1
PBMAP = False
TOUCH_STAGE = 8
PKMUL = False

sWG = S(2)
PN = ['A_x', 'A_wqkv', 'A_wo', 'B_x', 'B_c_kv', 'B_w_q', 'B_w_uk', 'B_w_uv', 'B_w_o']
sPTR = {k: S(20 + 2 * i, 2) for i, k in enumerate(PN)}
sWSP = S(38, 2)
srdX, srdW, srdWS, srdT = S(8, 4), S(12, 4), S(16, 4), S(4, 4)
sG, sH, sWV = S(40), S(41), S(42)
sXoff, sWoff = S(43), S(44)
sXlds, sWlds = S(45), S(46)
sSt = S(47, 4)
sSt2 = S(60, 4) if False else S(52, 1)
sTmp = S(52, 4)
sScale = S(56, 2)
sU = S(58)
vXa = [V(1 + i) for i in range(4)]
vWa = [V(5 + i) for i in range(4)]
vXd = [V(9 + i) for i in range(8)]
vWd = [V(17 + i) for i in range(4)]
vL16 = V(21)
vT = [V(22 + i) for i in range(5)]
vLane = V(27)
vXb = [V(28 + i) for i in range(4)]
def hold(b): return V(32 + 8 * b, 8)
vTD = V(25)
vWf = [V(96, 16), V(112, 16)]
def acc(nb, tb): return V(128 + (nb * 2 + tb) * 16, 16)
def xfrag(st, tb, ks): return A(((st * 2 + tb) * 4 + ks) * 4, 4)

def ids():
    o = []; a = o.append
    a(salu('s_and_b32', sTmp[0], sWG, 7)); a(salu('s_lshr_b32', sTmp[1], sWG, 3))
    a(salu('s_and_b32', sG, sTmp[0], 1)); a(salu('s_lshl_b32', sG, sG, 2))
    a(salu('s_and_b32', sTmp[2], sTmp[1], 3)); a(salu('s_add_u32', sG, sG, sTmp[2]))
    a(salu('s_lshr_b32', sH, sTmp[0], 1)); a(salu('s_lshl_b32', sH, sH, 3))
    a(salu('s_lshr_b32', sTmp[2], sTmp[1], 2)); a(salu('s_add_u32', sH, sH, sTmp[2]))
    a(valu('v_lshrrev_b32', vT[0], 6, V(0))); a(valu('v_and_b32', vLane, 63, V(0))); a(nop(0))
    a(valu('v_readfirstlane_b32', sWV, vT[0]))
    return o
def x_dma_voff():
    o = []; a = o.append; l = vLane
    a(valu('v_lshrrev_b32', vT[0], 3, l)); a(valu('v_lshlrev_b32', vT[0], 10, vT[0]))
    a(valu('v_and_b32', vT[1], 7, l)); a(valu('v_lshrrev_b32', vT[2], 4, l))
    for p_ in range(8):
        a(valu('v_add_u32', vT[3], 4 * (p_ & 1), vT[2])); a(valu('v_xor_b32', vT[3], vT[3], vT[1]))
        a(valu('v_lshl_add_u32', vT[3], vT[3], 4, vT[0]))
        a(valu('v_add_u32', vXd[p_], hexs(p_ * 8192 - (p_ & 3) * 1024), vT[3]))
    return o
def w_dma_voff(NB, rowstride):
    o = []; a = o.append; l = vLane
    if NB == 4:
        a(valu('v_lshrrev_b32', vT[0], 4, l)); a(valu('v_lshlrev_b32', vT[1], 2, vT[0])); a(valu('v_and_b32', vT[2], 15, l))
        a(valu('v_xor_b32', vT[1], vT[1], vT[2])); a(valu('v_mul_u32_u24', vT[0], hexs(rowstride), vT[0])); a(valu('v_lshl_add_u32', vT[0], vT[1], 4, vT[0]))
        for q in range(4): a(valu('v_add_u32', vWd[q], hexs(q * (4 * rowstride - 1024)), vT[0]))
    else:
        a(valu('v_lshrrev_b32', vT[0], 3, l)); a(valu('v_bfe_u32', vT[1], l, 4, 1)); a(valu('v_lshlrev_b32', vT[1], 2, vT[1]))
        a(valu('v_and_b32', vT[2], 7, l)); a(valu('v_xor_b32', vT[1], vT[1], vT[2]))
        a(valu('v_mul_u32_u24', vT[0], hexs(rowstride), vT[0])); a(valu('v_lshl_add_u32', vT[0], vT[1], 4, vT[0]))
        for q in range(2): a(valu('v_add_u32', vWd[q], hexs(q * (8 * rowstride - 1024)), vT[0]))
    return o
def x_read_addr():
    o = []; a = o.append; l = vLane
    a(valu('v_and_b32', vT[0], 31, l)); a(valu('v_lshrrev_b32', vT[1], 5, l)); a(valu('v_bfe_u32', vT[2], vT[0], 1, 3))
    a(valu('v_lshlrev_b32', vT[3], 7, vT[0])); a(valu('v_add_u32', vT[3], sXlds, vT[3]))
    for ks in range(4):
        a(valu('v_add_u32', vT[4], 2 * ks, vT[1])); a(valu('v_xor_b32', vT[4], vT[4], vT[2]))
        a(valu('v_lshl_add_u32', vXa[ks], vT[4], 4, vT[3])); a(valu('v_add_u32', vXb[ks], '0x10000', vXa[ks]))
    return o
def w_read_addr(NB, perm=False, dst=None):
    dst = dst or vWa
    o = []; a = o.append; l = vLane
    a(valu('v_and_b32', vT[0], 15, l)); a(valu('v_lshrrev_b32', vT[1], 2, vT[0])); a(valu('v_lshrrev_b32', vT[2], 5, l))
    a(valu('v_lshl_add_u32', vT[2], vT[2], 2 if perm else 3, vT[1])); a(valu('v_lshlrev_b32', vT[2], 8 if NB == 4 else 7, vT[2]))
    a(valu('v_bfe_u32', vT[3], l, 4, 1)); a(valu('v_lshl_add_u32', vT[2], vT[3], 5, vT[2]))
    a(valu('v_and_b32', vT[3], 3, vT[0])); a(valu('v_lshl_add_u32', vT[2], vT[3], 3, vT[2]))
    a(valu('v_add_u32', vT[2], hexs(WBASE), vT[2]))
    if NB == 2: a(valu('v_lshrrev_b32', vT[1], 1, vT[1]))
    for nb in range(NB):
        a(valu('v_xor_b32', vT[3], nb, vT[1])); a(valu('v_lshl_add_u32', dst[nb], vT[3], 6, vT[2]))
    return o

def touch_load():
    i = bload(vTD, vT[4], srdT, 0, 0, op='buffer_load_dword'); i.nowaw = True; return i

def tid_times(k):
    return [salu('s_lshl_b32', sTmp[2], sWV, 6), valu('v_add_u32', vT[4], sTmp[2], vLane), valu('v_mul_u32_u24', vT[4], hexs(k), vT[4])]

def touch_list():
    groups = []
    vA = V(94); vD_ = V(95)
    def srd(name, off_ins, size):
        o = list(off_ins)
        o += [salu('s_add_u32', srdT[0], sPTR[name][0], sTmp[0]), salu('s_addc_u32', srdT[1], sPTR[name][1], 0),
              salu('s_and_b32', srdT[1], srdT[1], '0xffff'), salu('s_mov_b32', srdT[2], hexs(size)), salu('s_mov_b32', srdT[3], '0x20000')]
        return o
    if PBMAP:
        for half in range(2):
            g = srd('A_x', [salu('s_lshl_b32', sTmp[0], sG, 18), salu('s_lshr_b32', sTmp[1], sH, 3), salu('s_lshl_b32', sTmp[1], sTmp[1], 16),
                            salu('s_add_u32', sTmp[0], sTmp[0], sTmp[1]), salu('s_add_u32', sTmp[0], sTmp[0], hexs(half * 32768))], 32768)
            g += [*tid_times(128), touch_load()]
            groups.append(g)
        g = srd('A_wqkv', [salu('s_mul_i32', sTmp[0], sG, 64 * 3072), salu('s_lshl_b32', sTmp[1], sH, 7), salu('s_add_u32', sTmp[0], sTmp[0], sTmp[1])], 63 * 3072 + 128)
        g += [*tid_times(3072), touch_load()]
        groups.append(g)
    else:
        g = srd('A_x', [salu('s_lshl_b32', sTmp[0], sG, 18), salu('s_and_b32', sTmp[1], sH, 7), salu('s_lshl_b32', sTmp[1], sTmp[1], 15), salu('s_add_u32', sTmp[0], sTmp[0], sTmp[1])], 32768)
        g += [*tid_times(128), touch_load()]
        groups.append(g)
        g = srd('A_wqkv', [salu('s_and_b32', sTmp[0], sG, 1), salu('s_mul_i32', sTmp[0], sTmp[0], 256 * 3072), salu('s_lshl_b32', sTmp[1], sH, 7), salu('s_add_u32', sTmp[0], sTmp[0], sTmp[1])], 256 * 3072)
        g += [*tid_times(3072), touch_load()]
        groups.append(g)
    for name, size in (('B_x', 2 * MB), ('B_w_q', 4 * MB)):
        per = size // 256
        g = srd(name, [salu('s_mul_i32', sTmp[0], sWG, hexs(per))], per)
        g += [*tid_times(128), touch_load()]
        groups.append(g)
    return groups


class Pass:
    def __init__(s, name, t0, NB, typ, scale):
        s.name, s.t0, s.NB, s.typ, s.scale = name, t0, NB, typ, scale

def x_dma(xi):
    slot = XSLOT[xi % 3]; out = []
    for p_ in range(8):
        if p_ % 4 == 0: out.append(salu('s_add_u32', 'm0', sXlds, hexs(slot + (p_ >> 2) * 4096)))
        out.append(dma(vXd[p_], srdX, sXoff, (p_ & 3) * 1024, tag=('X', xi)))
    out.append(salu('s_add_u32', sXoff, sXoff, 128))
    return out
def w_dma(t, NB, rowstride):
    slot = WSLOT[t % 4]; out = []
    if NB == 4:
        out.append(salu('s_add_u32', 'm0', sWlds, hexs(slot)))
        for q in range(4): out.append(dma(vWd[q], srdW, sWoff, q * 1024, tag=('W', t)))
    else:
        out.append(salu('s_lshr_b32', sTmp[3], sWlds, 1)); out.append(salu('s_add_u32', 'm0', sTmp[3], hexs(slot)))
        for q in range(2): out.append(dma(vWd[q], srdW, sWoff, q * 1024, tag=('W', t)))
    out.append(salu('s_add_u32', sWoff, sWoff, hexs(64 * rowstride)))
    return out
def x_reads(st, xi):
    slot = xi % 3; out = []
    for tb in range(2):
        for ks in range(4):
            addr = vXa[ks] if slot < 2 else vXb[ks]
            out.append(ds_read('ds_read_b128', xfrag(st, tb, ks), addr, (XSLOT[slot] if slot < 2 else 0) + tb * 4096))
    return out
def w_reads(t, nb, NB):
    buf = vWf[nb & 1]; rowb = 256 if NB == 4 else 128; out = []
    for ks in range(4):
        for r2 in range(2):
            out.append(ds_read('ds_read_b64_tr_b16', buf[4 * ks + 2 * r2: 4 * ks + 2 * r2 + 2], vWa[nb], (t % 4) * 16384 + (16 * ks + 4 * r2) * rowb))
    return out
def switch_x(name): return set_srd(srdX, sPTR[name], 2 * MB) + [salu('s_sub_u32', sXoff, sXoff, 1024)]
def switch_w(name, first): return set_srd(srdW, sPTR[name], 4 * MB if name != 'A_wqkv' else 512 * 3072) + first

def cvt_block(ps, nb, tb, pk=None):
    b = nb * 2 + tb; ac = acc(nb, tb); pk = pk or hold(b); out = []
    if ps.scale:
        if PKMUL:
            for i in range(8): out.append(valu('v_pk_mul_f32', ac[2 * i:2 * i + 2], ac[2 * i:2 * i + 2], sScale))
        else:
            for i in range(16): out.append(valu('v_mul_f32', ac[i], sScale[0], ac[i]))
    for i in range(8): out.append(valu('v_cvt_pk_bf16_f32', pk[i], ac[2 * i], ac[2 * i + 1]))
    return out
def store_block(ps, nb, tb, flags, vSt=None, pk=None, sSt=None):
    if NOSTORE: return []
    sSt = sSt or globals()['sSt']
    b = nb * 2 + tb; pk = pk or hold(b); out = []
    if ps.name == 'K':
        so = sSt[tb * 2 + (nb >> 1)]
        out += [bstore(pk[0:4], vL16, srdWS, so, (nb & 1) * 2048, flags=flags), bstore(pk[4:8], vL16, srdWS, so, (nb & 1) * 2048 + 1024, flags=flags)]
    elif ps.name == 'V':
        out += [bstore(pk[0:4], vL16, srdWS, sSt[tb * 2 + 0], nb * 1024, flags=flags), bstore(pk[4:8], vL16, srdWS, sSt[tb * 2 + 1], nb * 1024, flags=flags)]
    elif ps.name == 'AQK':
        out += [salu('s_add_u32', sTmp[0], sSt[tb], hexs((2 * nb) * 65536)), bstore(pk[0:4], vL16, srdWS, sTmp[0], 0, flags=flags),
                salu('s_add_u32', sTmp[1], sSt[tb], hexs((2 * nb + 1) * 65536)), bstore(pk[4:8], vL16, srdWS, sTmp[1], 0, flags=flags)]
    elif ps.name == 'AV':
        out += [salu('s_add_u32', sTmp[0], sSt[tb], hexs((2 * nb) * 65536)), bstore(pk[0:4], vSt, srdWS, sTmp[0], 0, flags=flags), bstore(pk[4:8], vSt, srdWS, sTmp[0], 512, flags=flags)]
    return out
def epi_setup(ps, sSt=None):
    sSt = sSt or globals()['sSt']
    o = []; a = o.append
    a(salu('s_lshl_b32', sTmp[0], sG, 3)); a(salu('s_lshl_b32', sTmp[1], sWV, 1)); a(salu('s_add_u32', sTmp[0], sTmp[0], sTmp[1]))
    if ps.name in ('K', 'V'):
        base = {'K': WS_KB, 'V': WS_VB}[ps.name]
        a(salu('s_lshl_b32', sTmp[1], sH, 6)); a(salu('s_add_u32', sTmp[0], sTmp[0], sTmp[1])); a(salu('s_lshl_b32', sTmp[0], sTmp[0], 13))
        a(salu('s_add_u32', sSt[0], sTmp[0], hexs(base))); a(salu('s_add_u32', sSt[1], sSt[0], 4096))
        a(salu('s_add_u32', sSt[2], sSt[0], 8192)); a(salu('s_add_u32', sSt[3], sSt[0], 8192 + 4096))
    else:
        a(salu('s_lshr_b32', sTmp[1], sH, 3)); a(salu('s_lshl_b32', sTmp[1], sTmp[1], 21))
        a(salu('s_and_b32', sTmp[2], sH, 7)); a(salu('s_lshl_b32', sTmp[2], sTmp[2], 18)); a(salu('s_add_u32', sTmp[1], sTmp[1], sTmp[2]))
        a(salu('s_lshl_b32', sTmp[0], sTmp[0], 10)); a(salu('s_add_u32', sTmp[0], sTmp[0], sTmp[1]))
        a(salu('s_add_u32', sSt[0], sTmp[0], hexs(WS_QA))); a(salu('s_add_u32', sSt[1], sSt[0], 1024))
    if ps.scale: a(s_mov(sScale[0], f2u(ps.scale))); a(s_mov(sScale[1], f2u(ps.scale)))
    return o

def gen(store_flags="", prof=False, touch=True):
    ST = Stamps(60, prof, 0)
    K = Pass('K', 0, 4, 'K', C_B); Vp = Pass('V', 8, 4, 'V', None)
    variants = {'AQ': Pass('AQK', 16, 2, 'K', C_A), 'AK': Pass('AQK', 16, 2, 'K', None), 'AV': Pass('AV', 16, 2, 'V', None)}
    LAST = 23
    def rowstride(t): return 8192 if t < 16 else 3072
    def NBof(t): return 4 if t < 16 else 2
    def xi_of(t): return t if t < 8 else (None if t < 16 else t - 8)
    def t_of_xi(xi): return xi if xi < 8 else xi + 8
    gaps = {}
    def G(t, g):
        n = NBof(t) * 8
        while g >= n: g -= n; t += 1; n = NBof(t) * 8
        return gaps.setdefault((t, g), [])
    def spread(t, ins, g0, g1):
        if not ins: return
        per = (len(ins) + (g1 - g0) - 1) // (g1 - g0)
        for i, x in enumerate(ins): G(t, g0 + i // per).append(x)
    def mfmas(ps, t):
        st = t - ps.t0; out = []
        for nb in range(ps.NB):
            for tb in range(2):
                for ks in range(4):
                    wf = vWf[nb & 1][4 * ks:4 * ks + 4]; xf = xfrag(st, tb, ks)
                    c = 0 if (st == 0 and ks == 0) else acc(nb, tb)
                    out.append(mfma32(acc(nb, tb), wf, xf, c) if ps.typ == 'K' else mfma32(acc(nb, tb), xf, wf, c))
        return out
    def common_fill(ps, t):
        NB = ps.NB; n = NB * 8
        for nb in range(NB):
            if nb + 1 < NB: rs = w_reads(t, nb + 1, NB)
            elif t + 1 <= LAST: rs = w_reads(t + 1, 0, NBof(t + 1))
            else: rs = []
            for i, r in enumerate(rs): G(t, 8 * nb + i).append(r)
        bar = n - 9
        if t + 1 <= LAST: G(t, bar).append(waitvm(need=[('W', t + 1)])); G(t, bar).append(barrier())
        wins = []
        if t + 3 <= LAST:
            pre = []
            if t + 3 == 8: pre = switch_w('B_w_uv', [salu('s_sub_u32', sWoff, sWoff, hexs(512 * 8192))])
            if t + 3 == 16:
                pre = switch_w('A_wqkv', [salu('s_lshl_b32', sWoff, sH, 7), salu('s_mul_i32', sTmp[2], sWV, 16 * 3072), salu('s_add_u32', sWoff, sWoff, sTmp[2])])
                pre += w_dma_voff(2, 3072)
            wins = pre + w_dma(t + 3, NBof(t + 3), rowstride(t + 3))
        xin = xi_of(t + 1) if t + 1 <= LAST else None
        if xin is not None:
            g0 = n - 10
            G(t, g0).append(waitvm(need=[('X', xin)]))
            for i, r in enumerate(x_reads((t + 1) % 8, xin)): G(t, g0 + i).append(r)
        xi = xi_of(t); xins = []
        if xi is not None and xi + 3 <= 15:
            xins = (switch_x('A_x') if xi + 3 == 8 else []) + x_dma(xi + 3)
        if NB == 4: spread(t, xins, 8, bar); spread(t, wins, bar + 1, n)
        else: spread(t, wins + xins, bar + 1, n)

    for ps in (K, Vp):
        for t in range(ps.t0, ps.t0 + 8): common_fill(ps, t)
    spread(7, epi_setup(K), 1, 5)
    for nb in range(4):
        for tb in range(2):
            b = nb * 2 + tb
            ins = cvt_block(K, nb, tb)
            for i, x in enumerate(ins): G(7, 4 * b + 7 + (i * 5) // len(ins)).append(x)
            for i, x in enumerate(store_block(K, nb, tb, store_flags)): G(8 + b, (9 if b == 0 else 3) + 6 * i).append(x)
    if touch:
        tl = touch_list()
        if TOUCH_MODE == 1: spread(TOUCH_STAGE, [x for g in tl for x in g], 8, 23)
        else:
            for i, g in enumerate(tl): spread(8 + i, g, 12, 22)
    spread(15, epi_setup(Vp), 11, 15)
    vcvt = []
    for nb in range(4):
        for tb in range(2):
            b = nb * 2 + tb
            for i, x in enumerate(cvt_block(Vp, nb, tb)): vcvt.append((4 * b + 7 + i // 2, x))
    for g, x in vcvt:
        if g < 32: G(15, g).append(x)
    ar = w_read_addr(2, dst=[vWa[0], vT[4]])
    spread(15, ar, 16, 23)
    G(15, 23).append(valu('v_mov_b32', vWa[1], vT[4]))

    pro = ST.stamp(real=True) + ST.stamp()
    a = pro.append
    a(salu('s_cmp_ge_u32', None, sWG, 256)); a(branch('s_cbranch_scc1', 'L_proj_end'))
    a(raw("s_load_dwordx16 s[20:35], s[0:1], 0", wr=[f"s{i}" for i in range(20, 36)]))
    a(raw("s_load_dwordx2 s[36:37], s[0:1], 64", wr=['s36', 's37']))
    a(raw("s_load_dwordx2 s[38:39], s[0:1], 88", wr=['s38', 's39']))
    pro += ids() + x_dma_voff() + w_dma_voff(4, 8192)
    a(salu('s_lshl_b32', sXlds, sWV, 13)); a(salu('s_lshl_b32', sWlds, sWV, 12))
    a(salu('s_lshl_b32', sXoff, sG, 18)); a(salu('s_lshl_b32', sTmp[0], sWV, 16)); a(salu('s_add_u32', sXoff, sXoff, sTmp[0]))
    a(salu('s_lshl_b32', sWoff, sH, 8)); a(salu('s_lshl_b32', sTmp[0], sWV, 17)); a(salu('s_add_u32', sWoff, sWoff, sTmp[0]))
    a(raw("s_waitcnt lgkmcnt(0)", kind='waitlgkm0'))
    pro += set_srd(srdX, sPTR['B_c_kv'], 2 * MB) + set_srd(srdW, sPTR['B_w_uk'], 4 * MB)
    start = x_dma(0) + w_dma(0, 4, 8192) + x_dma(1) + w_dma(1, 4, 8192) + x_dma(2) + w_dma(2, 4, 8192)
    start += x_read_addr() + w_read_addr(4) + [valu('v_lshlrev_b32', vL16, 4, vLane)] + set_srd(srdWS, sWSP, WS_USED)
    start += [waitvm(need=[('X', 0), ('W', 0)]), barrier()] + x_reads(0, 0) + w_reads(0, 0, 4)
    main = []
    for ps in (K, Vp):
        for t in range(ps.t0, ps.t0 + 8):
            main.append(comment(f"stage {t} ({ps.name})"))
            if t in (0, 1, 2, 4, 8, 9, 10, 12): main += ST.stamp()
            for g, m in enumerate(mfmas(ps, t)): main.append(m); main += gaps.get((t, g), [])
    main = m0_peephole(main)
    def fresh(lst): return [Ins(x.text, x.kind, x.rd, x.wr) for x in lst]
    var_code = {}
    for vn, ps in variants.items():
        for k in [k for k in gaps if k[0] >= 16]: del gaps[k]
        for t in range(16, 24): common_fill(ps, t)
        for g, x in vcvt:
            if g >= 32:
                y = Ins(x.text, x.kind, x.rd, x.wr); G(16, g - 32).append(y)
        for nb in range(4):
            for tb in range(2):
                b = nb * 2 + tb
                t_ = 16 + min(b, 6) if b < 7 else 22
                for i, x in enumerate(store_block(Vp, nb, tb, store_flags)): G(16 + (b * 6) // 7, (8 if b == 0 else 2) + 3 * i + (6 if b == 7 else 0)).append(x)
        spread(23, epi_setup(ps), 1, 4)
        vSt = vXd[0]
        if ps.name == 'AV':
            l = vLane
            sv = [valu('v_bfe_u32', vT[0], l, 4, 1), valu('v_lshlrev_b32', vT[0], 16, vT[0]), valu('v_lshrrev_b32', vT[1], 5, l),
                  valu('v_lshl_add_u32', vT[0], vT[1], 8, vT[0]), valu('v_and_b32', vT[1], 15, l), valu('v_lshl_add_u32', vSt, vT[1], 4, vT[0])]
            spread(23, sv, 4, 7)
        tail = []
        for nb in range(2):
            for tb in range(2):
                b = nb * 2 + tb
                ins = cvt_block(ps, nb, tb) + store_block(ps, nb, tb, store_flags, vSt)
                for i, x in enumerate(ins):
                    g = 4 * b + 7 + i // 5
                    if g < 16: G(23, g).append(x)
                    else: tail.append(x)
        code = [label(f"L_proj_{vn}")]
        for t in range(16, 24):
            code.append(comment(f"stage {t} ({vn})"))
            for g, m in enumerate(mfmas(ps, t)): code.append(m); code += gaps.get((t, g), [])
        code = m0_peephole(code) + tail + [branch('s_branch', 'L_proj_fin')]
        var_code[vn] = code
    tr = [label("L_proj_TR")] + fresh([x for g, x in vcvt if g >= 32])
    for nb in range(4):
        for tb in range(2): tr += store_block(Vp, nb, tb, store_flags)
    tr += transpose_job(store_flags) + [branch('s_branch', 'L_proj_fin')]
    disp = ST.stamp() + [salu('s_cmp_ge_u32', None, sH, 24), branch('s_cbranch_scc1', 'L_proj_TR'),
            salu('s_cmp_ge_u32', None, sH, 16), branch('s_cbranch_scc1', 'L_proj_AV'),
            salu('s_cmp_ge_u32', None, sH, 8), branch('s_cbranch_scc1', 'L_proj_AK')]
    fin = [label('L_proj_fin')] + [waitvm(n=0)] * (1 if prof else 0) + ST.stamp() + ST.stamp(real=True) + ST.flush(sWG, sWV, sWSP, srdX, vT[0], vT[1], sTmp[0])
    head = pro + start + main + disp
    traces = [T(head + var_code[vn] + fin) for vn in ('AQ', 'AK', 'AV')] + [T(head + tr + fin)]
    resolve_waits(traces)
    fix_hazards(traces, name='proj', verbose=False)
    return render(head + var_code['AQ'] + var_code['AK'] + var_code['AV'] + tr + fin + [label('L_proj_end')])

def transpose_job(flags, sSt=None):
    sSt = sSt or globals()['sSt']
    o = []; a = o.append
    sIdx = sU
    a(waitvm(n=0)); a(waitlgkm0()); a(barrier())
    a(salu('s_lshl_b32', sIdx, sG, 3)); a(salu('s_add_u32', sIdx, sIdx, sH)); a(salu('s_sub_u32', sIdx, sIdx, 24))
    o += w_read_addr(4, perm=True) + w_dma_voff(4, 1024)
    o += set_srd(srdW, sPTR['B_w_o'], 4 * MB)
    a(salu('s_lshl_b32', sWoff, sIdx, 16)); a(salu('s_lshl_b32', sTmp[0], sWV, 14)); a(salu('s_add_u32', sWoff, sWoff, sTmp[0]))
    for nt in range(4):
        a(salu('s_add_u32', 'm0', sWlds, hexs(WSLOT[nt])))
        for q in range(4): a(dma(vWd[q], srdW, sWoff, q * 1024, tag=('TR', nt, q)))
        a(salu('s_add_u32', sWoff, sWoff, 256))
    o += set_srd(srdW, sPTR['A_wo'], 512 * 1024)
    a(salu('s_lshr_b32', sTmp[0], sIdx, 2)); a(salu('s_and_b32', sTmp[0], sTmp[0], 7)); a(salu('s_lshl_b32', sWoff, sTmp[0], 16))
    a(salu('s_and_b32', sTmp[1], sIdx, 3)); a(salu('s_lshl_b32', sTmp[1], sTmp[1], 8)); a(salu('s_add_u32', sWoff, sWoff, sTmp[1]))
    a(salu('s_lshl_b32', sTmp[0], sWV, 14)); a(salu('s_add_u32', sWoff, sWoff, sTmp[0]))
    a(salu('s_mov_b32', 'm0', sWlds))
    for q in range(4): a(dma(vWd[q], srdW, sWoff, q * 1024, tag=('TRA', q)))
    a(waitvm(n=0)); a(barrier())
    l = vLane
    a(valu('v_and_b32', vT[0], 15, l)); a(valu('v_lshrrev_b32', vT[1], 2, vT[0]))
    a(valu('v_xor_b32', vT[1], sWV, vT[1])); a(valu('v_lshlrev_b32', vT[1], 6, vT[1]))
    a(valu('v_lshrrev_b32', vT[2], 2, vT[0])); a(valu('v_lshlrev_b32', vT[2], 6, vT[2]))
    a(valu('v_sub_u32', vT[2], vWa[0], vT[2])); a(valu('v_add_u32', vT[3], vT[2], vT[1]))
    a(valu('v_subrev_u32', vT[4], hexs(WBASE), vT[3]))
    a(salu('s_lshl_b32', sTmp[0], sWV, 18)); a(salu('s_lshl_b32', sTmp[1], sIdx, 12)); a(salu('s_add_u32', sTmp[0], sTmp[0], sTmp[1]))
    a(salu('s_add_u32', sSt[0], sTmp[0], hexs(WS_WOB)))
    bufs = [V(128 + 16 * i, 16) for i in range(5)]
    for nt in range(4):
        for ks in range(4):
            for r2 in range(2):
                a(ds_read('ds_read_b64_tr_b16', bufs[nt][4 * ks + 2 * r2:4 * ks + 2 * r2 + 2], vT[3], nt * 16384 + (16 * ks + 8 * r2) * 256))
    for ks in range(4):
        for r2 in range(2):
            a(ds_read('ds_read_b64_tr_b16', bufs[4][4 * ks + 2 * r2:4 * ks + 2 * r2 + 2], vT[4], (16 * ks + 8 * r2) * 256))
    for nt in range(4):
        for ks in range(4): a(bstore(bufs[nt][4 * ks:4 * ks + 4], vL16, srdWS, sSt[0], ks * 1024, flags=flags))
        a(salu('s_add_u32', sSt[0], sSt[0], hexs(4 * 256 * 1024)))
    a(salu('s_cmp_ge_u32', None, sIdx, 32)); a(branch('s_cbranch_scc1', 'L_proj_fin'))
    a(salu('s_and_b32', sTmp[0], sIdx, 3)); a(salu('s_lshl_b32', sTmp[0], sTmp[0], 2)); a(salu('s_add_u32', sTmp[0], sTmp[0], sWV))
    a(salu('s_lshl_b32', sTmp[0], sTmp[0], 15)); a(salu('s_lshr_b32', sTmp[1], sIdx, 2)); a(salu('s_lshl_b32', sTmp[1], sTmp[1], 12))
    a(salu('s_add_u32', sTmp[0], sTmp[0], sTmp[1])); a(salu('s_add_u32', sSt[0], sTmp[0], hexs(WS_WOA)))
    for ks in range(4): a(bstore(bufs[4][4 * ks:4 * ks + 4], vL16, srdWS, sSt[0], ks * 1024, flags=flags))
    return o

if __name__ == "__main__":
    txt = gen(); print(len(txt.splitlines()), "lines")
```

```python
import re

class R:
    __slots__ = ('k', 'i', 'n')
    def __init__(self, k, i, n=1):
        self.k, self.i, self.n = k, i, n
        lim = {'v': 256, 'a': 256, 's': 102}[k]
        assert 0 <= i and i + n <= lim, (k, i, n)
    def __str__(self):
        return f"{self.k}{self.i}" if self.n == 1 else f"{self.k}[{self.i}:{self.i+self.n-1}]"
    def regs(self):
        return [f"{self.k}{j}" for j in range(self.i, self.i + self.n)]
    def __getitem__(self, key):
        if isinstance(key, slice):
            a = key.start or 0
            b = self.n if key.stop is None else key.stop
            assert 0 <= a < b <= self.n
            return R(self.k, self.i + a, b - a)
        assert 0 <= key < self.n
        return R(self.k, self.i + key, 1)
def V(i, n=1): return R('v', i, n)
def A(i, n=1): return R('a', i, n)
def S(i, n=1): return R('s', i, n)

def regs_of(x):
    if isinstance(x, R): return x.regs()
    if isinstance(x, str):
        if x in ('vcc', 'm0', 'exec', 'scc'): return [x]
        m = re.fullmatch(r'-?\|?([vas])(\d+)\|?', x)
        if m: return [m.group(1) + m.group(2)]
        m = re.fullmatch(r'-?\|?([vas])\[(\d+):(\d+)\]\|?', x)
        if m: return [f"{m.group(1)}{j}" for j in range(int(m.group(2)), int(m.group(3)) + 1)]
    return []

TRANS = ('v_exp_f32', 'v_log_f32', 'v_rcp_f32', 'v_rsq_f32', 'v_sqrt_f32')

class Ins:
    __slots__ = ('text', 'kind', 'rd', 'wr', 'tag', 'need', 'pre_lgkm', 'pre_vm', 'pre_nop', 'srcc', 'srcab', 'cost', 'fixed', 'note', 'nopn', 'nowaw', 'xdep')
    def __init__(self, text, kind, rd=(), wr=(), tag=None, need=None, cost=None):
        self.text, self.kind = text, kind
        self.rd, self.wr = set(rd), set(wr)
        self.tag, self.need = tag, need
        self.pre_lgkm = None; self.pre_vm = None; self.pre_nop = 0
        self.srcc = set(); self.srcab = set()
        self.cost = cost if cost is not None else (8 if kind in ('trans', 'mfma32', 'mfma16', 'permlane') else 4)
        self.fixed = None
        self.note = None
        self.nopn = 0
        self.nowaw = False
        self.xdep = set()
    def __repr__(self): return self.text

def fmt(x):
    if isinstance(x, float):
        raise ValueError("use hex/int literal for floats")
    return str(x)

class Prog:
    def __init__(self):
        self.ins = []
    def add(self, i):
        self.ins.append(i); return i
    def take(self):
        r = self.ins; self.ins = []; return r

def mfma32(d, a, b, c):
    rd = regs_of(a) + regs_of(b) + regs_of(c)
    i = Ins(f"v_mfma_f32_32x32x16_bf16 {d}, {a}, {b}, {c}", 'mfma32', rd, regs_of(d))
    i.srcc = set(regs_of(c)); i.srcab = set(regs_of(a) + regs_of(b))
    return i
def mfma16(d, a, b, c):
    rd = regs_of(a) + regs_of(b) + regs_of(c)
    i = Ins(f"v_mfma_f32_16x16x32_bf16 {d}, {a}, {b}, {c}", 'mfma16', rd, regs_of(d))
    i.srcc = set(regs_of(c)); i.srcab = set(regs_of(a) + regs_of(b))
    return i
RMW = ('v_fmac_f32', 'v_dot2c_f32_bf16', 'v_writelane_b32')
def valu(op, d, *src, mods=""):
    rd = []
    for s in src: rd += regs_of(s)
    wr = regs_of(d)
    base = op.replace('_e32', '').replace('_e64', '')
    if base in RMW: rd += wr
    kind = 'trans' if base in TRANS else 'valu'
    if base.startswith('v_permlane'):
        kind = 'permlane'; rd += wr; wr = wr + regs_of(src[0])
    if base.startswith('v_cndmask') and len(src) == 2:
        rd.append('vcc'); txt = f"{op} {d}, {src[0]}, {src[1]}, vcc"
    else:
        txt = f"{op} {d}, " + ", ".join(fmt(s) for s in src)
    if base.startswith('v_readfirstlane') or base.startswith('v_readlane'): kind = 'readlane'
    if mods: txt += " " + mods
    return Ins(txt, kind, rd, wr)
def vcmp(op, d, a, b):
    return Ins(f"{op} {d}, {fmt(a)}, {fmt(b)}", 'valu', regs_of(a) + regs_of(b), regs_of(d))
def accrd(d, a): return Ins(f"v_accvgpr_read_b32 {d}, {a}", 'valu', regs_of(a), regs_of(d))
def accwr(a, s): return Ins(f"v_accvgpr_write_b32 {a}, {fmt(s)}", 'valu', regs_of(s), regs_of(a))
def salu(op, d, *src):
    rd = []
    for s in src: rd += regs_of(s)
    wr = regs_of(d) if d is not None else []
    if op.startswith('s_cmp') or op.startswith('s_bitcmp'):
        wr = ['scc']; txt = f"{op} " + ", ".join(fmt(s) for s in src)
    else:
        txt = f"{op} {d}, " + ", ".join(fmt(s) for s in src)
        if op not in ('s_mov_b32', 's_mov_b64', 's_mul_i32', 's_cselect_b32', 's_cselect_b64', 's_movk_i32', 's_mul_hi_u32', 's_getreg_b32'): wr = wr + ['scc']
        if op.startswith('s_cselect') or op.startswith('s_addc'): rd.append('scc')
        if 'saveexec' in op: rd.append('exec'); wr.append('exec')
    return Ins(txt, 'salu', rd, wr)
def ds_read(op, d, addr, off=0):
    assert 0 <= off < 65536, off
    t = f"{op} {d}, {addr}" + (f" offset:{off}" if off else "")
    return Ins(t, 'ds_read', regs_of(addr), regs_of(d))
def ds_write(op, addr, data, off=0):
    assert 0 <= off < 65536
    t = f"{op} {addr}, {data}" + (f" offset:{off}" if off else "")
    return Ins(t, 'ds_write', regs_of(addr) + regs_of(data), [])
def dma(voff, srd, soff, imm=0, tag=None, flags=""):
    assert 0 <= imm < 4096
    t = f"buffer_load_dwordx4 {voff}, {srd}, {fmt(soff)} offen" + (f" offset:{imm}" if imm else "") + (" " + flags if flags else "") + " lds"
    return Ins(t, 'dma', regs_of(voff) + regs_of(srd) + regs_of(soff) + ['m0'], [], tag=tag)
def bload(d, voff, srd, soff, imm=0, op="buffer_load_dwordx4", tag=None, flags=""):
    assert 0 <= imm < 4096
    t = f"{op} {d}, {voff}, {srd}, {fmt(soff)} offen" + (f" offset:{imm}" if imm else "") + (" " + flags if flags else "")
    return Ins(t, 'vload', regs_of(voff) + regs_of(srd) + regs_of(soff), regs_of(d), tag=tag)
def bstore(data, voff, srd, soff, imm=0, op="buffer_store_dwordx4", flags="", tag=None):
    assert 0 <= imm < 4096
    t = f"{op} {data}, {voff}, {srd}, {fmt(soff)} offen" + (f" offset:{imm}" if imm else "") + (" " + flags if flags else "")
    return Ins(t, 'vstore', regs_of(voff) + regs_of(srd) + regs_of(soff) + regs_of(data), [], tag=tag)
def waitvm(need=None, n=None):
    i = Ins("WAITVM", 'waitvm', need=need, cost=4); i.fixed = n; return i
def waitlgkm0(): return Ins("s_waitcnt lgkmcnt(0)", 'waitlgkm0', cost=4)
def barrier(): return Ins("s_barrier", 'barrier', cost=4)
def label(n): return Ins(f"{n}:", 'label', cost=0)
def branch(op, target): return Ins(f"{op} {target}", 'branch', ['scc'] if 'scc' in op else (['vcc'] if 'vcc' in op else (['exec'] if 'exec' in op else [])), cost=4)
def nop(n):
    i = Ins(f"s_nop {n}", 'nop', cost=4); i.nopn = n + 1; return i
def raw(text, kind='salu', rd=(), wr=(), cost=4): return Ins(text, kind, rd, wr, cost=cost)
def comment(t): return Ins(f"; {t}", 'label', cost=0)

VM_KINDS = ('dma', 'vload', 'vstore')
LG_KINDS = ('ds_read', 'ds_write')

def resolve_waits(traces):
    def sim(trace, assign, used=None):
        lg_seq = 0; vm_seq = 0
        lg_done = 0; vm_done = 0
        pend = {}
        tags = {}
        for ins, ctx in trace:
            k = ins.kind
            if k == 'waitvm':
                if ins.fixed is not None and ins.need is None:
                    n = ins.fixed
                else:
                    need = ins.need(ctx) if callable(ins.need) else ins.need
                    mx = 0
                    for t in need:
                        if t in tags: mx = max(mx, tags[t])
                        else: raise RuntimeError(f"unknown tag {t}")
                    n = vm_seq - mx
                    if assign:
                        ins.pre_vm = n if ins.pre_vm is None else min(ins.pre_vm, n)
                    if ins.fixed is not None:
                        assert ins.fixed <= n, f"fixed vmcnt {ins.fixed} > needed {n} ctx {ctx}"
                        n = ins.fixed
                    else:
                        n = ins.pre_vm
                n = min(n, 63)
                vm_done = max(vm_done, vm_seq - n)
                continue
            if k == 'waitlgkm0':
                lg_done = lg_seq; continue
            need_lg = 0; need_vm = 0
            for r in ((ins.rd | ins.xdep) if ins.nowaw else (ins.rd | ins.wr | ins.xdep)):
                e = pend.get(r)
                if e:
                    if e[0] == 'lg': need_lg = max(need_lg, e[1])
                    else: need_vm = max(need_vm, e[1])
            if used is not None:
                if need_lg > lg_done: used.add((id(ins), 'l'))
                if need_vm > vm_done: used.add((id(ins), 'v'))
            if need_lg > lg_done:
                n = min(lg_seq - need_lg, 15)
                if assign: ins.pre_lgkm = n if ins.pre_lgkm is None else min(ins.pre_lgkm, n)
            if need_vm > vm_done:
                n = min(vm_seq - need_vm, 63)
                if assign: ins.pre_vm = n if ins.pre_vm is None else min(ins.pre_vm, n)
            if ins.pre_lgkm is not None: lg_done = max(lg_done, lg_seq - ins.pre_lgkm)
            if ins.pre_vm is not None: vm_done = max(vm_done, vm_seq - ins.pre_vm)
            assert need_lg <= lg_done and need_vm <= vm_done, (ins.text, need_lg, lg_done, need_vm, vm_done)
            if k in LG_KINDS:
                lg_seq += 1
                assert lg_seq - lg_done <= 64
                for r in ins.wr: pend[r] = ('lg', lg_seq)
            elif k in VM_KINDS:
                vm_seq += 1
                for r in ins.wr: pend[r] = ('vm', vm_seq)
                if ins.tag is not None:
                    t = ins.tag(ctx) if callable(ins.tag) else ins.tag
                    tags[t] = vm_seq
            else:
                for r in ins.wr:
                    if r in pend: del pend[r]
    def needed_scan():
        return None
    for rnd in range(4):
        for it in range(2):
            for t in traces: sim(t, True)
        used = set()
        for t in traces: sim(t, False, used)
        removed = 0
        seen = set()
        for t in traces:
            for ins, _ in t:
                if id(ins) in seen or ins.kind == 'waitvm': continue
                seen.add(id(ins))
                if ins.pre_lgkm is not None and (id(ins), 'l') not in used: ins.pre_lgkm = None; removed += 1
                if ins.pre_vm is not None and (id(ins), 'v') not in used: ins.pre_vm = None; removed += 1
        if removed == 0: break
    for it in range(2):
        for t in traces: sim(t, True)
    for t in traces: sim(t, False)

VALU_KINDS = ('valu', 'trans', 'permlane', 'readlane')
def fix_hazards(traces, verbose=True, name=""):
    total = 0
    changed = True
    rounds = 0
    while changed and rounds < 10:
        changed = False; rounds += 1
        seen_w = set()
        for trace in traces:
            seq = [i for i, _ in trace if i.kind not in ('label',)]
            for idx, ins in enumerate(seq):
                key = (id(ins),) + tuple(id(seq[idx - d]) if idx - d >= 0 else 0 for d in (1, 2, 3, 5, 8, 12, 17, 24))
                if key in seen_w: continue
                seen_w.add(key)
                req = 0
                dist = ins.pre_nop
                j = idx - 1
                while j >= 0 and dist < 24:
                    p = seq[j]
                    need = hazard(p, ins)
                    if need > dist: req = max(req, need - dist)
                    dist += (p.nopn if p.kind == 'nop' else (0 if p.kind in ('waitvm', 'waitlgkm0') else 1)) + p.pre_nop
                    j -= 1
                if req > 0:
                    ins.pre_nop += req; changed = True; total += req
                    if verbose: print(f"[{name}] hazard: +{req} nop before: {ins.text}")
    return total

def hazard(p, c):
    pk, ck = p.kind, c.kind
    need = 0
    c_all = c.rd | c.wr
    if pk in ('mfma32', 'mfma16'):
        big = pk == 'mfma32'
        if ck in ('mfma32', 'mfma16'):
            ov_c = p.wr & c.srcc
            if ov_c:
                if p.wr == c.srcc and pk == ck: pass
                else: need = max(need, 10 if big else 6)
            if p.wr & c.srcab: need = max(need, 12 if big else 8)
            if (p.wr & c.wr) and not (p.wr == c.wr and pk == ck) : need = max(need, 10 if big else 6)
            if (p.wr == c.wr) and (c.srcc != p.wr): need = max(need, 12 if big else 8)
        elif ck in VALU_KINDS or ck in ('ds_read', 'ds_write', 'dma', 'vload', 'vstore'):
            if p.wr & c_all: need = max(need, 12 if big else 8)
            if ck in VALU_KINDS and (p.srcc & c.wr): need = max(need, 7 if big else 3)
    if pk in VALU_KINDS:
        if ck in ('mfma32', 'mfma16') and (p.wr & c.rd): need = max(need, 2)
        if pk == 'trans' and ck in VALU_KINDS and ck != 'trans' and (p.wr & c.rd): need = max(need, 1)
        if pk == 'trans' and (ck in ('mfma32','mfma16','ds_write','vstore')) and (p.wr & c.rd): need = max(need, 2)
        if ck == 'permlane' and (p.wr & c.rd): need = max(need, 2)
        if ck == 'readlane' and any(r[0] == 'v' and r != 'vcc' for r in (p.wr & c.rd)): need = max(need, 1)
        sw = {r for r in p.wr if r[0] == 's' or r == 'vcc'}
        if sw:
            if ck in ('dma', 'vload', 'vstore') and (sw & c.rd): need = max(need, 5)
            if ck in VALU_KINDS and (sw & c.rd): need = max(need, 2)
            if ck in ('salu', 'branch') and (sw & c.rd): need = max(need, 4)
        if 'exec' in p.wr and ck in ('mfma32', 'mfma16'): need = max(need, 4)
    if pk == 'salu':
        if 'm0' in p.wr and ck == 'dma': need = max(need, 1)
    if pk == 'vstore' and 'x4' in p.text and ck in VALU_KINDS:
        if (p.rd & c.wr): need = max(need, 2)
    return need

def render(inss):
    out = []
    for i in inss:
        if i.pre_nop:
            n = i.pre_nop
            while n > 0:
                k = min(n, 16); out.append(f"  s_nop {k-1}"); n -= k
        w = []
        if i.kind == 'waitvm':
            n = i.fixed if i.fixed is not None else i.pre_vm
            assert n is not None, "unresolved waitvm"
            out.append(f"  s_waitcnt vmcnt({min(n,63)})"); continue
        if i.pre_vm is not None: w.append(f"vmcnt({i.pre_vm})")
        if i.pre_lgkm is not None: w.append(f"lgkmcnt({i.pre_lgkm})")
        if w: out.append("  s_waitcnt " + " ".join(w))
        out.append(i.text if i.kind == 'label' else "  " + i.text)
    return "\n".join(out)

def T(inss, **ctx):
    return [(i, ctx) for i in inss]

def interleave(mains, fillers, cap=24, start_gap=0):
    n = len(mains)
    items = []
    for f in fillers:
        if isinstance(f, tuple): items.append(f)
        else: items.append((f, 0))
    total = sum(f.cost for f, _ in items)
    ngaps = n - start_gap
    out = []
    fi = 0; acc = 0.0
    for g in range(n):
        out.append(mains[g])
        if g < start_gap: continue
        target = total * (g - start_gap + 1) / ngaps
        while fi < len(items) and (items[fi][1] <= g) and (acc + items[fi][0].cost / 2 <= target or g == n - 1):
            out.append(items[fi][0]); acc += items[fi][0].cost; fi += 1
    while fi < len(items):
        out.append(items[fi][0]); fi += 1
    return out


def m0_peephole(seq):
    seq = list(seq)
    for i in range(1, len(seq) - 1):
        if seq[i].kind == 'salu' and 'm0' in seq[i].wr and seq[i + 1].kind == 'dma':
            j = i - 1
            if seq[j].kind in ('mfma32', 'mfma16', 'ds_read', 'valu', 'trans') and not (seq[j].wr & seq[i].rd):
                seq[j], seq[i] = seq[i], seq[j]
    return seq
```

```python
from common import *
import qproj

LDS_BYTES = 163840
KRING, VRING, FLAG = 0, 65536, 131072
NEG_INF = '0xff800000'

sWG = S(2)
srdK, srdV, srdWS = S(8, 4), S(12, 4), S(16, 4)
sWSP = S(20, 2)
sH, sI, sWV = S(22), S(23), S(24)
sKa, sKb, sVa, sVb = S(25), S(26), S(27), S(28)
sKoff, sVoff = S(29), S(30)
sCnt = S(31)
sTmp = S(32, 6)
sMode = S(38)
sQoff = S(39, 2)
sNb = S(41)
sExec = S(42, 2)
vLane = V(1); vL16 = V(2); vD = V(3)
vKa, vKb, vVa, vVb = V(4), V(5), V(6), V(7)
vT = [V(8 + i) for i in range(8)]
vL = [[V(16), V(17)], [V(18), V(19)]]
vM = [V(20), V(21)]
vChk = V(22)
aMd = A(128, 16)
sPX, sPW = S(44, 2), S(46, 2)
srdX, srdW = S(48, 4), S(52, 4)
sXoff, sWoff, sXlds, sWlds = S(56), S(57), S(58), S(59)
sScale = S(6, 2)
def vS(par, u): return V(128 + (par * 2 + u) * 16, 16)
def vP(par, u): return V(192 + (par * 2 + u) * 8, 8)
def vC(u): return V(224 + 16 * u, 16)
def aO(u, db): return A((u * 4 + db) * 16, 16)
def aQ(u, s): return V(32 + (u * 8 + s) * 4, 4)
def aK(s): return A(192 + 4 * s, 4)
def aV(f): return A(224 + 4 * f, 4)
PFN = 5
KVLD = ''
PAIRW = True
DDUAL, DSINGLE = 8, 6

_lab = [0]
def newlabel(p):
    _lab[0] += 1
    return f"L_b_{p}_{_lab[0]}"

PKADD = False
def sm_ops(par, u):
    s = vS(par, u); p = vP(par, u)
    ops = []
    def tailops(r):
        if PKADD: return [valu('v_pk_add_f32', V(vL[u][0].i, 2), V(vL[u][0].i, 2), s[r:r + 2]), valu('v_cvt_pk_bf16_f32', p[r // 2], s[r], s[r + 1])]
        return [valu('v_add_f32', vL[u][0], vL[u][0], s[r]), valu('v_add_f32', vL[u][1], vL[u][1], s[r + 1]),
                valu('v_cvt_pk_bf16_f32', p[r // 2], s[r], s[r + 1])]
    for r in range(0, 16, 2):
        ops += [valu('v_exp_f32', s[r], s[r]), valu('v_exp_f32', s[r + 1], s[r + 1])]
        if r >= 2: ops += tailops(r - 2)
    ops += tailops(14)
    return ops

def k_read(s, half_other, slot):
    return ds_read('ds_read_b128', aK(s), vKb if half_other else vKa, slot * 8192 + s * 1024)
def v_read(f, half_other, slot):
    return ds_read('ds_read_b128', aV(f), vVb if half_other else vVa, slot * 8192 + f * 1024)

def dma_k(half_other, slot, tag):
    return [salu('s_add_u32', 'm0', sKb if half_other else sKa, hexs(slot * 8192)),
            dma(vD, srdK, sKoff, 0, tag=tag, flags=KVLD), dma(vD, srdK, sKoff, 1024, tag=tag, flags=KVLD), salu('s_add_u32', sKoff, sKoff, 8192)]
def dma_v(half_other, slot, tag):
    return [salu('s_add_u32', 'm0', sVb if half_other else sVa, hexs(slot * 8192)),
            dma(vD, srdV, sVoff, 0, tag=tag, flags=KVLD), dma(vD, srdV, sVoff, 1024, tag=tag, flags=KVLD), salu('s_add_u32', sVoff, sVoff, 8192)]

def event(u, it):
    o = []
    l1, l2 = newlabel('ev'), newlabel('ev')
    o += [salu('s_cmp_lg_u32', None, sWV, it), branch('s_cbranch_scc1', l1)]
    o += add_mdiag(vC(u))
    o += [label(l1)]
    if it >= 1:
        o += [salu('s_cmp_lg_u32', None, sWV, it - 1), branch('s_cbranch_scc1', l2)]
        o += [valu('v_mov_b32', vC(u)[r], NEG_INF) for r in range(16)]
        o += [label(l2)]
    o.append(nop(1))
    return o

def iteration(it, qk, sm, pv, first_pv=False, bar=False, dmas=True, prefetch=True, events=(), have_prefetched=True, extra_end=(), bar_need=(), bar_post=()):
    par = it & 1
    ms = []; kfirst = {}; vfirst = {}
    for s in range(8):
        for u in qk:
            kfirst.setdefault(s, len(ms))
            ms.append(mfma32(vS(par, u), aK(s), aQ(u, s), vC(u) if s == 0 else vS(par, u)))
    for f in range(8):
        ks, db = f >> 2, f & 3
        for u in pv:
            vfirst.setdefault(f, len(ms))
            c = 0 if (first_pv and ks == 0) else aO(u, db)
            ms.append(mfma32(aO(u, db), aV(f), vP(par, u)[4 * ks:4 * ks + 4], c))
    n = len(ms)
    if PAIRW:
        for s_ in range(0, 8, 2):
            if s_ in kfirst and s_ + 1 in kfirst: ms[kfirst[s_]].xdep |= set(aK(s_ + 1).regs())
            if s_ in vfirst and s_ + 1 in vfirst: ms[vfirst[s_]].xdep |= set(aV(s_ + 1).regs())
    dual = max(len(qk), len(pv)) == 2
    D = DDUAL if dual else DSINGLE
    pre = []
    gaps = [[] for _ in range(max(n, 1))]
    for u in events: pre += event(u, it)
    barr = []
    if bar:
        barr = [waitvm(need=lambda c, it=it, bn=tuple(bar_need): [('K', 4 * c['m'] + it + 2)] + list(bn)), barrier()] + list(bar_post)
    kreads = []
    for s in range(8):
        if s in kfirst and (s >= PFN or not have_prefetched):
            kreads.append((kfirst[s] - D, k_read(s, False, it)))
    vo, vs = (True, it + 2) if it < 2 else (False, it - 2)
    vreads = [(vfirst[f] - D, v_read(f, vo, vs)) for f in range(8) if f in vfirst]
    pf = []
    if prefetch:
        po, psl = (False, it + 1) if it < 3 else (True, 0)
        pf = [k_read(s, po, psl) for s in range(PFN)]
    dm = []
    if dmas:
        if it == 0:   dm = dma_k(True, 2, lambda c: ('K', 4 * c['m'] + 6)) + dma_v(True, 0, lambda c: ('V', 4 * c['m'] + 4))
        elif it == 1: dm = dma_k(True, 3, lambda c: ('K', 4 * c['m'] + 7)) + dma_v(True, 1, lambda c: ('V', 4 * c['m'] + 5))
        elif it == 2: dm = dma_k(False, 0, lambda c: ('K', 4 * c['m'] + 8)) + dma_v(True, 2, lambda c: ('V', 4 * c['m'] + 6))
        else:         dm = dma_k(False, 1, lambda c: ('K', 4 * c['m'] + 9)) + dma_v(True, 3, lambda c: ('V', 4 * c['m'] + 7))
    smo = []
    for u in sm: smo += sm_ops(par ^ 1, u)
    if n == 0:
        return pre + barr + dm + smo + pf + list(extra_end)
    if qk:
        gaps[0] += barr
        for g, r in kreads + vreads: gaps[max(g, 0)].append(r)
    else:
        pre += barr
        for g, r in vreads:
            if g < 0: pre.append(r)
            else: gaps[g].append(r)
    for i, r in enumerate(pf):
        gaps[max(n - 1 - (PFN - 1 - i) - (1 if dual else 0), 0)].append(r)
    if dm:
        g0 = 1; span = max(n - 3, 1)
        for i, x in enumerate(dm): gaps[min(g0 + (i * span) // len(dm), n - 1)].append(x)
    cap = [24 - sum(x.cost for x in gaps[g]) for g in range(n)]
    tot = sum(x.cost for x in smo)
    free = sum(max(c, 0) for c in cap)
    k = 0; acc_need = 0.0; placed = 0
    for g in range(n):
        share = (max(cap[g], 0) / free if free > 0 else 1.0 / n) * tot
        acc_need += share
        while k < len(smo) and (placed + smo[k].cost / 2 <= acc_need + 1e-6 or g == n - 1):
            gaps[g].append(smo[k]); placed += smo[k].cost; k += 1
    out = list(pre)
    for g in range(n):
        out.append(ms[g]); out += gaps[g]
    out += list(extra_end)
    out = m0_peephole(out)
    seen = set()
    for x in out:
        if x.kind == 'ds_read': seen |= x.wr
        if x.kind == 'mfma32':
            for r in x.srcab:
                if r[0] == 'a' and int(r[1:]) >= 224: assert r in seen, ("V frag used before read", x.text)
                if r[0] == 'a' and 192 + 4 * PFN <= int(r[1:]) < 224: assert r in seen, ("K frag used before read", x.text)
    return out

def toggles():
    return [valu('v_xor_b32', x, '0x8000', x) for x in (vKa, vKb, vVa, vVb)] + \
           [salu('s_xor_b32', x, x, '0x8000') for x in (sKa, sKb, sVa, sVb)]

FIRST_BODY_EXTRA = None
DRAIN_HOOK = None
CTXFLAGS = ''
E1_PRE = None
FIN_OVERRIDE = None
def body(name, first, t0, t1):
    o = [label(name)]
    for it in range(4):
        qk, sm, pv, ev = [], [], [], []
        for u, mode in ((0, t0), (1, t1)):
            if mode in ('full', 'mask'):
                if not (first and it == 0): qk.append(u)
                if not (first and it == 0): sm.append(u)
                if not (first and it < 2): pv.append(u)
                if mode == 'mask' and not (first and it == 0): ev.append(u)
            elif mode == 'drain':
                if it == 0: sm.append(u)
                if it < 2: pv.append(u)
        last = (t1 == 'mask' and it == 3)
        o.append(comment(f"{name} it{it} qk={qk} sm={sm} pv={pv}"))
        ee = list(toggles()) if it == 3 else []
        if first and it == 3 and FIRST_BODY_EXTRA is not None: ee += FIRST_BODY_EXTRA()
        bn, bp = ((), ())
        if t0 == 'drain' and it == 2 and DRAIN_HOOK is not None: bn, bp = DRAIN_HOOK(name)
        o += iteration(it, qk, sm, pv, first_pv=(first and it in (2,)), bar=(it % 2 == 0), prefetch=not last, events=ev, extra_end=ee, bar_need=bn, bar_post=bp)
    return o

def tail():
    o = [label('L_b_tail'), comment('tail')]
    o += iteration(0, [], [1], [1], bar=True, dmas=False, prefetch=False)
    o += iteration(1, [], [], [1], bar=False, dmas=False, prefetch=False)
    return o

def epilogue(u):
    o = []; a = o.append
    tmp = vS(0, u)
    pk = vP(0, u)
    a(valu('v_add_f32', vL[u][0], vL[u][0], vL[u][1]))
    a(valu('v_mov_b32', vT[0], vL[u][0]))
    a(nop(1))
    a(valu('v_permlane32_swap_b32', vT[0], vL[u][0]))
    a(valu('v_add_f32', vT[0], vT[0], vL[u][0]))
    a(valu('v_mov_b32', vT[2], hexs(f2u(2.0 ** 100))))
    a(vcmp('v_cmp_nle_f32', 'vcc', vT[0], vT[2]))
    a(valu('v_rcp_f32', vT[1], vT[0]))
    a(valu('v_mov_b32', vT[3], '0x7fc00000'))
    a(valu('v_cndmask_b32', vChk, vChk, vT[3]))
    a(valu('v_mov_b32', vT[6], vT[1])); a(valu('v_mov_b32', vT[7], vT[1]))
    for db in range(4):
        for r in range(16): a(accrd(tmp[r], aO(u, db)[r]))
        for r in range(8): a(valu('v_pk_mul_f32', tmp[2 * r:2 * r + 2], tmp[2 * r:2 * r + 2], V(vT[6].i, 2)))
        for r in range(8): a(valu('v_cvt_pk_bf16_f32', pk[r], tmp[2 * r], tmp[2 * r + 1]))
        for r in range(8): a(valu('v_dot2_f32_bf16', vChk, pk[r], vT[4], vChk))
        a(bstore(pk[0:4], vL16, srdWS, sQoff[u], (2 * db) * 1024 % 4096, flags=CTXFLAGS) if db < 2 else bstore(pk[0:4], vL16, srdWS, sTmp[u], (2 * db - 4) * 1024, flags=CTXFLAGS))
        a(bstore(pk[4:8], vL16, srdWS, sQoff[u], (2 * db + 1) * 1024, flags=CTXFLAGS) if db < 2 else bstore(pk[4:8], vL16, srdWS, sTmp[u], (2 * db - 3) * 1024, flags=CTXFLAGS))
    return o

def epi_offsets(u):
    o = []; a = o.append
    if u == 0: a(salu('s_lshl_b32', sTmp[2], sI, 2))
    else:
        a(salu('s_sub_u32', sTmp[2], 15, sI)); a(salu('s_lshl_b32', sTmp[2], sTmp[2], 2))
    a(salu('s_add_u32', sTmp[2], sTmp[2], sWV))
    a(salu('s_lshl_b32', sTmp[2], sTmp[2], 18))
    a(salu('s_lshl_b32', sTmp[3], sH, 13))
    a(salu('s_add_u32', sTmp[2], sTmp[2], sTmp[3]))
    a(salu('s_add_u32', sQoff[u], sTmp[2], hexs(WS_CTXB)))
    a(salu('s_add_u32', sTmp[u], sQoff[u], 4096))
    a(valu('v_mov_b32', vT[4], 0))
    return o

def mdiag():
    o = []; a = o.append
    a(valu('v_and_b32', vT[0], 31, vLane)); a(valu('v_lshrrev_b32', vT[1], 5, vLane)); a(valu('v_lshlrev_b32', vT[1], 2, vT[1]))
    a(valu('v_sub_u32', vT[0], vT[0], vT[1]))
    a(valu('v_mov_b32', vT[2], NEG_INF)); a(valu('v_mov_b32', vT[3], 0))
    for r in range(16):
        kk = 8 * (r >> 2) + (r & 3)
        a(vcmp('v_cmp_le_i32', 'vcc', kk, vT[0]))
        a(nop(1))
        a(valu('v_cndmask_b32', vT[4 + (r & 1)], vT[2], vT[3]))
        a(accwr(aMd[r], vT[4 + (r & 1)]))
    return o
def add_mdiag(dst):
    o = []
    for r in range(16):
        o.append(accrd(vT[6 + (r & 1)], aMd[r]))
        o.append(valu('v_add_f32', dst[r], dst[r], vT[6 + (r & 1)]))
    return o

QP = qproj.QP(vLane=vLane, vXa=[V(4), V(5), V(6), V(7)], vWa=[V(16), V(17), V(18), V(19)], vXd=[V(20), V(21), V(22), V(23), V(24), V(25), V(26), V(27)],
              vWd=[V(28), V(29), V(30), V(31)], vT=vT, vXb=[V(112 - 16 + 0 + 0 + 0 + 0), None, None, None], srdX=srdX, srdW=srdW, sXoff=sXoff, sWoff=sWoff,
              sXlds=sXlds, sWlds=sWlds, sWV=sWV, sH=sH, sI=sI, sTmp=sTmp, sScale=sScale, vQ=aQ)
QP.vXb = [V(32), V(33), V(34), V(35)]

def prologue_setup(ST=None):
    o = []; a = o.append
    a(salu('s_cmp_ge_u32', None, sWG, 256)); a(branch('s_cbranch_scc1', 'L_b_end'))
    a(raw("s_load_dwordx2 s[20:21], s[0:1], 88", wr=['s20', 's21']))
    a(raw("s_load_dwordx2 s[44:45], s[0:1], 24", wr=['s44', 's45']))
    a(raw("s_load_dwordx2 s[46:47], s[0:1], 40", wr=['s46', 's47']))
    a(salu('s_and_b32', sH, sWG, 7)); a(salu('s_lshr_b32', sTmp[0], sWG, 3)); a(salu('s_and_b32', sTmp[0], sTmp[0], 3))
    a(salu('s_lshl_b32', sTmp[0], sTmp[0], 3)); a(salu('s_add_u32', sH, sH, sTmp[0]))
    a(salu('s_lshr_b32', sI, sWG, 5))
    a(valu('v_lshrrev_b32', vT[0], 6, V(0))); a(valu('v_and_b32', vLane, 63, V(0))); a(nop(0))
    a(valu('v_readfirstlane_b32', sWV, vT[0]))
    a(valu('v_lshlrev_b32', vL16, 4, vLane))
    a(nop(2))
    o += QP.setup_early()
    a(raw("s_waitcnt lgkmcnt(0)", kind='waitlgkm0'))
    o += set_srd(srdX, sPX, 2 * MB) + set_srd(srdW, sPW, 4 * MB)
    o += QP.first_dmas()
    o += QP.setup_late()
    o += mdiag()
    a(salu('s_lshl_b32', sTmp[0], sWV, 11))
    a(valu('v_add_u32', vD, sTmp[0], vL16))
    o += set_srd(srdWS, sWSP, WS_USED)
    a(salu('s_lshl_b32', sTmp[0], sI, 2)); a(salu('s_sub_u32', sNb, 64, sTmp[0]))
    for srd, reg in ((srdK, WS_KB), (srdV, WS_VB)):
        a(salu('s_lshl_b32', sTmp[0], sH, 19)); a(salu('s_add_u32', sTmp[0], sTmp[0], hexs(reg)))
        a(salu('s_add_u32', srd[0], sWSP[0], sTmp[0])); a(salu('s_addc_u32', srd[1], sWSP[1], 0))
        a(salu('s_and_b32', srd[1], srd[1], '0xffff'))
        a(salu('s_lshl_b32', srd[2], sNb, 13)); a(salu('s_mov_b32', srd[3], '0x20000'))
    a(salu('s_mov_b32', sMode, 0))
    o += ring_scalars()
    kv1 = dma_k(False, 0, ('K', 0)) + dma_k(False, 1, ('K', 1)) + dma_k(False, 2, ('K', 2)) + dma_v(False, 0, ('V', 0)) + \
          dma_k(False, 3, ('K', 3)) + dma_v(False, 1, ('V', 1)) + dma_v(False, 2, ('V', 2)) + dma_v(False, 3, ('V', 3))
    kv2 = dma_k(True, 0, ('K', 4)) + dma_k(True, 1, ('K', 5))
    o += QP.run(kv1, kv2, ST)
    a(branch('s_branch', 'L_b_start2'))
    return o

def ring_scalars():
    o = []; a = o.append
    a(salu('s_lshl_b32', sTmp[0], sWV, 11))
    a(salu('s_mov_b32', sKa, sTmp[0])); a(salu('s_add_u32', sKb, sKa, '0x8000'))
    a(salu('s_add_u32', sVa, sKa, hexs(VRING))); a(salu('s_add_u32', sVb, sVa, '0x8000'))
    a(salu('s_mov_b32', sKoff, 0)); a(salu('s_mov_b32', sVoff, 0))
    return o

def start_safe():
    o = [label('L_b_start')]
    o += ring_scalars()
    o += dma_k(False, 0, ('K', 0)) + dma_k(False, 1, ('K', 1)) + dma_k(False, 2, ('K', 2)) + dma_v(False, 0, ('V', 0)) + dma_k(False, 3, ('K', 3)) + dma_v(False, 1, ('V', 1))
    o += dma_v(False, 2, ('V', 2)) + dma_v(False, 3, ('V', 3)) + dma_k(True, 0, ('K', 4)) + dma_k(True, 1, ('K', 5))
    return o

def start():
    o = []; a = o.append
    a(label('L_b_start2'))
    a(valu('v_mov_b32', vKa, vL16)); a(valu('v_add_u32', vKb, '0x8000', vL16))
    a(valu('v_add_u32', vVa, hexs(VRING), vL16)); a(valu('v_add_u32', vVb, '0x8000', vVa))
    a(valu('v_mov_b32', vT[0], 0)); a(valu('v_mov_b32', vT[1], hexs(FLAG)))
    for u in range(2):
        for x in vL[u]: a(valu('v_mov_b32', x, 0))
    a(valu('v_mov_b32', vChk, 0))
    a(ds_write('ds_write_b32', vT[1], vT[0]))
    a(waitvm(need=[('K', 0)])); a(waitlgkm0()); a(barrier())
    for s in range(8): a(k_read(s, False, 0))
    for s in range(8):
        for u in range(2):
            a(mfma32(vS(0, u), aK(s), aQ(u, s), 0 if s == 0 else vS(0, u)))
    a(nop(7)); a(nop(3))
    l1 = newlabel('p')
    a(salu('s_or_b32', sTmp[0], sI, sWV)); a(salu('s_cmp_lg_u32', None, sTmp[0], 0)); a(branch('s_cbranch_scc1', l1))
    o += add_mdiag(vS(0, 0))
    a(label(l1))
    l2 = newlabel('p')
    a(salu('s_cmp_lg_u32', None, sMode, 0)); a(branch('s_cbranch_scc1', l2))
    for u in range(2):
        s_ = vS(0, u)
        a(valu('v_max3_f32', vM[u], s_[0], s_[1], s_[2]))
        for r in range(3, 15, 2): a(valu('v_max3_f32', vM[u], vM[u], s_[r], s_[r + 1]))
        a(valu('v_max_f32', vM[u], vM[u], s_[15]))
        a(valu('v_mov_b32', vT[u], vM[u]))
        a(nop(1))
        a(valu('v_permlane32_swap_b32', vT[u], vM[u]))
        a(valu('v_max_f32', vM[u], vM[u], vT[u]))
    a(label(l2))
    for u in range(2):
        for r in range(16): a(valu('v_sub_f32', vS(0, u)[r], vS(0, u)[r], vM[u]))
        for r in range(16): a(valu('v_sub_f32', vC(u)[r], 0, vM[u]))
    return o

def set_opts(opts):
    global PKADD, PAIRW, DDUAL, DSINGLE, PFN
    PKADD = bool(int(opts.get('pkadd', 0))); PAIRW = bool(int(opts.get('pairw', 1)))
    DDUAL = int(opts.get('ddual', 8)); DSINGLE = int(opts.get('dsingle', 6)); PFN = int(opts.get('pfn', 5))

def stampn(ST, name, real=False):
    return ST.stamp(name, real=real) if isinstance(ST, Stamps2) else ST.stamp(real=real)

def attn_parts(ST, prof, fin_extra=None):
    st0 = start_safe()
    st = start() + stampn(ST, 'attn')
    F  = body('L_b_F', True, 'full', 'full')
    FM = body('L_b_FM', True, 'mask', 'full')
    D  = body('L_b_D', False, 'full', 'full')
    DM = body('L_b_DM', False, 'mask', 'full')
    TD = body('L_b_TD', False, 'drain', 'full')
    TDM = body('L_b_TDM', False, 'drain', 'mask')
    SF = body('L_b_SF', False, 'off', 'full')
    SM_ = body('L_b_SM', False, 'off', 'mask')
    TL = tail()
    e0a = epi_offsets(0) + epilogue(0); e0b = epi_offsets(0) + epilogue(0)
    e1 = (E1_PRE() if E1_PRE else []) + epi_offsets(1) + epilogue(1)
    g_sel = [salu('s_cmp_eq_u32', None, sI, 0), branch('s_cbranch_scc1', 'L_b_FM')]
    g_F = [salu('s_sub_u32', sCnt, sI, 1), salu('s_cmp_eq_u32', None, sCnt, 0), branch('s_cbranch_scc1', 'L_b_DM')]
    g_D = [salu('s_sub_u32', sCnt, sCnt, 1), salu('s_cmp_lg_u32', None, sCnt, 0), branch('s_cbranch_scc1', 'L_b_D')]
    g_DM = [salu('s_cmp_eq_u32', None, sI, 7), branch('s_cbranch_scc1', 'L_b_TDM'), branch('s_branch', 'L_b_TD')]
    g_TD_post = [salu('s_lshl_b32', sCnt, sI, 1), salu('s_sub_u32', sCnt, 13, sCnt)]
    g_SF = [salu('s_sub_u32', sCnt, sCnt, 1), salu('s_cmp_lg_u32', None, sCnt, 0), branch('s_cbranch_scc1', 'L_b_SF')]
    g_SM = [branch('s_branch', 'L_b_tail')]
    chk = []; a = chk.append
    a(vcmp('v_cmp_u_f32', 'vcc', vChk, vChk))
    a(valu('v_mov_b32', vT[1], hexs(FLAG))); a(valu('v_mov_b32', vT[0], 1))
    lf = newlabel('f')
    a(nop(2))
    a(branch('s_cbranch_vccz', lf))
    a(ds_write('ds_write_b32', vT[1], vT[0]))
    a(label(lf))
    a(waitlgkm0()); a(barrier())
    a(ds_read('ds_read_b32', vT[2], vT[1]))
    a(valu('v_readfirstlane_b32', sTmp[0], vT[2]))
    a(salu('s_cmp_eq_u32', None, sTmp[0], 0)); a(branch('s_cbranch_scc1', 'L_b_fin'))
    a(salu('s_cmp_lg_u32', None, sMode, 0)); a(branch('s_cbranch_scc1', 'L_b_fin'))
    safe = maxpass()
    sE0 = stampn(ST, 'e0')
    e0a = sE0 + e0a; e0b = [Ins(x.text, x.kind, x.rd, x.wr) for x in sE0] + e0b
    mid = stampn(ST, 'tailend')
    fin = None
    if FIN_OVERRIDE is None: fin = [label('L_b_fin')] + ([waitvm(n=0)] if prof else []) + stampn(ST, 'end') + stampn(ST, 'realend', True) + ST.flush(sWG, sWV, sWSP, srdK, vT[0], vT[1], sTmp[0]) + [label('L_b_end')]
    if FIN_OVERRIDE is not None: fin = FIN_OVERRIDE()
    code = st0 + st + g_sel + F + g_F + D + g_D + DM + g_DM + FM + TD + e0a + g_TD_post + SF + g_SF + SM_ + g_SM + TDM + e0b + TL + mid + e1 + chk + safe + fin
    def tr(seq):
        out = []
        for seg, m in seq: out += T(seg, m=m)
        return out
    def make_traces(pros, after=None):
        traces = []
        for n_, i in enumerate((0, 1, 2, 3, 6, 7)):
            seq = [(pros[n_ % len(pros)], 0), (st, 0), (g_sel, 0)]
            if i == 0: seq += [(FM, 0)]
            else:
                seq += [(F, 0), (g_F, 0)]
                for m in range(1, i): seq += [(D, m), (g_D, m)]
                seq += [(DM, i), (g_DM, i)]
            if i == 7: seq += [(TDM, 8), (e0b, 8)]
            else:
                seq += [(TD, i + 1), (e0a, i + 1), (g_TD_post, i + 1)]
                for m in range(i + 2, 15 - i): seq += [(SF, m), (g_SF, m)]
                seq += [(SM_, 15 - i), (g_SM, 15 - i)]
            base = seq + [(TL, 16 - i), (mid, 0), (e1, 0), (chk, 0)]
            traces.append(tr(base + [(safe, 0), (st0, 0), (st, 0), (g_sel, 0), (F, 0)]))
            if after is not None:
                for aft in after: traces.append(tr(base + [(fin, 0), (aft, 0)]))
        for p in pros:
            traces.append(tr([(p, 0), (st, 0), (g_sel, 0), (FM, 0), (TD, 1)]))
            traces.append(tr([(p, 0), (st, 0), (g_sel, 0), (F, 0), (g_F, 0), (D, 1)]))
        return traces
    return code, make_traces

def gen(opts=None):
    opts = opts or {}
    set_opts(opts)
    prof = bool(int(opts.get('prof', 0)))
    ST = Stamps(60, prof, 1)
    _lab[0] = 0
    pro = ST.stamp(real=True) + ST.stamp() + prologue_setup(ST)
    code, mk = attn_parts(ST, prof)
    traces = mk([pro])
    resolve_waits(traces)
    fix_hazards(traces, name='battn', verbose=bool(int(opts.get('verbose', 0))))
    return render(pro + code)

def maxpass():
    o = []; a = o.append
    a(label('L_b_safe'))
    a(waitvm(n=0)); a(waitlgkm0()); a(barrier())
    for u in range(2): a(valu('v_mov_b32', vM[u], NEG_INF))
    a(salu('s_mov_b32', sKoff, 0)); a(salu('s_mov_b32', sCnt, 0))
    a(salu('s_lshl_b32', sKa, sWV, 11))
    a(salu('s_lshl_b32', sTmp[2], sI, 2)); a(salu('s_add_u32', sTmp[2], sTmp[2], sWV))
    a(salu('s_sub_u32', sTmp[3], 15, sI)); a(salu('s_lshl_b32', sTmp[3], sTmp[3], 2)); a(salu('s_add_u32', sTmp[3], sTmp[3], sWV))
    a(valu('v_mov_b32', vKa, vL16))
    a(label('L_b_safe_loop'))
    o += dma_k(False, 0, ('KS', 0))
    a(waitvm(n=0)); a(barrier())
    for s in range(8): a(k_read(s, False, 0))
    for u in range(2):
        lskip, ldiag, ljoin = newlabel('s'), newlabel('s'), newlabel('s')
        rb = sTmp[2 + u]; s_ = vS(0, u)
        a(salu('s_cmp_gt_u32', None, sCnt, rb)); a(branch('s_cbranch_scc1', lskip))
        for s in range(8): a(mfma32(s_, aK(s), aQ(u, s), 0 if s == 0 else s_))
        a(nop(7)); a(nop(3))
        a(salu('s_cmp_lg_u32', None, sCnt, rb)); a(branch('s_cbranch_scc1', ljoin))
        o += add_mdiag(s_)
        a(label(ljoin))
        for r in range(0, 16, 2): a(valu('v_max3_f32', vM[u], vM[u], s_[r], s_[r + 1]))
        a(label(lskip))
    a(waitlgkm0()); a(barrier())
    a(salu('s_add_u32', sCnt, sCnt, 1)); a(salu('s_cmp_lt_u32', None, sCnt, sNb)); a(branch('s_cbranch_scc1', 'L_b_safe_loop'))
    for u in range(2):
        a(valu('v_mov_b32', vT[u], vM[u])); a(nop(1))
        a(valu('v_permlane32_swap_b32', vT[u], vM[u]))
        a(valu('v_max_f32', vM[u], vM[u], vT[u]))
    a(salu('s_mov_b32', sMode, 1))
    a(branch('s_branch', 'L_b_start'))
    return o

if __name__ == '__main__':
    t = gen({'verbose': 1})
    print(len(t.splitlines()))
```

```python
from common import *
import k_proj as P
import k_battn as B
import phase2 as P2
from k_proj import *

LDS_BYTES = 163840
sDBG = S(100, 2)
SPIN_MAX = 400000

def configure_B():
    B.srdK, B.srdV, B.srdWS = S(60, 4), S(64, 4), P.srdWS
    B.sWSP, B.sH, B.sI, B.sWV = P.sWSP, P.sH, P.sG, P.sWV
    B.sKa, B.sKb, B.sVa, B.sVb = S(68), S(69), S(70), S(71)
    B.sKoff, B.sVoff, B.sCnt = S(72), S(73), S(74)
    B.sTmp = S(76, 6); B.sMode = S(82); B.sQoff = S(83, 2); B.sNb = S(85)
    B.vLane, B.vL16, B.vD = P.vLane, P.vL16, V(25)
    B.vKa, B.vKb, B.vVa, B.vVb = V(10), V(11), V(12), V(13)
    B.vT = [V(2 + i) for i in range(8)]
    B.vL = [[V(16), V(17)], [V(18), V(19)]]
    B.vM = [V(14), V(15)]; B.vChk = V(20)

def ids_pb():
    o = []; a = o.append
    a(salu('s_and_b32', sH, sWG, 7)); a(salu('s_lshr_b32', sTmp[0], sWG, 3)); a(salu('s_and_b32', sTmp[0], sTmp[0], 3))
    a(salu('s_lshl_b32', sTmp[0], sTmp[0], 3)); a(salu('s_add_u32', sH, sH, sTmp[0]))
    a(salu('s_lshr_b32', sG, sWG, 5))
    a(valu('v_lshrrev_b32', vT[0], 6, V(0))); a(valu('v_and_b32', vLane, 63, V(0))); a(nop(0))
    a(valu('v_readfirstlane_b32', sWV, vT[0]))
    return o

def q_xvoff():
    o = []; a = o.append; l = vLane
    a(salu('s_lshl_b32', sTmp[0], sG, 17)); a(salu('s_lshl_b32', sTmp[1], sWV, 15)); a(salu('s_add_u32', sTmp[0], sTmp[0], sTmp[1]))
    a(salu('s_sub_u32', sTmp[2], 15, sG)); a(salu('s_lshl_b32', sTmp[2], sTmp[2], 17)); a(salu('s_add_u32', sTmp[2], sTmp[2], sTmp[1]))
    a(valu('v_lshrrev_b32', vT[0], 3, l)); a(valu('v_lshlrev_b32', vT[0], 10, vT[0]))
    a(valu('v_and_b32', vT[1], 7, l)); a(valu('v_lshrrev_b32', vT[2], 4, l))
    for p_ in range(8):
        a(valu('v_add_u32', vT[3], 4 * (p_ & 1), vT[2])); a(valu('v_xor_b32', vT[3], vT[3], vT[1]))
        a(valu('v_lshl_add_u32', vT[3], vT[3], 4, vT[0]))
        a(valu('v_add_u32', vT[3], hexs((p_ & 3) * 8192 - (p_ & 3) * 1024), vT[3]))
        a(valu('v_add_u32', vXd[p_], sTmp[0] if p_ < 4 else sTmp[2], vT[3]))
    a(salu('s_mov_b32', sXoff, 0))
    return o
def q_wsetup():
    return set_srd(srdW, sPTR['B_w_q'], 4 * MB) + [salu('s_lshl_b32', sWoff, sH, 8), salu('s_lshl_b32', sTmp[2], sWV, 17), salu('s_add_u32', sWoff, sWoff, sTmp[2])] + w_dma_voff(4, 8192)

def mdiag5():
    o = []; a = o.append
    a(valu('v_and_b32', vT[0], 31, vLane)); a(valu('v_lshrrev_b32', vT[1], 5, vLane)); a(valu('v_lshlrev_b32', vT[1], 2, vT[1]))
    a(valu('v_sub_u32', vT[0], vT[0], vT[1])); a(valu('v_mov_b32', vT[2], B.NEG_INF)); a(valu('v_mov_b32', vT[3], 0))
    for r in range(16):
        kk = 8 * (r >> 2) + (r & 3)
        a(vcmp('v_cmp_le_i32', 'vcc', kk, vT[0])); a(nop(1))
        a(valu('v_cndmask_b32', vT[4], vT[2], vT[3])); a(accwr(B.aMd[r], vT[4]))
    return o

sNonce = S(59)
def dbg_srd(): return [salu('s_mov_b32', srdT[0], sDBG[0]), salu('s_and_b32', srdT[1], sDBG[1], '0xffff'), salu('s_mov_b32', srdT[2], 256), salu('s_mov_b32', srdT[3], '0x20000')]
def one_lane_store(lbl, srd, soff, val, vA, vB, cond):
    o = list(cond)
    o += [valu('v_mov_b32', vA, 0), valu('v_mov_b32', vB, val), raw("s_mov_b64 exec, 1", wr=['exec']), nop(1),
          Ins(f"buffer_store_dword {vB}, {vA}, {srd}, {soff} offen sc1", 'raw_vmem', rd=vA.regs() + vB.regs() + srd.regs()),
          raw("s_mov_b64 exec, -1", wr=['exec']), nop(3), label(lbl)]
    return o
def signal(lbl, base, idx_ins, sT, vA, vB):
    return one_lane_store(lbl, srdWS, sT, sNonce, vA, vB, [salu('s_cmp_lg_u32', None, sWV, 0), branch('s_cbranch_scc1', lbl)] + idx_ins + [salu('s_add_u32', sT, sT, hexs(base))])
def nonce_publish(lbl):
    pair = S(56, 2)
    cond = [salu('s_or_b32', sTmp[0], sWG, sWV), salu('s_cmp_lg_u32', None, sTmp[0], 0), branch('s_cbranch_scc1', lbl),
            salu('s_add_u32', pair[0], sWSP[0], hexs(FL_KV)), salu('s_addc_u32', pair[1], sWSP[1], 0),
            raw(f"s_load_dword {sTmp[1]}, {pair}, 0", wr=[str(sTmp[1])]), raw("s_waitcnt lgkmcnt(0)", kind='salu'),
            salu('s_add_u32', sTmp[1], sTmp[1], 1), salu('s_cmp_eq_u32', None, sTmp[1], 0), salu('s_cselect_b32', sTmp[1], 1, sTmp[1]),
            salu('s_mov_b32', sTmp[2], 0)]
    return one_lane_store(lbl, srdT, sTmp[2], sTmp[1], vT[0], vT[1], cond)
def nonce_issue(vN, vA):
    return [valu('v_mov_b32', vA, 0), bload(vN, vA, srdT, 0, 0, op='buffer_load_dword', flags='sc1', tag='NONCE')]
def nonce_check(vN):
    return [waitvm(need=['NONCE']), valu('v_readfirstlane_b32', sNonce, vN), salu('s_cmp_eq_u32', None, sNonce, 0), branch('s_cbranch_scc1', 'L_nspin'), label('L_nspin_ret')]
def nonce_spin(vN, vA):
    return [label('L_nspin'), salu('s_mov_b32', sTmp[3], SPIN_MAX), label('L_nspin_loop'), raw("s_sleep 2"),
            bload(vN, vA, srdT, 0, 0, op='buffer_load_dword', flags='sc1'), waitvm(n=0), valu('v_readfirstlane_b32', sNonce, vN),
            salu('s_cmp_lg_u32', None, sNonce, 0), branch('s_cbranch_scc1', 'L_nspin_ret'),
            salu('s_sub_u32', sTmp[3], sTmp[3], 1), salu('s_cmp_lg_u32', None, sTmp[3], 0), branch('s_cbranch_scc1', 'L_nspin_loop'), branch('s_branch', 'L_nspin_ret')]
def flags_match(vP, sOut, mask_lo, mask_hi=0):
    o = [vcmp('v_cmp_eq_u32', 'vcc', sNonce, vP)]
    o += [Ins(f"s_and_b32 {sOut}, vcc_lo, {hexs(mask_lo)}", 'salu', ['vcc'], [str(sOut), 'scc'])]
    if mask_hi: raise NotImplementedError
    o += [salu('s_cmp_eq_u32', None, sOut, hexs(mask_lo))]
    return o

def gen(opts=None):
    opts = opts or {}
    prof = bool(int(opts.get('prof', 0))); touch = bool(int(opts.get('touch', 0)))
    kvflags = opts.get('kvflags', 'sc1'); aflags = opts.get('aflags', '')
    P.NOSTORE = False; P.PBMAP = True
    configure_B(); B.set_opts(opts); B._lab[0] = 0
    USE_INV = bool(int(opts.get('inv', 0)))
    B.KVLD = '' if USE_INV else 'sc1'
    MEGA = bool(int(opts.get('mega', 0)))
    if MEGA: aflags = 'sc1'; B.CTXFLAGS = 'sc1'; B.FLAG = P2.FLAG
    else: B.CTXFLAGS = ''; B.FLAG = 131072
    ST = Stamps2(86, prof, 1, V(0))
    K = Pass('K', 0, 4, 'K', C_B); Vp = Pass('V', 8, 4, 'V', None); Q = Pass('Q', 16, 4, 'K', None)
    variants = {'AQ': Pass('AQK', 24, 2, 'K', C_A), 'AK': Pass('AQK', 24, 2, 'K', None), 'AV': Pass('AV', 24, 2, 'V', None)}
    LAST = 31
    sA = [S(92 + k) for k in range(8)]
    vAst = V(22 + 4)
    def apk(b): return V(96 + 8 * b, 8)
    def rowstride(t): return 3072 if t >= 24 else 8192
    def NBof(t): return 2 if t >= 24 else 4
    def xi_of(t): return t if t < 8 else (None if t < 16 else t - 8)
    def xfq(st, tb, ks): return A((((st & 1) * 2 + tb) * 4 + ks) * 4, 4)
    def xf(t, tb, ks): return xfrag(t % 8, tb, ks) if t < 8 or 8 <= t < 16 else xfq(t, tb, ks)
    def x_reads2(t, xi):
        slot = xi % 3; out = []
        for tb in range(2):
            for ks in range(4):
                addr = vXa[ks] if slot < 2 else vXb[ks]
                out.append(ds_read('ds_read_b128', xf(t, tb, ks), addr, (XSLOT[slot] if slot < 2 else 0) + tb * 4096))
        return out
    gaps = {}
    def G(t, g):
        n = NBof(t) * 8
        while g >= n: g -= n; t += 1; n = NBof(t) * 8
        return gaps.setdefault((t, g), [])
    def spread(t, ins, g0, g1):
        if not ins: return
        per = (len(ins) + (g1 - g0) - 1) // (g1 - g0)
        for i, x in enumerate(ins): G(t, g0 + i // per).append(x)
    def mfmas(ps, t):
        st = t - ps.t0; out = []
        for nb in range(ps.NB):
            for tb in range(2):
                for ks in range(4):
                    wf = vWf[nb & 1][4 * ks:4 * ks + 4]; x_ = xf(t, tb, ks)
                    c = 0 if (st == 0 and ks == 0) else acc(nb, tb)
                    out.append(mfma32(acc(nb, tb), wf, x_, c) if ps.typ == 'K' else mfma32(acc(nb, tb), x_, wf, c))
        return out
    def a_xsetup():
        return set_srd(srdX, sPTR['A_x'], 2 * MB) + x_dma_voff() + [salu('s_lshl_b32', sXoff, sG, 18), salu('s_lshl_b32', sTmp[0], sWV, 16), salu('s_add_u32', sXoff, sXoff, sTmp[0])]
    def common_fill(ps, t, extra_need=(), nox=False):
        NB = ps.NB; n = NB * 8
        for nb in range(NB):
            if nb + 1 < NB: rs = w_reads(t, nb + 1, NB)
            elif t + 1 <= LAST: rs = w_reads(t + 1, 0, NBof(t + 1))
            else: rs = []
            for i, r in enumerate(rs): G(t, 8 * nb + i).append(r)
        bar = n - 9
        if t + 1 <= LAST: G(t, bar).append(waitvm(need=[('W', t + 1)] + list(extra_need))); G(t, bar).append(barrier())
        wins = []
        if t + 3 <= LAST:
            pre = []
            if t + 3 == 8: pre = switch_w('B_w_uv', [salu('s_sub_u32', sWoff, sWoff, hexs(512 * 8192))])
            if t + 3 == 16: pre = switch_w('B_w_q', [salu('s_sub_u32', sWoff, sWoff, hexs(512 * 8192))])
            if t + 3 == 24:
                pre = switch_w('A_wqkv', [salu('s_lshl_b32', sWoff, sH, 7), salu('s_mul_i32', sTmp[2], sWV, 16 * 3072), salu('s_add_u32', sWoff, sWoff, sTmp[2])])
                pre += w_dma_voff(2, 3072)
            wins = pre + w_dma(t + 3, NBof(t + 3), rowstride(t + 3))
        xin = xi_of(t + 1) if t + 1 <= LAST else None
        if xin is not None:
            g0 = n - 10
            G(t, g0).append(waitvm(need=[('X', xin)]))
            for i, r in enumerate(x_reads2(t + 1, xin)): G(t, g0 + i).append(r)
        xi = xi_of(t); xins = []
        if xi is not None and xi + 3 <= 23:
            pre = []
            if xi + 3 == 8: pre = set_srd(srdX, sPTR['B_x'], 2 * MB) + q_xvoff()
            if xi + 3 == 16: pre = a_xsetup()
            xins = pre + x_dma(xi + 3)
        if NB == 4: spread(t, xins, 8, bar); spread(t, wins, bar + 1, n)
        else: spread(t, wins + xins, bar + 1, n)
    def tagged(lst, tag):
        for x in lst:
            if x.kind == 'vstore': x.tag = tag
        return lst
    def fresh(lst): return [Ins(x.text, x.kind, x.rd, x.wr) for x in lst]

    for ps in (K, Vp, Q):
        for t in range(ps.t0, ps.t0 + 8): common_fill(ps, t, extra_need=(['VS'] if t == 23 else []))
    spread(7, epi_setup(K), 1, 5)
    for nb in range(4):
        for tb in range(2):
            b = nb * 2 + tb
            ins = cvt_block(K, nb, tb)
            for i, x in enumerate(ins): G(7, 4 * b + 7 + (i * 5) // len(ins)).append(x)
            for i, x in enumerate(store_block(K, nb, tb, kvflags)): G(8 + b, (9 if b == 0 else 3) + 6 * i).append(x)
    if touch:
        tl = touch_list(); nA = 3
        la = [x for g in tl[:nA] for x in g]; lq = [x for g in tl[nA:] for x in g] if int(opts.get('touchq', 1)) else []
        TOUCH_A, TOUCH_Q = la, lq
    else: TOUCH_A, TOUCH_Q = [], []
    if TOUCH_Q: spread(int(opts.get('tstageq', 9)), TOUCH_Q, 10, 23)
    if TOUCH_A: spread(int(opts.get('tstage', 20)), TOUCH_A, 0, 8)
    spread(15, epi_setup(Vp), 11, 15)
    for nb in range(4):
        for tb in range(2):
            b = nb * 2 + tb
            for i, x in enumerate(cvt_block(Vp, nb, tb)): G(15, 4 * b + 7 + i // 2).append(x)
    vst = []
    for nb in range(4):
        for tb in range(2): vst += tagged(store_block(Vp, nb, tb, kvflags), 'VS')
    NVS = int(opts.get('vsstages', 6))
    for k, x in enumerate(vst):
        tt = 16 + (k * NVS) // 16
        G(tt, (8 if tt == 16 else 1) + 5 * (k - (-(-(tt - 16) * 16 // NVS))) ).append(x)
    G(23, 23).extend(signal('L_sig', FL_KV, [salu('s_lshl_b32', sTmp[0], sH, 7), salu('s_lshl_b32', sTmp[1], sG, 2), salu('s_add_u32', sTmp[0], sTmp[0], sTmp[1])], sTmp[0], vT[0], vT[1]))
    G(1, 0).extend(dbg_srd() + nonce_publish('L_npub'))
    G(10, 2).extend(nonce_issue(vT[2], vT[3]))
    G(12, 2).extend(nonce_check(vT[2]))
    ar = w_read_addr(2, dst=[vWa[0], vT[4]])
    spread(23, ar, 9, 16)
    G(23, 22).append(valu('v_mov_b32', vWa[1], vT[4]))
    qcvt = []
    for nb in range(4):
        for u in range(2):
            b = nb * 2 + u; ac = acc(nb, u)
            for i in range(8): qcvt.append((4 * b + 7 + i // 2, valu('v_cvt_pk_bf16_f32', B.aQ(u, 2 * nb + (i >> 2))[i & 3], ac[2 * i], ac[2 * i + 1])))
    for g, x in qcvt:
        if g < 32: G(23, g).append(x)

    pro = ST.stamp('real0', real=True) + ST.stamp('t0')
    a = pro.append
    a(salu('s_cmp_ge_u32', None, sWG, 256)); a(branch('s_cbranch_scc1', 'L_b_end'))
    a(raw("s_load_dwordx16 s[20:35], s[0:1], 0", wr=[f"s{i}" for i in range(20, 36)]))
    a(raw("s_load_dwordx2 s[36:37], s[0:1], 64", wr=['s36', 's37']))
    a(raw("s_load_dwordx2 s[38:39], s[0:1], 88", wr=['s38', 's39']))
    a(raw("s_load_dwordx2 s[100:101], s[0:1], 80", wr=['s100', 's101']))
    pro += ids_pb() + x_dma_voff() + w_dma_voff(4, 8192)
    a(salu('s_lshl_b32', sXlds, sWV, 13)); a(salu('s_lshl_b32', sWlds, sWV, 12))
    a(salu('s_lshl_b32', sXoff, sG, 18)); a(salu('s_lshl_b32', sTmp[0], sWV, 16)); a(salu('s_add_u32', sXoff, sXoff, sTmp[0]))
    a(salu('s_lshl_b32', sWoff, sH, 8)); a(salu('s_lshl_b32', sTmp[0], sWV, 17)); a(salu('s_add_u32', sWoff, sWoff, sTmp[0]))
    a(raw("s_waitcnt lgkmcnt(0)", kind='waitlgkm0'))
    pro += set_srd(srdX, sPTR['B_c_kv'], 2 * MB) + set_srd(srdW, sPTR['B_w_uk'], 4 * MB)
    start = x_dma(0) + w_dma(0, 4, 8192) + x_dma(1) + w_dma(1, 4, 8192) + x_dma(2) + w_dma(2, 4, 8192)
    start += x_read_addr() + w_read_addr(4) + [valu('v_lshlrev_b32', vL16, 4, vLane)] + set_srd(srdWS, sWSP, WS_USED)
    start += [waitvm(need=[('X', 0), ('W', 0)]), barrier()] + x_reads2(0, 0) + w_reads(0, 0, 4)
    MD = mdiag5()
    spread(17, MD[:36], 9, 22); spread(18, MD[36:], 9, 22)
    main = []
    for ps in (K, Vp, Q):
        for t in range(ps.t0, ps.t0 + 8):
            main.append(comment(f"stage {t} ({ps.name})"))
            if t in (0, 1, 4, 8, 9, 12, 16, 17, 18, 20, 22, 23): main += ST.stamp(f"st{t}")
            for g, m in enumerate(mfmas(ps, t)): main.append(m); main += gaps.get((t, g), [])
    main = m0_peephole(main)
    DISP = ST.stamp('disp')
    ASTAMP = {t: ST.stamp(f'a{t}') for t in (26, 28, 30)}
    AEND = ST.stamp('aend')

    def attn_setup():
        su = [salu('s_lshl_b32', B.sTmp[0], sG, 2), salu('s_sub_u32', B.sNb, 64, B.sTmp[0])]
        for srd, reg in ((B.srdK, WS_KB), (B.srdV, WS_VB)):
            su += [salu('s_lshl_b32', B.sTmp[0], sH, 19), salu('s_add_u32', B.sTmp[0], B.sTmp[0], hexs(reg)),
                   salu('s_add_u32', srd[0], sWSP[0], B.sTmp[0]), salu('s_addc_u32', srd[1], sWSP[1], 0), salu('s_and_b32', srd[1], srd[1], '0xffff'),
                   salu('s_lshl_b32', srd[2], B.sNb, 13), salu('s_mov_b32', srd[3], '0x20000')]
        su += [salu('s_mov_b32', B.sMode, 0)] + B.ring_scalars()
        return su
    def pregs(vn): return (V(9), V(10)) if vn == 'TR' else (vT[2], vT[3])
    sPoll = S(75)
    def poll_issue(vn):
        vPoll, vPA = pregs(vn)
        return [salu('s_lshl_b32', sPoll, sH, 7), salu('s_add_u32', sPoll, sPoll, hexs(FL_KV)), valu('v_lshlrev_b32', vPA, 2, vLane),
                bload(vPoll, vPA, srdWS, sPoll, 0, op='buffer_load_dword', flags='sc1', tag='POLL')]
    def poll_check(vn):
        vPoll, vPA = pregs(vn)
        return [waitvm(need=['POLL'])] + flags_match(vPoll, sTmp[1], 0xff) + [branch('s_cbranch_scc0', f'L_spin_{vn}'), label(f'L_spin_ret_{vn}')] + \
               ([salu('s_cmp_lg_u32', None, sWV, 0), branch('s_cbranch_scc1', f'L_noinv_{vn}'), raw("buffer_inv sc1", kind='salu'), label(f'L_noinv_{vn}')] if USE_INV else [])
    def spin(vn):
        vPoll, vPA = pregs(vn)
        return [label(f'L_spin_{vn}'), salu('s_mov_b32', sTmp[3], SPIN_MAX), label(f'L_spin_loop_{vn}'), raw("s_sleep 2"),
                bload(vPoll, vPA, srdWS, sPoll, 0, op='buffer_load_dword', flags='sc1'), waitvm(n=0)] + flags_match(vPoll, sTmp[1], 0xff) + [branch('s_cbranch_scc1', f'L_spin_ret_{vn}'),
                salu('s_sub_u32', sTmp[3], sTmp[3], 1), salu('s_cmp_lg_u32', None, sTmp[3], 0), branch('s_cbranch_scc1', f'L_spin_loop_{vn}'), branch('s_branch', f'L_spin_ret_{vn}')]
    def inv_wait(vn):
        return [salu('s_cmp_lg_u32', None, sWV, 0), branch('s_cbranch_scc1', f'L_nw_{vn}'), raw("s_waitcnt vmcnt(0)", kind='salu'), label(f'L_nw_{vn}')]
    def kdma(b): return B.dma_k(b >= 4, b & 3, ('K', b))
    def vdma(b): return B.dma_v(False, b, ('V', b))
    vD_setup = [salu('s_lshl_b32', B.sTmp[0], sWV, 11), valu('v_add_u32', B.vD, B.sTmp[0], vL16)]

    var_code = {}; spins = []
    for vn, ps in variants.items():
        for k in [k for k in gaps if k[0] >= 24]: del gaps[k]
        for t in range(24, 32): common_fill(ps, t)
        for g, x in qcvt:
            if g >= 32: G(24, g - 32).append(Ins(x.text, x.kind, x.rd, x.wr))
        PI, PC = int(opts.get('pi', 26)), int(opts.get('pc', 28))
        spread(PI, poll_issue(vn), 8, 10)
        spread(25, attn_setup(), 0, 8)
        G(PC, 1).extend(poll_check(vn))
        bl = G(29, 7)
        ib = [i for i, x in enumerate(bl) if x.kind == 'barrier'][0]
        if USE_INV: bl[ib:ib] = inv_wait(vn)
        spins += spin(vn)
        su = epi_setup(ps, S(54, 2))
        spread(31, su, 0, 4)
        offs = []
        base = S(54, 2)
        for nb in range(2):
            for tb in range(2):
                b = nb * 2 + tb
                for hf in range(2):
                    k = b * 2 + hf
                    add = (2 * nb + hf) * 65536 if ps.name == 'AQK' else (2 * nb) * 65536 + hf * 512
                    offs.append(salu('s_add_u32', sA[k], base[tb], hexs(add)))
        spread(31, offs, 4, 8)
        tail = []
        for nb in range(2):
            for tb in range(2):
                b = nb * 2 + tb
                for i, x in enumerate(cvt_block(ps, nb, tb, apk(b))):
                    g = 4 * b + 8 + i // 5
                    if g < 16 and nb == 0: G(31, g).append(x)
                    else: tail.append(x)
        if ps.name == 'AV':
            l = vLane
            tail += [valu('v_bfe_u32', vT[0], l, 4, 1), valu('v_lshlrev_b32', vT[0], 16, vT[0]), valu('v_lshrrev_b32', vT[1], 5, l),
                     valu('v_lshl_add_u32', vT[0], vT[1], 8, vT[0]), valu('v_and_b32', vT[1], 15, l), valu('v_lshl_add_u32', vAst, vT[1], 4, vT[0])]
        else:
            tail.append(valu('v_mov_b32', vAst, vL16))
        code = [label(f"L_proj_{vn}")]
        kA = []
        for b in range(4): kA += kdma(b)
        kB = kdma(4) + kdma(5)
        G(29, 8).extend(fresh(vD_setup))
        post29, post30 = kA, kB
        for t in range(24, 32):
            code.append(comment(f"stage {t} ({vn})"))
            code += fresh(ASTAMP.get(t, []))
            ms = mfmas(ps, t)
            extra = post29 if t == 29 else (post30 if t == 30 else [])
            for g, m in enumerate(ms):
                code.append(m); code += gaps.get((t, g), [])
                if extra and g >= 9:
                    take = 4 if (g < 15) else len(extra)
                    code += extra[:take]; extra = extra[take:]
        vv = []
        for b in range(4): vv += vdma(b)
        var_code[vn] = m0_peephole(code) + fresh(AEND) + [waitlgkm0(), barrier()] + vv + tail + [branch('s_branch', 'L_b_start2')]
    tr = [label("L_proj_TR")] + fresh([x for g, x in qcvt if g >= 32])
    tr += poll_issue('TR') + attn_setup()
    trj = transpose_job(aflags, S(54, 2))
    for x in trj:
        if x.kind == 'branch' and 'L_proj_fin' in x.text: x.text = x.text.replace('L_proj_fin', 'L_TR_done')
    tr += trj + [label('L_TR_done')]
    for t in (26, 28, 30): tr += fresh(ASTAMP[t])
    tr += poll_check('TR') + [raw("s_waitcnt vmcnt(0)", kind='waitvm0')] + [waitlgkm0(), barrier()]
    spins += spin('TR')
    tr += fresh(vD_setup)
    for b in range(4): tr += kdma(b)
    tr += kdma(4) + kdma(5)
    for b in range(4): tr += vdma(b)
    tr += [salu('s_mov_b32', sA[k], '0xf0000000') for k in range(8)] + [valu('v_mov_b32', vAst, vL16)] + fresh(AEND) + [branch('s_branch', 'L_b_start2')]
    for x in tr:
        if x.kind == 'waitvm0': x.kind = 'waitvm'; x.fixed = 0; x.text = 'WAITVM'
    disp = DISP + [salu('s_cmp_ge_u32', None, sH, 24), branch('s_cbranch_scc1', 'L_proj_TR'),
            salu('s_cmp_ge_u32', None, sH, 16), branch('s_cbranch_scc1', 'L_proj_AV'),
            salu('s_cmp_ge_u32', None, sH, 8), branch('s_cbranch_scc1', 'L_proj_AK')]
    head = pro + start + main + disp
    def astores(): return tagged([bstore(apk(k >> 1)[4 * (k & 1):4 * (k & 1) + 4], vAst, srdWS, sA[k], 0, flags=aflags) for k in range(8)], 'AS')
    B.FIRST_BODY_EXTRA = astores
    p2 = None
    if MEGA:
        def drain_hook(name):
            sig = signal(f'L_sigA_{name}', FL_A, [salu('s_lshl_b32', B.sTmp[4], sH, 7), salu('s_lshl_b32', B.sTmp[5], sG, 2), salu('s_add_u32', B.sTmp[4], B.sTmp[4], B.sTmp[5])],
                         B.sTmp[4], B.vT[0], B.vT[1])
            return (['AS'], sig)
        B.DRAIN_HOOK = drain_hook
        vR, vRA = V(23), V(24)
        B.E1_PRE = lambda: P2.a_ready_poll_issue(vR, vRA, sPoll)
        def a_check(): return P2.match(vR, P2.sTmp[1], 0x1ffff, 0)
        def fin_override():
            return [label('L_b_fin')] + B.stampn(ST, 'battn_end') + [waitvm(need=['APOLL'])] + a_check() + [branch('s_cbranch_scc0', 'L_p_spin_A'), label('L_p_spinr_A'), branch('s_branch', 'L_p_start')]
        B.FIN_OVERRIDE = fin_override
    acode, mk = B.attn_parts(ST, prof)
    B.FIRST_BODY_EXTRA = None; B.DRAIN_HOOK = None; B.E1_PRE = None; B.FIN_OVERRIDE = None
    if MEGA:
        P2.DBGQ = bool(int(opts.get('dbgq', 0)))
        p2 = P2.build(ST, prof, B.stampn)
        p2fin = ([waitvm(n=0)] if prof else []) + B.stampn(ST, 'end') + B.stampn(ST, 'realend', True) + ST.flush(sWG, sWV, sWSP, B.srdK, P2.vT[0], P2.vT[1], P2.sTmp[0]) + [label('L_b_end')]
        spins += P2.spin('A', [bload(vR, vRA, srdWS, sPoll, 0, op='buffer_load_dword', flags='sc1')], [a_check()])
        spins += p2['spins']
    pros = [head + var_code[vn] for vn in ('AQ', 'AK', 'AV')] + [head + tr]
    traces = mk(pros, None if not MEGA else [p2['trace_main'] + p2fin, p2['trace_safe'] + p2fin])
    spins += nonce_spin(vT[2], vT[3])
    traces.append(T(spins))
    resolve_waits(traces)
    fix_hazards(traces, name='pb', verbose=bool(int(opts.get('verbose', 0))))
    code = head + var_code['AQ'] + var_code['AK'] + var_code['AV'] + tr + spins + acode
    if MEGA: code += p2['code'] + p2fin
    global LAST_STAMPS
    LAST_STAMPS = list(getattr(ST, 'names', []))
    return render(code)

if __name__ == '__main__':
    t = gen({'verbose': 0, 'prof': '1'}); print(len(t.splitlines())); print(LAST_STAMPS)
```

```python
from common import *
from k_aattn import (KBASE, VBASE, ONES, FLAG, NEG_INF, C_OFF, NS, vLane, vL16, vK, vVa, vVinc, vT, vM, vChk, vQ, vKf, vVf, vO, vS, vP, vC, sm_ops)
PFX = 'L_p'
LD = 'sc1'
sWG = S(2); srdWS = S(16, 4); sWSP = S(38, 2); sH = S(41); sQG = S(40); sWV = S(42); sNonce = S(59)
srdK, srdV = S(60, 4), S(64, 4)
sOff, sQoff, sOoff, sTT, sNT = S(68), S(69), S(70), S(71), S(72)
sX = [S(83), S(84)]; sW = [S(73), S(85)]
sCnt, sMode = S(74), S(82)
sTmp = S(76, 6)
sOUT = S(46, 2); srdO = S(48, 4)
sP1, sP2 = S(52), S(53)
vP1, vP2, vPA = V(18), V(19), V(52)
SPIN_MAX = 400000
def buf(i): return A(64 + 16 * i, 16)
def accB(nb, tb): return A((nb * 2 + tb) * 16, 16)
_lab = [0]
def newlabel(p):
    _lab[0] += 1
    return f"{PFX}_{p}_{_lab[0]}"

def b_loads(i, q):
    b = buf(i)
    return [bload(b[0:4], vL16, srdWS, sX[0], q * 1024, flags=LD), bload(b[8:12], vL16, srdWS, sW[0], q * 1024, flags=LD),
            bload(b[4:8], vL16, srdWS, sX[1], q * 1024, flags=LD), bload(b[12:16], vL16, srdWS, sW[1], q * 1024, flags=LD)]
def b_adv(): return [salu('s_add_u32', x, x, 4096) for x in sX + sW]
def b_mm(i, first):
    b = buf(i); o = []
    for nb in range(2):
        for tb in range(2):
            o.append(mfma32(accB(nb, tb), b[8 + 4 * nb:12 + 4 * nb], b[4 * tb:4 * tb + 4], 0 if first else accB(nb, tb)))
    return o

def iteration(it, qk=True, sm=True, pv=True, first_pv=False, next_k=True, next_v=True, pre_read=(), bks=(), bfirst=False, reload=True, extra=()):
    par = it & 1
    aa = []
    if qk:
        for u in range(2): aa.append(mfma32(vS(par, u), vKf[par], vQ[u], vC(u)))
    if pv:
        for ks in range(2):
            for u in range(2):
                c = 0 if (first_pv and ks == 0) else vO(u)
                aa.append(mfma32(vO(u), vVf[par][ks], vP(par, u)[4 * ks:4 * ks + 4], c))
    groups = [b_mm(k, bfirst and n == 0) for n, k in enumerate(bks)]
    bm = [m for g in groups for m in g]
    seq = []; ia = ib = 0; tot = len(aa) + len(bm)
    for s_ in range(tot):
        if ib < len(bm) and (ia >= len(aa) or ib * len(aa) <= ia * len(bm) - (0 if ia else 1) or (ia > 0 and (ib + 0.5) / len(bm) <= (ia) / max(len(aa), 1))):
            seq.append(bm[ib]); ib += 1
        elif ia < len(aa): seq.append(aa[ia]); ia += 1
        else: seq.append(bm[ib]); ib += 1
    rd = list(pre_read)
    if next_k: rd.append(ds_read('ds_read_b128', vKf[par ^ 1], vK, (it + 1) * 1024))
    if next_v:
        for ks in range(2): rd.append(ds_read('ds_read_b128', vVf[par ^ 1][ks], vVa, it * 1024 + ks * 512))
    smo = []
    if sm:
        for u in range(2): smo += sm_ops(par ^ 1, u)
    pend = {}
    for n, k in enumerate(bks):
        if reload:
            last = max(i for i, m in enumerate(seq) if m in groups[n])
            pend.setdefault(last, []).extend(b_loads(k, k & 3) + (b_adv() if k & 3 == 3 else []))
    n = len(seq); totv = len(smo)
    if n == 0:
        assert not extra
        return rd + smo
    out = []; k = 0; queue = []
    ex = list(extra)
    for g in range(n):
        out.append(seq[g])
        if g == 0: out += rd
        queue += pend.get(g, [])
        rem = n - g
        take = min(len(queue), max(1, (len(queue) + rem - 1) // rem)) if queue else 0
        out += queue[:take]; queue = queue[take:]
        if ex:
            tk = (len(ex) + rem - 1) // rem
            for e in ex[:tk]:
                if isinstance(e, list): out += e
                else: out.append(e)
            ex = ex[tk:]
        upto = int(round(totv * (g + 1) / n))
        while k < upto: out.append(smo[k]); k += 1
    for e in ex:
        if isinstance(e, list): queue += e
        else: queue.append(e)
    return out + queue

def abody(first=False, bar=None, bks=None, bfirst=False, reload=True, extras=None):
    o = []
    for it in range(4):
        pre = []
        if bar is not None and it == 3: pre = [waitvm(need=bar), barrier()]
        rl = reload[it] if isinstance(reload, (list, tuple)) else reload
        o += iteration(it, qk=True, sm=not (first and it == 0), pv=not (first and it < 2), first_pv=(first and it == 2),
                       next_v=not (first and it == 0), pre_read=pre, bks=(bks[it] if bks else ()),
                       bfirst=(bfirst and it == 0), reload=rl, extra=(extras[it] if extras and extras[it] else ()))
    o += [valu('v_add_u32', vK, 4096, vK), valu('v_add_u32', vVa, vVa, vVinc)]
    return o

def a_dma(g):
    o = [salu('s_add_u32', 'm0', sOff, hexs(KBASE)), nop(0)]
    o += [dma(vL16, srdK, sOff, q * 1024, tag=('AK', g), flags=LD) for q in range(4)]
    o += [salu('s_add_u32', 'm0', sOff, hexs(VBASE)), nop(0)]
    o += [dma(vL16, srdV, sOff, q * 1024, tag=('AV', g), flags=LD) for q in range(4)]
    o += [salu('s_add_u32', sOff, sOff, 16384)]
    return o

def a_sample_and_init(lbl_skip):
    o = []; a = o.append
    a(salu('s_cmp_lg_u32', None, sMode, 0)); a(branch('s_cbranch_scc1', lbl_skip))
    for b in range(NS): a(ds_read('ds_read_b128', vKf[b & 1], vL16, KBASE + b * 1024))
    for b in range(NS):
        for u in range(2): a(mfma32(vS(b & 1, u), vKf[b & 1], vQ[u], 0))
    a(nop(7)); a(nop(3))
    for u in range(2):
        s_ = vS(0, u); s2 = vS(1, u)
        a(valu('v_max3_f32', vM[u], s_[0], s_[1], s_[2]))
        for r in range(3, 15, 2): a(valu('v_max3_f32', vM[u], vM[u], s_[r], s_[r + 1]))
        a(valu('v_max3_f32', vM[u], vM[u], s_[15], s2[0]))
        for r in range(1, 15, 2): a(valu('v_max3_f32', vM[u], vM[u], s2[r], s2[r + 1]))
        a(valu('v_max_f32', vM[u], vM[u], s2[15]))
        a(valu('v_mov_b32', vT[u], vM[u])); a(nop(1))
        a(valu('v_permlane32_swap_b32', vT[u], vM[u]))
        a(valu('v_max_f32', vM[u], vM[u], vT[u]))
        a(valu('v_add_f32', vM[u], hexs(f2u(C_OFF)), vM[u]))
    a(label(lbl_skip))
    for u in range(2):
        for r in range(16): a(valu('v_sub_f32', vC(u)[r], 0, vM[u]))
    a(valu('v_mov_b32', vK, vL16)); a(valu('v_mov_b32', vVa, V(17))); a(valu('v_mov_b32', vChk, 0))
    a(ds_read('ds_read_b128', vKf[0], vK, KBASE))
    return o

def a_epilogue(check, flags=''):
    o = []; a = o.append
    a(valu('v_mov_b32', vT[4], 0)); a(valu('v_mov_b32', vT[2], hexs(f2u(2.0 ** 100)))); a(valu('v_mov_b32', vT[3], '0x7fc00000'))
    for u in range(2):
        O = vO(u); pk = vP(0, u)
        if check: a(vcmp('v_cmp_nle_f32', 'vcc', O[8], vT[2]))
        a(valu('v_rcp_f32', vT[1], O[8])); a(nop(0))
        if check: a(valu('v_cndmask_b32', vChk, vChk, vT[3]))
        for r in range(8): a(valu('v_mul_f32', O[r], O[r], vT[1]))
        for r in range(4): a(valu('v_cvt_pk_bf16_f32', pk[r], O[2 * r], O[2 * r + 1]))
        if check:
            for r in range(4): a(valu('v_dot2_f32_bf16', vChk, pk[r], vT[4], vChk))
        a(bstore(pk[0:4], vL16, srdWS, sOoff, 0, flags=flags))
        if u == 0: a(salu('s_add_u32', sOoff, sOoff, 32768))
    a(salu('s_sub_u32', sOoff, sOoff, 32768))
    return o

def reduce_store():
    vSum = V(32, 16); vIn = V(48, 16); vPk = V(64, 8); vOo = V(3)
    o = []; a = o.append
    a(salu('s_lshl_b32', sTmp[0], sWV, 14)); a(valu('v_add_u32', vT[0], sTmp[0], vL16))
    for bl in range(4):
        for q in range(4): a(ds_write('ds_write_b128', vT[0], accB(bl >> 1, bl & 1)[4 * q:4 * q + 4], (bl * 4 + q) * 1024))
    a(valu('v_and_b32', vT[2], 31, vLane)); a(valu('v_lshlrev_b32', vT[2], 11, vT[2]))
    a(valu('v_lshrrev_b32', vT[3], 5, vLane)); a(valu('v_lshl_add_u32', vOo, vT[3], 4, vT[2]))
    a(waitlgkm0()); a(barrier())
    a(salu('s_lshl_b32', sTmp[0], sWV, 12)); a(valu('v_add_u32', vT[1], sTmp[0], vL16))
    for q in range(4): a(ds_read('ds_read_b128', vSum[4 * q:4 * q + 4], vT[1], q * 1024))
    for src in range(1, 4):
        for q in range(4): a(ds_read('ds_read_b128', vIn[4 * q:4 * q + 4], vT[1], src * 16384 + q * 1024))
        for r in range(16): a(valu('v_add_f32', vSum[r], vSum[r], vIn[r]))
    for r in range(8): a(valu('v_cvt_pk_bf16_f32', vPk[r], vSum[2 * r], vSum[2 * r + 1]))
    a(nop(1))
    a(valu('v_permlane32_swap_b32', vPk[0], vPk[2])); a(valu('v_permlane32_swap_b32', vPk[1], vPk[3]))
    a(valu('v_permlane32_swap_b32', vPk[4], vPk[6])); a(valu('v_permlane32_swap_b32', vPk[5], vPk[7]))
    a(salu('s_lshl_b32', sTmp[0], sTT, 6)); a(salu('s_and_b32', sTmp[1], sWV, 1)); a(salu('s_lshl_b32', sTmp[1], sTmp[1], 5))
    a(salu('s_add_u32', sTmp[0], sTmp[0], sTmp[1])); a(salu('s_lshl_b32', sTmp[0], sTmp[0], 11))
    a(salu('s_lshl_b32', sTmp[1], sNT, 7)); a(salu('s_add_u32', sTmp[0], sTmp[0], sTmp[1]))
    a(salu('s_lshr_b32', sTmp[1], sWV, 1)); a(salu('s_lshl_b32', sTmp[1], sTmp[1], 6)); a(salu('s_add_u32', sTmp[0], sTmp[0], sTmp[1]))
    a(salu('s_add_u32', sTmp[0], sTmp[0], 1024))
    a(bstore(vPk[0:4], vOo, srdO, sTmp[0], 0)); a(bstore(vPk[4:8], vOo, srdO, sTmp[0], 32))
    return o

def match(vP, sOut, lo, hi):
    o = [vcmp('v_cmp_eq_u32', 'vcc', sNonce, vP),
         Ins(f"s_and_b32 {sOut}, vcc_lo, {hexs(lo)}", 'salu', ['vcc'], [str(sOut), 'scc'])]
    if hi:
        o += [Ins(f"s_and_b32 {sTmp[5]}, vcc_hi, {hexs(hi)}", 'salu', ['vcc'], [str(sTmp[5]), 'scc']),
              salu('s_and_b32', sOut, sOut, sTmp[5])]
        assert lo == hi
    o += [salu('s_cmp_eq_u32', None, sOut, hexs(lo))]
    return o
def one_lane_store(lbl, soff, vA, vB, cond):
    o = list(cond)
    o += [valu('v_mov_b32', vA, 0), valu('v_mov_b32', vB, sNonce), raw("s_mov_b64 exec, 1", wr=['exec']), nop(1),
          Ins(f"buffer_store_dword {vB}, {vA}, {srdWS}, {soff} offen sc1", 'raw_vmem', rd=vA.regs() + vB.regs() + srdWS.regs()),
          raw("s_mov_b64 exec, -1", wr=['exec']), nop(3), label(lbl)]
    return o
def spin(name, loads, checks):
    o = [label(f'{PFX}_spin_{name}'), salu('s_mov_b32', sTmp[3], SPIN_MAX), label(f'{PFX}_spinl_{name}'), raw("s_sleep 2")]
    o += loads + [waitvm(n=0)]
    for c in checks: o += c + [branch('s_cbranch_scc0', f'{PFX}_spinc_{name}')]
    o += [branch('s_branch', f'{PFX}_spinr_{name}'), label(f'{PFX}_spinc_{name}'),
          salu('s_sub_u32', sTmp[3], sTmp[3], 1), salu('s_cmp_lg_u32', None, sTmp[3], 0), branch('s_cbranch_scc1', f'{PFX}_spinl_{name}'), branch('s_branch', f'{PFX}_spinr_{name}')]
    return o

def a_ready_poll_issue(vR, vA, sBase):
    o = []; a = o.append
    a(salu('s_lshr_b32', sBase, sH, 2)); a(salu('s_lshl_b32', sBase, sBase, 7)); a(salu('s_add_u32', sBase, sBase, hexs(FL_A)))
    lane = V(27)
    a(valu('v_and_b32', vA, 7, lane)); a(valu('v_lshlrev_b32', vA, 2, vA))
    a(valu('v_lshrrev_b32', vR, 3, lane)); a(valu('v_add_u32', vR, 1, vR)); a(valu('v_lshlrev_b32', vR, 10, vR))
    a(valu('v_add_u32', vA, vA, vR))
    a(salu('s_lshl_b32', sTmp[5], sQG, 2)); a(vcmp('v_cmp_eq_u32', 'vcc', 16, lane)); a(valu('v_mov_b32', vR, sTmp[5]))
    a(valu('v_cndmask_b32', vA, vA, vR))
    a(bload(vR, vA, srdWS, sBase, 0, op='buffer_load_dword', flags='sc1', tag='APOLL'))
    return o

DBGQ = False
def dbg_dump(slot):
    o = [salu('s_lshl_b32', sTmp[0], sWG, 2), salu('s_add_u32', sTmp[0], sTmp[0], sWV), salu('s_lshl_b32', sTmp[0], sTmp[0], 12),
         salu('s_add_u32', sTmp[0], sTmp[0], hexs(16 * MB * 0 + WS_QB + slot * 2048))]
    if slot == 0:
        o += [bstore(V(240, 4), vL16, srdWS, sTmp[0], 0), bstore(V(252, 4), vL16, srdWS, sTmp[0], 1024)]
    else:
        o += [bstore(V(240, 4), vL16, srdWS, sTmp[0], 0), bstore(V(252, 4), vL16, srdWS, sTmp[0], 1024)]
    return o

def build(ST, prof, stampn):
    _lab[0] = 0
    o = [label(PFX + '_start')]; a = o.append
    a(raw("s_load_dwordx2 s[46:47], s[0:1], 72", wr=['s46', 's47']))
    a(valu('v_mov_b32', vLane, V(27))); a(valu('v_lshlrev_b32', vL16, 4, vLane))
    for srd, reg in ((srdK, WS_KA), (srdV, WS_VA)):
        a(salu('s_lshl_b32', sTmp[0], sH, 16)); a(salu('s_add_u32', sTmp[0], sTmp[0], hexs(reg)))
        a(salu('s_add_u32', srd[0], sWSP[0], sTmp[0])); a(salu('s_addc_u32', srd[1], sWSP[1], 0))
        a(salu('s_and_b32', srd[1], srd[1], '0xffff'))
        a(salu('s_mov_b32', srd[2], hexs(65536))); a(salu('s_mov_b32', srd[3], '0x20000'))
    a(salu('s_lshl_b32', sOff, sWV, 12))
    o += a_dma(0)
    a(salu('s_lshl_b32', sTmp[1], sQG, 3)); a(salu('s_lshl_b32', sTmp[2], sWV, 1)); a(salu('s_add_u32', sTmp[1], sTmp[1], sTmp[2]))
    a(salu('s_lshl_b32', sTmp[0], sH, 6)); a(salu('s_add_u32', sTmp[0], sTmp[0], sTmp[1]))
    a(salu('s_lshl_b32', sTmp[0], sTmp[0], 10)); a(salu('s_add_u32', sQoff, sTmp[0], hexs(WS_QA)))
    a(salu('s_lshl_b32', sTmp[1], sTmp[1], 15)); a(salu('s_lshl_b32', sTmp[2], sH, 10)); a(salu('s_add_u32', sTmp[1], sTmp[1], sTmp[2]))
    a(salu('s_add_u32', sOoff, sTmp[1], hexs(WS_CTXA)))
    for u in range(2): a(bload(vQ[u], vL16, srdWS, sQoff, u * 1024, flags=LD))
    o += a_dma(1)
    a(salu('s_and_b32', sTT, sWG, 7)); a(salu('s_lshl_b32', sTT, sTT, 2)); a(salu('s_lshr_b32', sTmp[0], sWG, 3)); a(salu('s_and_b32', sTmp[0], sTmp[0], 3))
    a(salu('s_add_u32', sTT, sTT, sTmp[0])); a(salu('s_lshr_b32', sNT, sWG, 5))
    a(salu('s_lshl_b32', sTmp[0], sWV, 16))
    a(salu('s_lshl_b32', sTmp[1], sTT, 19)); a(salu('s_add_u32', sTmp[1], sTmp[1], sTmp[0]))
    a(salu('s_add_u32', sX[0], sTmp[1], hexs(WS_CTXB))); a(salu('s_add_u32', sX[1], sX[0], hexs(256 * 1024)))
    a(salu('s_lshl_b32', sTmp[1], sNT, 19)); a(salu('s_add_u32', sTmp[1], sTmp[1], sTmp[0]))
    a(salu('s_add_u32', sW[0], sTmp[1], hexs(WS_WOB))); a(salu('s_add_u32', sW[1], sW[0], hexs(256 * 1024)))
    for r in range(4): a(valu('v_mov_b32', vT[r], '0x3f803f80'))
    a(salu('s_lshl_b32', sTmp[0], sWV, 10)); a(salu('s_add_u32', sTmp[0], sTmp[0], hexs(ONES)))
    a(valu('v_add_u32', vT[4], sTmp[0], vL16))
    a(ds_write('ds_write_b128', vT[4], V(vT[0].i, 4)))
    a(valu('v_lshrrev_b32', vT[0], 5, vLane)); a(valu('v_lshlrev_b32', vT[0], 8, vT[0]))
    a(valu('v_and_b32', vT[1], 15, vLane)); a(valu('v_lshl_add_u32', vT[0], vT[1], 4, vT[0]))
    a(valu('v_add_u32', vT[0], hexs(VBASE - 1024), vT[0]))
    a(valu('v_add_u32', vT[2], 4, vT[1])); a(valu('v_bfe_u32', vT[2], vT[2], 3, 1))
    a(valu('v_lshlrev_b32', vT[2], 6, vT[2])); a(valu('v_add_u32', vT[2], hexs(ONES), vT[2]))
    a(valu('v_and_b32', vT[3], 16, vLane))
    a(vcmp('v_cmp_eq_u32', 'vcc', 0, vT[3]))
    a(valu('v_mov_b32', vT[4], 4096)); a(valu('v_mov_b32', vT[5], 0))
    a(valu('v_cndmask_b32', V(17), vT[2], vT[0]))
    a(valu('v_cndmask_b32', vVinc, vT[5], vT[4]))
    a(salu('s_mov_b32', sMode, 0))
    a(waitvm(need=[('AK', 0), ('AV', 0)])); a(waitlgkm0()); a(barrier())
    o += one_lane_store(PFX + '_sigB', sTmp[0], vT[0], vT[1], [salu('s_cmp_lg_u32', None, sWV, 0), branch('s_cbranch_scc1', PFX + '_sigB'),
              salu('s_lshl_b32', sTmp[0], sQG, 7), salu('s_lshl_b32', sTmp[1], sH, 2), salu('s_add_u32', sTmp[0], sTmp[0], sTmp[1]), salu('s_add_u32', sTmp[0], sTmp[0], hexs(FL_B))])
    a(valu('v_mov_b32', vT[5], 0)); a(valu('v_mov_b32', vT[6], hexs(FLAG))); a(ds_write('ds_write_b32', vT[6], vT[5]))
    o += set_srd(srdO, sOUT, 2048 * 1024 * 2)
    o += a_sample_and_init(newlabel('m'))
    if DBGQ:
        o += dbg_dump(0)
    pro = o + stampn(ST, 'p2main')
    pi = [salu('s_lshr_b32', sP1, sTT, 1), salu('s_sub_u32', sTmp[0], 15, sP1), salu('s_min_u32', sP1, sP1, sTmp[0]),
          salu('s_lshl_b32', sP1, sP1, 7), salu('s_add_u32', sP1, sP1, hexs(FL_B)), salu('s_mov_b32', sP2, hexs(FL_A + 24 * 128)),
          valu('v_lshlrev_b32', vPA, 2, vLane)]
    ld1 = lambda tag=None: bload(vP1, vPA, srdWS, sP1, 0, op='buffer_load_dword', flags='sc1', tag=tag)
    pa2 = [valu('v_lshrrev_b32', vP2, 3, vLane), valu('v_lshlrev_b32', vP2, 7, vP2), valu('v_and_b32', V(53), 7, vLane), valu('v_lshl_add_u32', V(53), V(53), 2, vP2)]
    ld2 = lambda tag=None: bload(vP2, V(53), srdWS, sP2, 0, op='buffer_load_dword', flags='sc1', tag=tag)
    poll_issue = pi + [ld1('BP1')] + pa2 + [ld2('BP2')]
    c1 = lambda: match(vP1, sTmp[1], 0xffffffff, 0)
    c2 = lambda: match(vP2, sTmp[1], 0xffffffff, 0xffffffff)
    poll_check = [waitvm(need=['BP1', 'BP2'])] + c1() + [branch('s_cbranch_scc0', f'{PFX}_spin_B')] + c2() + [branch('s_cbranch_scc0', f'{PFX}_spin_B'), label(f'{PFX}_spinr_B')]
    spins = spin('B', [ld1(), ld2()], [c1(), c2()])
    g2 = a_dma(2); g3 = a_dma(3)
    binit = []
    for i in range(8):
        binit += b_loads(i, i & 3)
        if i & 3 == 3: binit += b_adv()
    n4 = (len(binit) + 3) // 4
    A0 = [label(PFX + '_A0')] + abody(first=True, extras=[g2[:6], g2[6:], g3[:6], g3[6:]])
    A1 = abody(extras=[None, None, poll_issue[:8], poll_issue[8:]])
    A2 = abody(extras=[None, None, None, [poll_check]])
    A3 = abody(bar=[('AK', 3), ('AV', 3)], extras=[binit[:n4], binit[n4:2 * n4], binit[2 * n4:3 * n4], binit[3 * n4:]])
    pat = [[0], [1], [2, 3], [4], [5], [6, 7], [0], [1], [2, 3], [4], [5], [6, 7]]
    def bb(name, bfirst, reload_all, last):
        o = [label(name)] if name else []
        for q in range(3):
            bks = pat[4 * q:4 * q + 4]
            if last:
                rl = [(4 * q + it) < 6 for it in range(4)]
            else: rl = True
            o += abody(bks=bks, bfirst=(bfirst and q == 0), reload=rl)
        return o
    BB0 = bb(None, True, True, False) + [salu('s_mov_b32', sCnt, 2)]
    BBL = bb(PFX + '_BBL', False, True, False)
    gL = [salu('s_sub_u32', sCnt, sCnt, 1), salu('s_cmp_lg_u32', None, sCnt, 0), branch('s_cbranch_scc1', PFX + '_BBL')]
    BBE = bb(None, False, True, True)
    TL = iteration(0, qk=False, sm=True, pv=True, next_k=False, next_v=True) + iteration(1, qk=False, sm=False, pv=True, next_k=False, next_v=False)
    mid = stampn(ST, 'p2tail')
    epi = (dbg_dump(1) if DBGQ else []) + a_epilogue(True)
    a = epi.append
    a(vcmp('v_cmp_u_f32', 'vcc', vChk, vChk))
    a(valu('v_mov_b32', vT[1], hexs(FLAG))); a(valu('v_mov_b32', vT[0], 1))
    lf = newlabel('f')
    a(nop(2)); a(branch('s_cbranch_vccz', lf))
    a(ds_write('ds_write_b32', vT[1], vT[0]))
    a(label(lf))
    a(waitlgkm0()); a(barrier())
    a(ds_read('ds_read_b32', vT[2], vT[1]))
    a(valu('v_readfirstlane_b32', sTmp[0], vT[2]))
    a(salu('s_cmp_eq_u32', None, sTmp[0], 0)); a(branch('s_cbranch_scc1', PFX + '_red'))
    o = []; a = o.append
    for u in range(2): a(valu('v_mov_b32', vM[u], NEG_INF))
    a(valu('v_mov_b32', vK, vL16)); a(salu('s_mov_b32', sCnt, 64))
    a(label(PFX + '_safe_loop'))
    a(ds_read('ds_read_b128', vKf[0], vK, KBASE))
    for u in range(2): a(mfma32(vS(0, u), vKf[0], vQ[u], 0))
    a(nop(7)); a(nop(3))
    for u in range(2):
        for r in range(0, 16, 2): a(valu('v_max3_f32', vM[u], vM[u], vS(0, u)[r], vS(0, u)[r + 1]))
    a(valu('v_add_u32', vK, 1024, vK))
    a(salu('s_sub_u32', sCnt, sCnt, 1)); a(salu('s_cmp_lg_u32', None, sCnt, 0)); a(branch('s_cbranch_scc1', PFX + '_safe_loop'))
    for u in range(2):
        a(valu('v_mov_b32', vT[u], vM[u])); a(nop(1))
        a(valu('v_permlane32_swap_b32', vT[u], vM[u]))
        a(valu('v_max_f32', vM[u], vM[u], vT[u]))
    a(salu('s_mov_b32', sMode, 1))
    o += a_sample_and_init(newlabel('m'))
    safe1 = o
    SF = abody(first=True) + [salu('s_mov_b32', sCnt, 15)]
    SP = [label(PFX + '_SP')] + abody()
    gS = [salu('s_sub_u32', sCnt, sCnt, 1), salu('s_cmp_lg_u32', None, sCnt, 0), branch('s_cbranch_scc1', PFX + '_SP')]
    STL = iteration(0, qk=False, sm=True, pv=True, next_k=False, next_v=True) + iteration(1, qk=False, sm=False, pv=True, next_k=False, next_v=False)
    sepi = a_epilogue(False) + [waitlgkm0(), barrier()]
    red = [label(PFX + '_red')] + stampn(ST, 'p2red') + reduce_store()
    code = pro + A0 + A1 + A2 + A3 + BB0 + BBL + gL + BBE + TL + mid + epi + safe1 + SF + SP + gS + STL + sepi + red
    main = pro + A0 + A1 + A2 + A3 + BB0 + BBL + gL + BBL + gL + BBE + TL + mid + epi
    return dict(code=code, spins=spins, trace_main=main + red, trace_safe=main + safe1 + SF + SP + gS + SP + gS + STL + sepi + red)
```

```python
from common import *
import k_proj as P
import k_battn as B
import phase2 as P2
from k_proj import *

LDS_BYTES = 163840
sDBG = S(100, 2)
SPIN_MAX = 400000

def configure_B():
    B.srdK, B.srdV, B.srdWS = S(60, 4), S(64, 4), P.srdWS
    B.sWSP, B.sH, B.sI, B.sWV = P.sWSP, P.sH, P.sG, P.sWV
    B.sKa, B.sKb, B.sVa, B.sVb = S(68), S(69), S(70), S(71)
    B.sKoff, B.sVoff, B.sCnt = S(72), S(73), S(74)
    B.sTmp = S(76, 6); B.sMode = S(82); B.sQoff = S(83, 2); B.sNb = S(85)
    B.vLane, B.vL16, B.vD = P.vLane, P.vL16, V(25)
    B.vKa, B.vKb, B.vVa, B.vVb = V(10), V(11), V(12), V(13)
    B.vT = [V(2 + i) for i in range(8)]
    B.vL = [[V(16), V(17)], [V(18), V(19)]]
    B.vM = [V(14), V(15)]; B.vChk = V(20)

def ids_pb():
    o = []; a = o.append
    a(salu('s_and_b32', sH, sWG, 7)); a(salu('s_lshr_b32', sTmp[0], sWG, 3)); a(salu('s_and_b32', sTmp[0], sTmp[0], 3))
    a(salu('s_lshl_b32', sTmp[0], sTmp[0], 3)); a(salu('s_add_u32', sH, sH, sTmp[0]))
    a(salu('s_lshr_b32', sG, sWG, 5))
    a(valu('v_lshrrev_b32', vT[0], 6, V(0))); a(valu('v_and_b32', vLane, 63, V(0))); a(nop(0))
    a(valu('v_readfirstlane_b32', sWV, vT[0]))
    return o

def q_xvoff():
    o = []; a = o.append; l = vLane
    a(salu('s_lshl_b32', sTmp[0], sG, 17)); a(salu('s_lshl_b32', sTmp[1], sWV, 15)); a(salu('s_add_u32', sTmp[0], sTmp[0], sTmp[1]))
    a(salu('s_sub_u32', sTmp[2], 15, sG)); a(salu('s_lshl_b32', sTmp[2], sTmp[2], 17)); a(salu('s_add_u32', sTmp[2], sTmp[2], sTmp[1]))
    a(valu('v_lshrrev_b32', vT[0], 3, l)); a(valu('v_lshlrev_b32', vT[0], 10, vT[0]))
    a(valu('v_and_b32', vT[1], 7, l)); a(valu('v_lshrrev_b32', vT[2], 4, l))
    for p_ in range(8):
        a(valu('v_add_u32', vT[3], 4 * (p_ & 1), vT[2])); a(valu('v_xor_b32', vT[3], vT[3], vT[1]))
        a(valu('v_lshl_add_u32', vT[3], vT[3], 4, vT[0]))
        a(valu('v_add_u32', vT[3], hexs((p_ & 3) * 8192 - (p_ & 3) * 1024), vT[3]))
        a(valu('v_add_u32', vXd[p_], sTmp[0] if p_ < 4 else sTmp[2], vT[3]))
    a(salu('s_mov_b32', sXoff, 0))
    return o
def q_wsetup():
    return set_srd(srdW, sPTR['B_w_q'], 4 * MB) + [salu('s_lshl_b32', sWoff, sH, 8), salu('s_lshl_b32', sTmp[2], sWV, 17), salu('s_add_u32', sWoff, sWoff, sTmp[2])] + w_dma_voff(4, 8192)

def mdiag5():
    o = []; a = o.append
    a(valu('v_and_b32', vT[0], 31, vLane)); a(valu('v_lshrrev_b32', vT[1], 5, vLane)); a(valu('v_lshlrev_b32', vT[1], 2, vT[1]))
    a(valu('v_sub_u32', vT[0], vT[0], vT[1])); a(valu('v_mov_b32', vT[2], B.NEG_INF)); a(valu('v_mov_b32', vT[3], 0))
    for r in range(16):
        kk = 8 * (r >> 2) + (r & 3)
        a(vcmp('v_cmp_le_i32', 'vcc', kk, vT[0])); a(nop(1))
        a(valu('v_cndmask_b32', vT[4], vT[2], vT[3])); a(accwr(B.aMd[r], vT[4]))
    return o

sNonce = S(59)
def dbg_srd(): return [salu('s_mov_b32', srdT[0], sDBG[0]), salu('s_and_b32', srdT[1], sDBG[1], '0xffff'), salu('s_mov_b32', srdT[2], 256), salu('s_mov_b32', srdT[3], '0x20000')]
def one_lane_store(lbl, srd, soff, val, vA, vB, cond):
    o = list(cond)
    o += [valu('v_mov_b32', vA, 0), valu('v_mov_b32', vB, val), raw("s_mov_b64 exec, 1", wr=['exec']), nop(1),
          Ins(f"buffer_store_dword {vB}, {vA}, {srd}, {soff} offen sc1", 'raw_vmem', rd=vA.regs() + vB.regs() + srd.regs()),
          raw("s_mov_b64 exec, -1", wr=['exec']), nop(3), label(lbl)]
    return o
def signal(lbl, base, idx_ins, sT, vA, vB):
    return one_lane_store(lbl, srdWS, sT, sNonce, vA, vB, [salu('s_cmp_lg_u32', None, sWV, 0), branch('s_cbranch_scc1', lbl)] + idx_ins + [salu('s_add_u32', sT, sT, hexs(base))])
def nonce_publish(lbl):
    pair = S(56, 2)
    cond = [salu('s_or_b32', sTmp[0], sWG, sWV), salu('s_cmp_lg_u32', None, sTmp[0], 0), branch('s_cbranch_scc1', lbl),
            salu('s_add_u32', pair[0], sWSP[0], hexs(FL_KV)), salu('s_addc_u32', pair[1], sWSP[1], 0),
            raw(f"s_load_dword {sTmp[1]}, {pair}, 0", wr=[str(sTmp[1])]), raw("s_waitcnt lgkmcnt(0)", kind='salu'),
            salu('s_add_u32', sTmp[1], sTmp[1], 1), salu('s_cmp_eq_u32', None, sTmp[1], 0), salu('s_cselect_b32', sTmp[1], 1, sTmp[1]),
            salu('s_mov_b32', sTmp[2], 0)]
    return one_lane_store(lbl, srdT, sTmp[2], sTmp[1], vT[0], vT[1], cond)
def nonce_issue(vN, vA):
    return [valu('v_mov_b32', vA, 0), bload(vN, vA, srdT, 0, 0, op='buffer_load_dword', flags='sc1', tag='NONCE')]
def nonce_check(vN):
    return [waitvm(need=['NONCE']), valu('v_readfirstlane_b32', sNonce, vN), salu('s_cmp_eq_u32', None, sNonce, 0), branch('s_cbranch_scc1', 'L_nspin'), label('L_nspin_ret')]
def nonce_spin(vN, vA):
    return [label('L_nspin'), salu('s_mov_b32', sTmp[3], SPIN_MAX), label('L_nspin_loop'), raw("s_sleep 2"),
            bload(vN, vA, srdT, 0, 0, op='buffer_load_dword', flags='sc1'), waitvm(n=0), valu('v_readfirstlane_b32', sNonce, vN),
            salu('s_cmp_lg_u32', None, sNonce, 0), branch('s_cbranch_scc1', 'L_nspin_ret'),
            salu('s_sub_u32', sTmp[3], sTmp[3], 1), salu('s_cmp_lg_u32', None, sTmp[3], 0), branch('s_cbranch_scc1', 'L_nspin_loop'), branch('s_branch', 'L_nspin_ret')]
def flags_match(vP, sOut, mask_lo, mask_hi=0):
    o = [vcmp('v_cmp_eq_u32', 'vcc', sNonce, vP)]
    o += [Ins(f"s_and_b32 {sOut}, vcc_lo, {hexs(mask_lo)}", 'salu', ['vcc'], [str(sOut), 'scc'])]
    if mask_hi: raise NotImplementedError
    o += [salu('s_cmp_eq_u32', None, sOut, hexs(mask_lo))]
    return o


def touch_snip(st, js):
    srd = S(92, 4); lbl = f'L_tch_{st}'; t0, t1 = S(96), S(97)
    o = [salu('s_sub_u32', t0, sG, js[0]), salu('s_cmp_ge_u32', None, t0, len(js)), branch('s_cbranch_scc1', lbl)]
    o += [salu('s_lshl_b32', t1, sWV, 6), valu('v_add_u32', V(94), t1, vLane), valu('v_lshlrev_b32', V(94), 7, V(94))]
    for name, size in (('B_x', 2 * MB), ('B_w_q', 4 * MB), ('A_x', 2 * MB), ('A_wqkv', 512 * 3072)):
        per = size // 256
        o += [salu('s_mul_i32', t0, sWG, hexs(per)), salu('s_add_u32', srd[0], sPTR[name][0], t0), salu('s_addc_u32', srd[1], sPTR[name][1], 0),
              salu('s_and_b32', srd[1], srd[1], '0xffff'), salu('s_mov_b32', srd[2], hexs(per)), salu('s_mov_b32', srd[3], '0x20000'),
              Ins(f"buffer_load_dword v95, v94, {srd}, 0 offen", 'raw_vmem', rd=['v94'] + srd.regs())]
    o.append(label(lbl))
    return o

def gen(opts=None):
    opts = opts or {}
    prof = bool(int(opts.get('prof', 0))); touch = bool(int(opts.get('touch', 0)))
    kvflags = opts.get('kvflags', 'sc1'); aflags = opts.get('aflags', '')
    P.NOSTORE = False; P.PBMAP = True
    configure_B(); B.set_opts(opts); B._lab[0] = 0
    USE_INV = bool(int(opts.get('inv', 0)))
    B.KVLD = '' if USE_INV else 'sc1'
    MEGA = bool(int(opts.get('mega', 0)))
    if MEGA: aflags = 'sc1'; B.CTXFLAGS = 'sc1'; B.FLAG = P2.FLAG
    else: B.CTXFLAGS = ''; B.FLAG = 131072
    ST = Stamps2(86, prof, 1, V(0))
    K = Pass('K', 0, 4, 'K', C_B); Vp = Pass('V', 8, 4, 'V', None); Q = Pass('Q', 16, 4, 'K', None)
    variants = {'AQ': Pass('AQK', 24, 2, 'K', C_A), 'AK': Pass('AQK', 24, 2, 'K', None), 'AV': Pass('AV', 24, 2, 'V', None)}
    LAST = 31
    sA = [S(92 + k) for k in range(8)]
    vAst = V(22 + 4)
    def apk(b): return V(96 + 8 * b, 8)
    def rowstride(t): return 3072 if t >= 24 else 8192
    def NBof(t): return 2 if t >= 24 else 4
    def xi_of(t): return t if t < 8 else (None if t < 16 else t - 8)
    def xfq(st, tb, ks): return A((((st & 1) * 2 + tb) * 4 + ks) * 4, 4)
    def xf(t, tb, ks): return xfrag(t % 8, tb, ks) if t < 8 or 8 <= t < 16 else xfq(t, tb, ks)
    def x_reads2(t, xi):
        slot = xi % 3; out = []
        for tb in range(2):
            for ks in range(4):
                addr = vXa[ks] if slot < 2 else vXb[ks]
                out.append(ds_read('ds_read_b128', xf(t, tb, ks), addr, (XSLOT[slot] if slot < 2 else 0) + tb * 4096))
        return out
    gaps = {}
    def G(t, g):
        n = NBof(t) * 8
        while g >= n: g -= n; t += 1; n = NBof(t) * 8
        return gaps.setdefault((t, g), [])
    def spread(t, ins, g0, g1):
        if not ins: return
        per = (len(ins) + (g1 - g0) - 1) // (g1 - g0)
        for i, x in enumerate(ins): G(t, g0 + i // per).append(x)
    def mfmas(ps, t):
        st = t - ps.t0; out = []
        for nb in range(ps.NB):
            for tb in range(2):
                for ks in range(4):
                    wf = vWf[nb & 1][4 * ks:4 * ks + 4]; x_ = xf(t, tb, ks)
                    c = 0 if (st == 0 and ks == 0) else acc(nb, tb)
                    out.append(mfma32(acc(nb, tb), wf, x_, c) if ps.typ == 'K' else mfma32(acc(nb, tb), x_, wf, c))
        return out
    def a_xsetup():
        return set_srd(srdX, sPTR['A_x'], 2 * MB) + x_dma_voff() + [salu('s_lshl_b32', sXoff, sG, 18), salu('s_lshl_b32', sTmp[0], sWV, 16), salu('s_add_u32', sXoff, sXoff, sTmp[0])]
    def common_fill(ps, t, extra_need=(), nox=False):
        NB = ps.NB; n = NB * 8
        for nb in range(NB):
            if nb + 1 < NB: rs = w_reads(t, nb + 1, NB)
            elif t + 1 <= LAST: rs = w_reads(t + 1, 0, NBof(t + 1))
            else: rs = []
            for i, r in enumerate(rs): G(t, 8 * nb + i).append(r)
        bar = n - 9
        if t + 1 <= LAST: G(t, bar).append(waitvm(need=[('W', t + 1)] + list(extra_need))); G(t, bar).append(barrier())
        wins = []
        if t + 3 <= LAST:
            pre = []
            if t + 3 == 8: pre = switch_w('B_w_uv', [salu('s_sub_u32', sWoff, sWoff, hexs(512 * 8192))])
            if t + 3 == 16: pre = switch_w('B_w_q', [salu('s_sub_u32', sWoff, sWoff, hexs(512 * 8192))])
            if t + 3 == 24:
                pre = switch_w('A_wqkv', [salu('s_lshl_b32', sWoff, sH, 7), salu('s_mul_i32', sTmp[2], sWV, 16 * 3072), salu('s_add_u32', sWoff, sWoff, sTmp[2])])
                pre += w_dma_voff(2, 3072)
            wins = pre + w_dma(t + 3, NBof(t + 3), rowstride(t + 3))
        xin = xi_of(t + 1) if t + 1 <= LAST else None
        if xin is not None:
            g0 = n - 10
            G(t, g0).append(waitvm(need=[('X', xin)]))
            for i, r in enumerate(x_reads2(t + 1, xin)): G(t, g0 + i).append(r)
        xi = xi_of(t); xins = []
        if xi is not None and xi + 3 <= 23:
            pre = []
            if xi + 3 == 8: pre = set_srd(srdX, sPTR['B_x'], 2 * MB) + q_xvoff()
            if xi + 3 == 16: pre = a_xsetup()
            xins = pre + x_dma(xi + 3)
        if NB == 4: spread(t, xins, 8, bar); spread(t, wins, bar + 1, n)
        else: spread(t, wins + xins, bar + 1, n)
    def tagged(lst, tag):
        for x in lst:
            if x.kind == 'vstore': x.tag = tag
        return lst
    def fresh(lst): return [Ins(x.text, x.kind, x.rd, x.wr) for x in lst]

    for ps in (K, Vp, Q):
        for t in range(ps.t0, ps.t0 + 8): common_fill(ps, t, extra_need=(['VS'] if t == 23 else []))
    spread(7, epi_setup(K), 1, 5)
    for nb in range(4):
        for tb in range(2):
            b = nb * 2 + tb
            ins = cvt_block(K, nb, tb)
            for i, x in enumerate(ins): G(7, 4 * b + 7 + (i * 5) // len(ins)).append(x)
            for i, x in enumerate(store_block(K, nb, tb, kvflags)): G(8 + b, (9 if b == 0 else 3) + 6 * i).append(x)
    if touch:
        tl = touch_list(); nA = 3
        la = [x for g in tl[:nA] for x in g]; lq = [x for g in tl[nA:] for x in g] if int(opts.get('touchq', 1)) else []
        TOUCH_A, TOUCH_Q = la, lq
    else: TOUCH_A, TOUCH_Q = [], []
    if TOUCH_Q: spread(int(opts.get('tstageq', 9)), TOUCH_Q, 10, 23)
    if TOUCH_A: spread(int(opts.get('tstage', 20)), TOUCH_A, 0, 8)
    spread(15, epi_setup(Vp), 11, 15)
    for nb in range(4):
        for tb in range(2):
            b = nb * 2 + tb
            for i, x in enumerate(cvt_block(Vp, nb, tb)): G(15, 4 * b + 7 + i // 2).append(x)
    T2 = int(opts.get('touch2', 0))
    if T2:
        m = {}
        for j_ in range(8): m.setdefault((j_ * 5) // 8 if T2 == 1 else 1, []).append(j_)
        for st_, js in m.items(): G(st_, 9 if st_ != 1 else 10).extend(touch_snip(st_, js))
    vst = []
    for nb in range(4):
        for tb in range(2): vst += tagged(store_block(Vp, nb, tb, kvflags), 'VS')
    NVS = int(opts.get('vsstages', 6))
    for k, x in enumerate(vst):
        tt = 16 + (k * NVS) // 16
        G(tt, (8 if tt == 16 else 1) + 5 * (k - (-(-(tt - 16) * 16 // NVS))) ).append(x)
    G(23, 23).extend(signal('L_sig', FL_KV, [salu('s_lshl_b32', sTmp[0], sH, 7), salu('s_lshl_b32', sTmp[1], sG, 2), salu('s_add_u32', sTmp[0], sTmp[0], sTmp[1])], sTmp[0], vT[0], vT[1]))
    G(1, 0).extend(dbg_srd() + nonce_publish('L_npub'))
    G(10, 2).extend(nonce_issue(vT[2], vT[3]))
    G(12, 2).extend(nonce_check(vT[2]))
    ar = w_read_addr(2, dst=[vWa[0], vT[4]])
    spread(23, ar, 9, 16)
    G(23, 22).append(valu('v_mov_b32', vWa[1], vT[4]))
    qcvt = []
    for nb in range(4):
        for u in range(2):
            b = nb * 2 + u; ac = acc(nb, u)
            for i in range(8): qcvt.append((4 * b + 7 + i // 2, valu('v_cvt_pk_bf16_f32', B.aQ(u, 2 * nb + (i >> 2))[i & 3], ac[2 * i], ac[2 * i + 1])))
    for g, x in qcvt:
        if g < 32: G(23, g).append(x)

    pro = ST.stamp('real0', real=True) + ST.stamp('t0')
    a = pro.append
    a(salu('s_cmp_ge_u32', None, sWG, 256)); a(branch('s_cbranch_scc1', 'L_b_end'))
    a(raw("s_load_dwordx16 s[20:35], s[0:1], 0", wr=[f"s{i}" for i in range(20, 36)]))
    a(raw("s_load_dwordx2 s[36:37], s[0:1], 64", wr=['s36', 's37']))
    a(raw("s_load_dwordx2 s[38:39], s[0:1], 88", wr=['s38', 's39']))
    a(raw("s_load_dwordx2 s[100:101], s[0:1], 80", wr=['s100', 's101']))
    pro += ids_pb() + x_dma_voff() + w_dma_voff(4, 8192)
    a(salu('s_lshl_b32', sXlds, sWV, 13)); a(salu('s_lshl_b32', sWlds, sWV, 12))
    a(salu('s_lshl_b32', sXoff, sG, 18)); a(salu('s_lshl_b32', sTmp[0], sWV, 16)); a(salu('s_add_u32', sXoff, sXoff, sTmp[0]))
    a(salu('s_lshl_b32', sWoff, sH, 8)); a(salu('s_lshl_b32', sTmp[0], sWV, 17)); a(salu('s_add_u32', sWoff, sWoff, sTmp[0]))
    a(raw("s_waitcnt lgkmcnt(0)", kind='waitlgkm0'))
    pro += set_srd(srdX, sPTR['B_c_kv'], 2 * MB) + set_srd(srdW, sPTR['B_w_uk'], 4 * MB)
    start = x_dma(0) + w_dma(0, 4, 8192) + x_dma(1) + w_dma(1, 4, 8192) + x_dma(2) + w_dma(2, 4, 8192)
    start += x_read_addr() + w_read_addr(4) + [valu('v_lshlrev_b32', vL16, 4, vLane)] + set_srd(srdWS, sWSP, WS_USED)
    start += [waitvm(need=[('X', 0), ('W', 0)]), barrier()] + x_reads2(0, 0) + w_reads(0, 0, 4)
    MD = mdiag5()
    spread(17, MD[:36], 9, 22); spread(18, MD[36:], 9, 22)
    main = []
    for ps in (K, Vp, Q):
        for t in range(ps.t0, ps.t0 + 8):
            main.append(comment(f"stage {t} ({ps.name})"))
            if t in (0, 1, 4, 8, 9, 12, 16, 17, 18, 20, 22, 23): main += ST.stamp(f"st{t}")
            for g, m in enumerate(mfmas(ps, t)): main.append(m); main += gaps.get((t, g), [])
    main = m0_peephole(main)
    DISP = ST.stamp('disp')
    ASTAMP = {t: ST.stamp(f'a{t}') for t in (26, 28, 30)}
    AEND = ST.stamp('aend')

    def attn_setup():
        su = [salu('s_lshl_b32', B.sTmp[0], sG, 2), salu('s_sub_u32', B.sNb, 64, B.sTmp[0])]
        for srd, reg in ((B.srdK, WS_KB), (B.srdV, WS_VB)):
            su += [salu('s_lshl_b32', B.sTmp[0], sH, 19), salu('s_add_u32', B.sTmp[0], B.sTmp[0], hexs(reg)),
                   salu('s_add_u32', srd[0], sWSP[0], B.sTmp[0]), salu('s_addc_u32', srd[1], sWSP[1], 0), salu('s_and_b32', srd[1], srd[1], '0xffff'),
                   salu('s_lshl_b32', srd[2], B.sNb, 13), salu('s_mov_b32', srd[3], '0x20000')]
        su += [salu('s_mov_b32', B.sMode, 0)] + B.ring_scalars()
        return su
    def pregs(vn): return (V(9), V(10)) if vn == 'TR' else (vT[2], vT[3])
    sPoll = S(75)
    def poll_issue(vn):
        vPoll, vPA = pregs(vn)
        return [salu('s_lshl_b32', sPoll, sH, 7), salu('s_add_u32', sPoll, sPoll, hexs(FL_KV)), valu('v_lshlrev_b32', vPA, 2, vLane),
                bload(vPoll, vPA, srdWS, sPoll, 0, op='buffer_load_dword', flags='sc1', tag='POLL')]
    def poll_check(vn):
        vPoll, vPA = pregs(vn)
        return [waitvm(need=['POLL'])] + flags_match(vPoll, sTmp[1], 0xff) + [branch('s_cbranch_scc0', f'L_spin_{vn}'), label(f'L_spin_ret_{vn}')] + \
               ([salu('s_cmp_lg_u32', None, sWV, 0), branch('s_cbranch_scc1', f'L_noinv_{vn}'), raw("buffer_inv sc1", kind='salu'), label(f'L_noinv_{vn}')] if USE_INV else [])
    def spin(vn):
        vPoll, vPA = pregs(vn)
        return [label(f'L_spin_{vn}'), salu('s_mov_b32', sTmp[3], SPIN_MAX), label(f'L_spin_loop_{vn}'), raw("s_sleep 2"),
                bload(vPoll, vPA, srdWS, sPoll, 0, op='buffer_load_dword', flags='sc1'), waitvm(n=0)] + flags_match(vPoll, sTmp[1], 0xff) + [branch('s_cbranch_scc1', f'L_spin_ret_{vn}'),
                salu('s_sub_u32', sTmp[3], sTmp[3], 1), salu('s_cmp_lg_u32', None, sTmp[3], 0), branch('s_cbranch_scc1', f'L_spin_loop_{vn}'), branch('s_branch', f'L_spin_ret_{vn}')]
    def inv_wait(vn):
        return [salu('s_cmp_lg_u32', None, sWV, 0), branch('s_cbranch_scc1', f'L_nw_{vn}'), raw("s_waitcnt vmcnt(0)", kind='salu'), label(f'L_nw_{vn}')]
    def kdma(b): return B.dma_k(b >= 4, b & 3, ('K', b))
    def vdma(b): return B.dma_v(False, b, ('V', b))
    vD_setup = [salu('s_lshl_b32', B.sTmp[0], sWV, 11), valu('v_add_u32', B.vD, B.sTmp[0], vL16)]

    var_code = {}; spins = []
    for vn, ps in variants.items():
        for k in [k for k in gaps if k[0] >= 24]: del gaps[k]
        for t in range(24, 32): common_fill(ps, t)
        for g, x in qcvt:
            if g >= 32: G(24, g - 32).append(Ins(x.text, x.kind, x.rd, x.wr))
        PI, PC = int(opts.get('pi', 26)), int(opts.get('pc', 28))
        spread(PI, poll_issue(vn), 8, 10)
        spread(25, attn_setup(), 0, 8)
        G(PC, 1).extend(poll_check(vn))
        bl = G(29, 7)
        ib = [i for i, x in enumerate(bl) if x.kind == 'barrier'][0]
        if USE_INV: bl[ib:ib] = inv_wait(vn)
        spins += spin(vn)
        su = epi_setup(ps, S(54, 2))
        spread(31, su, 0, 4)
        offs = []
        base = S(54, 2)
        for nb in range(2):
            for tb in range(2):
                b = nb * 2 + tb
                for hf in range(2):
                    k = b * 2 + hf
                    add = (2 * nb + hf) * 65536 if ps.name == 'AQK' else (2 * nb) * 65536 + hf * 512
                    offs.append(salu('s_add_u32', sA[k], base[tb], hexs(add)))
        spread(31, offs, 4, 8)
        tail = []
        for nb in range(2):
            for tb in range(2):
                b = nb * 2 + tb
                for i, x in enumerate(cvt_block(ps, nb, tb, apk(b))):
                    g = 4 * b + 8 + i // 5
                    if g < 16 and nb == 0: G(31, g).append(x)
                    else: tail.append(x)
        if ps.name == 'AV':
            l = vLane
            tail += [valu('v_bfe_u32', vT[0], l, 4, 1), valu('v_lshlrev_b32', vT[0], 16, vT[0]), valu('v_lshrrev_b32', vT[1], 5, l),
                     valu('v_lshl_add_u32', vT[0], vT[1], 8, vT[0]), valu('v_and_b32', vT[1], 15, l), valu('v_lshl_add_u32', vAst, vT[1], 4, vT[0])]
        else:
            tail.append(valu('v_mov_b32', vAst, vL16))
        code = [label(f"L_proj_{vn}")]
        kA = []
        for b in range(4): kA += kdma(b)
        kB = kdma(4) + kdma(5)
        G(29, 8).extend(fresh(vD_setup))
        post29, post30 = kA, kB
        for t in range(24, 32):
            code.append(comment(f"stage {t} ({vn})"))
            code += fresh(ASTAMP.get(t, []))
            ms = mfmas(ps, t)
            extra = post29 if t == 29 else (post30 if t == 30 else [])
            for g, m in enumerate(ms):
                code.append(m); code += gaps.get((t, g), [])
                if extra and g >= 9:
                    take = 4 if (g < 15) else len(extra)
                    code += extra[:take]; extra = extra[take:]
        vv = []
        for b in range(4): vv += vdma(b)
        var_code[vn] = m0_peephole(code) + fresh(AEND) + [waitlgkm0(), barrier()] + vv + tail + [branch('s_branch', 'L_b_start2')]
    tr = [label("L_proj_TR")] + fresh([x for g, x in qcvt if g >= 32])
    tr += poll_issue('TR') + attn_setup()
    trj = transpose_job(aflags, S(54, 2))
    for x in trj:
        if x.kind == 'branch' and 'L_proj_fin' in x.text: x.text = x.text.replace('L_proj_fin', 'L_TR_done')
    tr += trj + [label('L_TR_done')]
    for t in (26, 28, 30): tr += fresh(ASTAMP[t])
    tr += poll_check('TR') + [raw("s_waitcnt vmcnt(0)", kind='waitvm0')] + [waitlgkm0(), barrier()]
    spins += spin('TR')
    tr += fresh(vD_setup)
    for b in range(4): tr += kdma(b)
    tr += kdma(4) + kdma(5)
    for b in range(4): tr += vdma(b)
    tr += [salu('s_mov_b32', sA[k], '0xf0000000') for k in range(8)] + [valu('v_mov_b32', vAst, vL16)] + fresh(AEND) + [branch('s_branch', 'L_b_start2')]
    for x in tr:
        if x.kind == 'waitvm0': x.kind = 'waitvm'; x.fixed = 0; x.text = 'WAITVM'
    disp = DISP + [salu('s_cmp_ge_u32', None, sH, 24), branch('s_cbranch_scc1', 'L_proj_TR'),
            salu('s_cmp_ge_u32', None, sH, 16), branch('s_cbranch_scc1', 'L_proj_AV'),
            salu('s_cmp_ge_u32', None, sH, 8), branch('s_cbranch_scc1', 'L_proj_AK')]
    head = pro + start + main + disp
    def astores(): return tagged([bstore(apk(k >> 1)[4 * (k & 1):4 * (k & 1) + 4], vAst, srdWS, sA[k], 0, flags=aflags) for k in range(8)], 'AS')
    B.FIRST_BODY_EXTRA = astores
    p2 = None
    if MEGA:
        def drain_hook(name):
            sig = signal(f'L_sigA_{name}', FL_A, [salu('s_lshl_b32', B.sTmp[4], sH, 7), salu('s_lshl_b32', B.sTmp[5], sG, 2), salu('s_add_u32', B.sTmp[4], B.sTmp[4], B.sTmp[5])],
                         B.sTmp[4], B.vT[0], B.vT[1])
            return (['AS'], sig)
        B.DRAIN_HOOK = drain_hook
        vR, vRA = V(23), V(24)
        B.E1_PRE = lambda: P2.a_ready_poll_issue(vR, vRA, sPoll)
        def a_check(): return P2.match(vR, P2.sTmp[1], 0x1ffff, 0)
        def fin_override():
            return [label('L_b_fin')] + B.stampn(ST, 'battn_end') + [waitvm(need=['APOLL'])] + a_check() + [branch('s_cbranch_scc0', 'L_p_spin_A'), label('L_p_spinr_A'), branch('s_branch', 'L_p_start')]
        B.FIN_OVERRIDE = fin_override
    acode, mk = B.attn_parts(ST, prof)
    B.FIRST_BODY_EXTRA = None; B.DRAIN_HOOK = None; B.E1_PRE = None; B.FIN_OVERRIDE = None
    if MEGA:
        P2.DBGQ = bool(int(opts.get('dbgq', 0)))
        p2 = P2.build(ST, prof, B.stampn)
        p2fin = ([waitvm(n=0)] if prof else []) + B.stampn(ST, 'end') + B.stampn(ST, 'realend', True) + ST.flush(sWG, sWV, sWSP, B.srdK, P2.vT[0], P2.vT[1], P2.sTmp[0]) + [label('L_b_end')]
        spins += P2.spin('A', [bload(vR, vRA, srdWS, sPoll, 0, op='buffer_load_dword', flags='sc1')], [a_check()])
        spins += p2['spins']
    pros = [head + var_code[vn] for vn in ('AQ', 'AK', 'AV')] + [head + tr]
    traces = mk(pros, None if not MEGA else [p2['trace_main'] + p2fin, p2['trace_safe'] + p2fin])
    spins += nonce_spin(vT[2], vT[3])
    traces.append(T(spins))
    resolve_waits(traces)
    fix_hazards(traces, name='pb', verbose=bool(int(opts.get('verbose', 0))))
    code = head + var_code['AQ'] + var_code['AK'] + var_code['AV'] + tr + spins + acode
    if MEGA: code += p2['code'] + p2fin
    global LAST_STAMPS
    LAST_STAMPS = list(getattr(ST, 'names', []))
    return render(code)

if __name__ == '__main__':
    t = gen({'verbose': 0, 'prof': '1'}); print(len(t.splitlines())); print(LAST_STAMPS)
```

```python
from common import *
import qproj

LDS_BYTES = 163840
KRING, VRING, FLAG = 0, 65536, 131072
NEG_INF = '0xff800000'

sWG = S(2)
srdK, srdV, srdWS = S(8, 4), S(12, 4), S(16, 4)
sWSP = S(20, 2)
sH, sI, sWV = S(22), S(23), S(24)
sKa, sKb, sVa, sVb = S(25), S(26), S(27), S(28)
sKoff, sVoff = S(29), S(30)
sCnt = S(31)
sTmp = S(32, 6)
sMode = S(38)
sQoff = S(39, 2)
sNb = S(41)
sExec = S(42, 2)
vLane = V(1); vL16 = V(2); vD = V(3)
vKa, vKb, vVa, vVb = V(4), V(5), V(6), V(7)
vT = [V(8 + i) for i in range(8)]
vL = [[V(16), V(17)], [V(18), V(19)]]
vM = [V(20), V(21)]
vChk = V(22)
aMd = A(128, 16)
sPX, sPW = S(44, 2), S(46, 2)
srdX, srdW = S(48, 4), S(52, 4)
sXoff, sWoff, sXlds, sWlds = S(56), S(57), S(58), S(59)
sScale = S(6, 2)
def vS(par, u): return V(128 + (par * 2 + u) * 16, 16)
def vP(par, u): return V(192 + (par * 2 + u) * 8, 8)
def vC(u): return V(224 + 16 * u, 16)
def aO(u, db): return A((u * 4 + db) * 16, 16)
def aQ(u, s): return V(32 + (u * 8 + s) * 4, 4)
def aK(s): return A(192 + 4 * s, 4)
def aV(f): return A(224 + 4 * f, 4)
PFN = 5
KVLD = ''
PAIRW = True
QUADW = False
DDUAL, DSINGLE = 8, 6

_lab = [0]
def newlabel(p):
    _lab[0] += 1
    return f"L_b_{p}_{_lab[0]}"

PKADD = False
DOTSUM = False
vOnes = V(23)
def sm_ops(par, u):
    s = vS(par, u); p = vP(par, u)
    ops = []
    def tailops(r):
        if DOTSUM: return [valu('v_cvt_pk_bf16_f32', p[r // 2], s[r], s[r + 1]), valu('v_dot2_f32_bf16', vL[u][(r >> 1) & 1], p[r // 2], vOnes, vL[u][(r >> 1) & 1])]
        if PKADD: return [valu('v_pk_add_f32', V(vL[u][0].i, 2), V(vL[u][0].i, 2), s[r:r + 2]), valu('v_cvt_pk_bf16_f32', p[r // 2], s[r], s[r + 1])]
        return [valu('v_add_f32', vL[u][0], vL[u][0], s[r]), valu('v_add_f32', vL[u][1], vL[u][1], s[r + 1]),
                valu('v_cvt_pk_bf16_f32', p[r // 2], s[r], s[r + 1])]
    for r in range(0, 16, 2):
        ops += [valu('v_exp_f32', s[r], s[r]), valu('v_exp_f32', s[r + 1], s[r + 1])]
        if r >= 2: ops += tailops(r - 2)
    ops += tailops(14)
    return ops

def k_read(s, half_other, slot):
    return ds_read('ds_read_b128', aK(s), vKb if half_other else vKa, slot * 8192 + s * 1024)
def v_read(f, half_other, slot):
    return ds_read('ds_read_b128', aV(f), vVb if half_other else vVa, slot * 8192 + f * 1024)

def dma_k(half_other, slot, tag):
    return [salu('s_add_u32', 'm0', sKb if half_other else sKa, hexs(slot * 8192))] + \
           [dma(vD, srdK, sKoff, q * 1024, tag=tag, flags=KVLD) for q in range(4)] + [salu('s_add_u32', sKoff, sKoff, 16384)]
def dma_v(half_other, slot, tag):
    return [salu('s_add_u32', 'm0', sVb if half_other else sVa, hexs(slot * 8192))] + \
           [dma(vD, srdV, sVoff, q * 1024, tag=tag, flags=KVLD) for q in range(4)] + [salu('s_add_u32', sVoff, sVoff, 16384)]

def event(u, it):
    o = []
    l1, l2 = newlabel('ev'), newlabel('ev')
    o += [salu('s_cmp_lg_u32', None, sWV, it), branch('s_cbranch_scc1', l1)]
    o += add_mdiag(vC(u))
    o += [label(l1)]
    if it >= 1:
        o += [salu('s_cmp_lg_u32', None, sWV, it - 1), branch('s_cbranch_scc1', l2)]
        o += [valu('v_mov_b32', vC(u)[r], NEG_INF) for r in range(16)]
        o += [label(l2)]
    o.append(nop(1))
    return o

def iteration(it, qk, sm, pv, first_pv=False, bar=False, dmas=True, prefetch=True, events=(), have_prefetched=True, extra_end=(), bar_need=(), bar_post=(), custom_dm=None, drain_all=False):
    par = it & 1
    ms = []; kfirst = {}; vfirst = {}
    for s in range(8):
        for u in qk:
            kfirst.setdefault(s, len(ms))
            ms.append(mfma32(vS(par, u), aK(s), aQ(u, s), vC(u) if s == 0 else vS(par, u)))
    for f in range(8):
        ks, db = f >> 2, f & 3
        for u in pv:
            vfirst.setdefault(f, len(ms))
            c = 0 if (first_pv and ks == 0) else aO(u, db)
            ms.append(mfma32(aO(u, db), aV(f), vP(par, u)[4 * ks:4 * ks + 4], c))
    n = len(ms)
    if QUADW and max(len(qk), len(pv)) == 1:
        for s_ in range(0, 8, 4):
            for d in range(1, 4):
                if s_ in kfirst and s_ + d in kfirst: ms[kfirst[s_]].xdep |= set(aK(s_ + d).regs())
                if s_ in vfirst and s_ + d in vfirst: ms[vfirst[s_]].xdep |= set(aV(s_ + d).regs())
    elif PAIRW:
        for s_ in range(0, 8, 2):
            if s_ in kfirst and s_ + 1 in kfirst: ms[kfirst[s_]].xdep |= set(aK(s_ + 1).regs())
            if s_ in vfirst and s_ + 1 in vfirst: ms[vfirst[s_]].xdep |= set(aV(s_ + 1).regs())
    dual = max(len(qk), len(pv)) == 2
    D = DDUAL if dual else DSINGLE
    pre = []
    gaps = [[] for _ in range(max(n, 1))]
    for u in events: pre += event(u, it)
    barr = []
    if bar:
        barr = [waitvm(n=0) if drain_all else waitvm(need=lambda c, it=it, bn=tuple(bar_need): [('K', 4 * c['m'] + it + 2)] + list(bn)), barrier()] + list(bar_post)
    kreads = []
    for s in range(8):
        if s in kfirst and (s >= PFN or not have_prefetched):
            kreads.append((kfirst[s] - D, k_read(s, False, it)))
    vo, vs = (True, it + 2) if it < 2 else (False, it - 2)
    vreads = [(vfirst[f] - D, v_read(f, vo, vs)) for f in range(8) if f in vfirst]
    pf = []
    if prefetch:
        po, psl = (False, it + 1) if it < 3 else (True, 0)
        pf = [k_read(s, po, psl) for s in range(PFN)]
    dm = []
    if dmas:
        if it == 0:   dm = dma_k(True, 2, lambda c: ('K', 4 * c['m'] + 6))
        elif it == 1: dm = dma_v(True, 0, lambda c: ('V', 4 * c['m'] + 4))
        elif it == 2: dm = dma_k(False, 0, lambda c: ('K', 4 * c['m'] + 8))
        else:         dm = dma_v(True, 2, lambda c: ('V', 4 * c['m'] + 6))
    if custom_dm is not None: dm = list(custom_dm)
    smo = []
    for u in sm: smo += sm_ops(par ^ 1, u)
    if n == 0:
        return pre + barr + dm + smo + pf + list(extra_end)
    if qk:
        gaps[0] += barr
        for g, r in kreads + vreads: gaps[max(g, 0)].append(r)
    else:
        pre += barr
        for g, r in vreads:
            if g < 0: pre.append(r)
            else: gaps[g].append(r)
    for i, r in enumerate(pf):
        gaps[max(n - 1 - (PFN - 1 - i) - (1 if dual else 0), 0)].append(r)
    if dm:
        g0 = 1; span = max(n - 3, 1)
        for i, x in enumerate(dm): gaps[min(g0 + (i * span) // len(dm), n - 1)].append(x)
    cap = [24 - sum(x.cost for x in gaps[g]) for g in range(n)]
    tot = sum(x.cost for x in smo)
    free = sum(max(c, 0) for c in cap)
    k = 0; acc_need = 0.0; placed = 0
    for g in range(n):
        share = (max(cap[g], 0) / free if free > 0 else 1.0 / n) * tot
        acc_need += share
        while k < len(smo) and (placed + smo[k].cost / 2 <= acc_need + 1e-6 or g == n - 1):
            gaps[g].append(smo[k]); placed += smo[k].cost; k += 1
    out = list(pre)
    for g in range(n):
        out.append(ms[g]); out += gaps[g]
    out += list(extra_end)
    out = m0_peephole(out)
    seen = set()
    for x in out:
        if x.kind == 'ds_read': seen |= x.wr
        if x.kind == 'mfma32':
            for r in x.srcab:
                if r[0] == 'a' and int(r[1:]) >= 224: assert r in seen, ("V frag used before read", x.text)
                if r[0] == 'a' and 192 + 4 * PFN <= int(r[1:]) < 224: assert r in seen, ("K frag used before read", x.text)
    return out

def toggles():
    return [valu('v_xor_b32', x, '0x8000', x) for x in (vKa, vKb, vVa, vVb)] + \
           [salu('s_xor_b32', x, x, '0x8000') for x in (sKa, sKb, sVa, sVb)]

FIRST_BODY_EXTRA = None
DRAIN_HOOK = None
LAST_HOOK = None
SAFE_PRE = None
TAIL_HOOK = None
CTXFLAGS = ''
E1_PRE = None
FIN_OVERRIDE = None
def body(name, first, t0, t1):
    o = [label(name)]
    for it in range(4):
        qk, sm, pv, ev = [], [], [], []
        for u, mode in ((0, t0), (1, t1)):
            if mode in ('full', 'mask'):
                if not (first and it == 0): qk.append(u)
                if not (first and it == 0): sm.append(u)
                if not (first and it < 2): pv.append(u)
                if mode == 'mask' and not (first and it == 0): ev.append(u)
            elif mode == 'drain':
                if it == 0: sm.append(u)
                if it < 2: pv.append(u)
        last = (t1 == 'mask' and it == 3)
        o.append(comment(f"{name} it{it} qk={qk} sm={sm} pv={pv}"))
        ee = list(toggles()) if it == 3 else []
        if first and it == 3 and FIRST_BODY_EXTRA is not None: ee += FIRST_BODY_EXTRA()
        bn, bp = ((), ())
        if t0 == 'drain' and it == 2 and DRAIN_HOOK is not None: bn, bp = DRAIN_HOOK(name)
        if t1 == 'mask' and it == 0 and LAST_HOOK is not None: bp = list(bp) + LAST_HOOK(name)
        o += iteration(it, qk, sm, pv, first_pv=(first and it in (2,)), bar=(it % 2 == 0), prefetch=not last, events=ev, extra_end=ee, bar_need=bn, bar_post=bp)
    return o

def tail():
    o = [label('L_b_tail'), comment('tail')]
    post, d0, d1 = TAIL_HOOK() if TAIL_HOOK is not None else ((), None, None)
    o += iteration(0, [], [1], [1], bar=True, dmas=False, prefetch=False, bar_post=post, custom_dm=d0, drain_all=True)
    o += iteration(1, [], [], [1], bar=False, dmas=False, prefetch=False, custom_dm=d1)
    return o

def epilogue(u):
    o = []; a = o.append
    tmp = vS(0, u)
    pk = vP(0, u)
    a(valu('v_add_f32', vL[u][0], vL[u][0], vL[u][1]))
    a(valu('v_mov_b32', vT[0], vL[u][0]))
    a(nop(1))
    a(valu('v_permlane32_swap_b32', vT[0], vL[u][0]))
    a(valu('v_add_f32', vT[0], vT[0], vL[u][0]))
    a(valu('v_mov_b32', vT[2], hexs(f2u(2.0 ** 100))))
    a(vcmp('v_cmp_nle_f32', 'vcc', vT[0], vT[2]))
    a(valu('v_rcp_f32', vT[1], vT[0]))
    a(valu('v_mov_b32', vT[3], '0x7fc00000'))
    a(valu('v_cndmask_b32', vChk, vChk, vT[3]))
    a(valu('v_mov_b32', vT[6], vT[1])); a(valu('v_mov_b32', vT[7], vT[1]))
    for db in range(4):
        for r in range(16): a(accrd(tmp[r], aO(u, db)[r]))
        for r in range(8): a(valu('v_pk_mul_f32', tmp[2 * r:2 * r + 2], tmp[2 * r:2 * r + 2], V(vT[6].i, 2)))
        for r in range(8): a(valu('v_cvt_pk_bf16_f32', pk[r], tmp[2 * r], tmp[2 * r + 1]))
        for r in range(8): a(valu('v_dot2_f32_bf16', vChk, pk[r], vT[4], vChk))
        a(bstore(pk[0:4], vL16, srdWS, sQoff[u], (2 * db) * 1024 % 4096, flags=CTXFLAGS) if db < 2 else bstore(pk[0:4], vL16, srdWS, sTmp[u], (2 * db - 4) * 1024, flags=CTXFLAGS))
        a(bstore(pk[4:8], vL16, srdWS, sQoff[u], (2 * db + 1) * 1024, flags=CTXFLAGS) if db < 2 else bstore(pk[4:8], vL16, srdWS, sTmp[u], (2 * db - 3) * 1024, flags=CTXFLAGS))
    for x in o:
        if x.kind == 'vstore': x.tag = 'CS'
    return o

def epi_offsets(u):
    o = []; a = o.append
    if u == 0: a(salu('s_lshl_b32', sTmp[2], sI, 2))
    else:
        a(salu('s_sub_u32', sTmp[2], 15, sI)); a(salu('s_lshl_b32', sTmp[2], sTmp[2], 2))
    a(salu('s_add_u32', sTmp[2], sTmp[2], sWV))
    a(salu('s_lshl_b32', sTmp[2], sTmp[2], 18))
    a(salu('s_lshl_b32', sTmp[3], sH, 13))
    a(salu('s_add_u32', sTmp[2], sTmp[2], sTmp[3]))
    a(salu('s_add_u32', sQoff[u], sTmp[2], hexs(WS_CTXB)))
    a(salu('s_add_u32', sTmp[u], sQoff[u], 4096))
    a(valu('v_mov_b32', vT[4], 0))
    return o

def mdiag():
    o = []; a = o.append
    a(valu('v_and_b32', vT[0], 31, vLane)); a(valu('v_lshrrev_b32', vT[1], 5, vLane)); a(valu('v_lshlrev_b32', vT[1], 2, vT[1]))
    a(valu('v_sub_u32', vT[0], vT[0], vT[1]))
    a(valu('v_mov_b32', vT[2], NEG_INF)); a(valu('v_mov_b32', vT[3], 0))
    for r in range(16):
        kk = 8 * (r >> 2) + (r & 3)
        a(vcmp('v_cmp_le_i32', 'vcc', kk, vT[0]))
        a(nop(1))
        a(valu('v_cndmask_b32', vT[4 + (r & 1)], vT[2], vT[3]))
        a(accwr(aMd[r], vT[4 + (r & 1)]))
    return o
def add_mdiag(dst):
    o = []
    for r in range(16):
        o.append(accrd(vT[6 + (r & 1)], aMd[r]))
        o.append(valu('v_add_f32', dst[r], dst[r], vT[6 + (r & 1)]))
    return o

QP = qproj.QP(vLane=vLane, vXa=[V(4), V(5), V(6), V(7)], vWa=[V(16), V(17), V(18), V(19)], vXd=[V(20), V(21), V(22), V(23), V(24), V(25), V(26), V(27)],
              vWd=[V(28), V(29), V(30), V(31)], vT=vT, vXb=[V(112 - 16 + 0 + 0 + 0 + 0), None, None, None], srdX=srdX, srdW=srdW, sXoff=sXoff, sWoff=sWoff,
              sXlds=sXlds, sWlds=sWlds, sWV=sWV, sH=sH, sI=sI, sTmp=sTmp, sScale=sScale, vQ=aQ)
QP.vXb = [V(32), V(33), V(34), V(35)]

def prologue_setup(ST=None):
    o = []; a = o.append
    a(salu('s_cmp_ge_u32', None, sWG, 256)); a(branch('s_cbranch_scc1', 'L_b_end'))
    a(raw("s_load_dwordx2 s[20:21], s[0:1], 88", wr=['s20', 's21']))
    a(raw("s_load_dwordx2 s[44:45], s[0:1], 24", wr=['s44', 's45']))
    a(raw("s_load_dwordx2 s[46:47], s[0:1], 40", wr=['s46', 's47']))
    a(salu('s_and_b32', sH, sWG, 7)); a(salu('s_lshr_b32', sTmp[0], sWG, 3)); a(salu('s_and_b32', sTmp[0], sTmp[0], 3))
    a(salu('s_lshl_b32', sTmp[0], sTmp[0], 3)); a(salu('s_add_u32', sH, sH, sTmp[0]))
    a(salu('s_lshr_b32', sI, sWG, 5))
    a(valu('v_lshrrev_b32', vT[0], 6, V(0))); a(valu('v_and_b32', vLane, 63, V(0))); a(nop(0))
    a(valu('v_readfirstlane_b32', sWV, vT[0]))
    a(valu('v_lshlrev_b32', vL16, 4, vLane))
    a(nop(2))
    o += QP.setup_early()
    a(raw("s_waitcnt lgkmcnt(0)", kind='waitlgkm0'))
    o += set_srd(srdX, sPX, 2 * MB) + set_srd(srdW, sPW, 4 * MB)
    o += QP.first_dmas()
    o += QP.setup_late()
    o += mdiag()
    a(salu('s_lshl_b32', sTmp[0], sWV, 11))
    a(valu('v_add_u32', vD, sTmp[0], vL16))
    o += set_srd(srdWS, sWSP, WS_USED)
    a(salu('s_lshl_b32', sTmp[0], sI, 2)); a(salu('s_sub_u32', sNb, 64, sTmp[0]))
    for srd, reg in ((srdK, WS_KB), (srdV, WS_VB)):
        a(salu('s_lshl_b32', sTmp[0], sH, 19)); a(salu('s_add_u32', sTmp[0], sTmp[0], hexs(reg)))
        a(salu('s_add_u32', srd[0], sWSP[0], sTmp[0])); a(salu('s_addc_u32', srd[1], sWSP[1], 0))
        a(salu('s_and_b32', srd[1], srd[1], '0xffff'))
        a(salu('s_lshl_b32', srd[2], sNb, 13)); a(salu('s_mov_b32', srd[3], '0x20000'))
    a(salu('s_mov_b32', sMode, 0))
    o += ring_scalars()
    kv1 = dma_k(False, 0, ('K', 0)) + dma_k(False, 1, ('K', 1)) + dma_k(False, 2, ('K', 2)) + dma_v(False, 0, ('V', 0)) + \
          dma_k(False, 3, ('K', 3)) + dma_v(False, 1, ('V', 1)) + dma_v(False, 2, ('V', 2)) + dma_v(False, 3, ('V', 3))
    kv2 = dma_k(True, 0, ('K', 4)) + dma_k(True, 1, ('K', 5))
    o += QP.run(kv1, kv2, ST)
    a(branch('s_branch', 'L_b_start2'))
    return o

def ring_scalars():
    o = []; a = o.append
    a(salu('s_lshl_b32', sTmp[0], sWV, 12))
    a(salu('s_mov_b32', sKa, sTmp[0])); a(salu('s_add_u32', sKb, sKa, '0x8000'))
    a(salu('s_add_u32', sVa, sKa, hexs(VRING))); a(salu('s_add_u32', sVb, sVa, '0x8000'))
    a(salu('s_mov_b32', sKoff, 0)); a(salu('s_mov_b32', sVoff, 0))
    return o

def start_safe():
    o = [label('L_b_start')]
    o += ring_scalars()
    o += dma_k(False, 0, ('K', 0)) + dma_k(False, 2, ('K', 2)) + dma_v(False, 0, ('V', 0)) + dma_k(True, 0, ('K', 4)) + dma_v(False, 2, ('V', 2))
    return o

def start():
    o = []; a = o.append
    a(label('L_b_start2'))
    a(valu('v_mov_b32', vKa, vL16)); a(valu('v_add_u32', vKb, '0x8000', vL16))
    a(valu('v_add_u32', vVa, hexs(VRING), vL16)); a(valu('v_add_u32', vVb, '0x8000', vVa))
    a(valu('v_mov_b32', vT[0], 0)); a(valu('v_mov_b32', vT[1], hexs(FLAG)))
    for u in range(2):
        for x in vL[u]: a(valu('v_mov_b32', x, 0))
    a(valu('v_mov_b32', vChk, 0))
    if DOTSUM: a(valu('v_mov_b32', vOnes, '0x3f803f80'))
    a(ds_write('ds_write_b32', vT[1], vT[0]))
    a(waitvm(need=[('K', 0)])); a(waitlgkm0()); a(barrier())
    for s in range(8): a(k_read(s, False, 0))
    for s in range(8):
        for u in range(2):
            a(mfma32(vS(0, u), aK(s), aQ(u, s), 0 if s == 0 else vS(0, u)))
    a(nop(7)); a(nop(3))
    l1 = newlabel('p')
    a(salu('s_or_b32', sTmp[0], sI, sWV)); a(salu('s_cmp_lg_u32', None, sTmp[0], 0)); a(branch('s_cbranch_scc1', l1))
    o += add_mdiag(vS(0, 0))
    a(label(l1))
    l2 = newlabel('p')
    a(salu('s_cmp_lg_u32', None, sMode, 0)); a(branch('s_cbranch_scc1', l2))
    for u in range(2):
        s_ = vS(0, u)
        a(valu('v_max3_f32', vM[u], s_[0], s_[1], s_[2]))
        for r in range(3, 15, 2): a(valu('v_max3_f32', vM[u], vM[u], s_[r], s_[r + 1]))
        a(valu('v_max_f32', vM[u], vM[u], s_[15]))
        a(valu('v_mov_b32', vT[u], vM[u]))
        a(nop(1))
        a(valu('v_permlane32_swap_b32', vT[u], vM[u]))
        a(valu('v_max_f32', vM[u], vM[u], vT[u]))
    a(label(l2))
    for u in range(2):
        for r in range(16): a(valu('v_sub_f32', vS(0, u)[r], vS(0, u)[r], vM[u]))
        for r in range(16): a(valu('v_sub_f32', vC(u)[r], 0, vM[u]))
    return o

def set_opts(opts):
    global PKADD, PAIRW, DDUAL, DSINGLE, PFN, DOTSUM, QUADW
    DOTSUM = bool(int(opts.get('dotsum', 0))); QUADW = bool(int(opts.get('quadw', 0)))
    PKADD = bool(int(opts.get('pkadd', 0))); PAIRW = bool(int(opts.get('pairw', 1)))
    DDUAL = int(opts.get('ddual', 8)); DSINGLE = int(opts.get('dsingle', 6)); PFN = int(opts.get('pfn', 5))

def stampn(ST, name, real=False):
    return ST.stamp(name, real=real) if isinstance(ST, Stamps2) else ST.stamp(real=real)

def attn_parts(ST, prof, fin_extra=None):
    st0 = start_safe()
    st = start() + stampn(ST, 'attn')
    F  = body('L_b_F', True, 'full', 'full')
    FM = body('L_b_FM', True, 'mask', 'full')
    D  = body('L_b_D', False, 'full', 'full')
    DM = body('L_b_DM', False, 'mask', 'full')
    TD = body('L_b_TD', False, 'drain', 'full')
    TDM = body('L_b_TDM', False, 'drain', 'mask')
    SF = body('L_b_SF', False, 'off', 'full')
    SM_ = body('L_b_SM', False, 'off', 'mask')
    TL = tail()
    e0a = epi_offsets(0) + epilogue(0); e0b = epi_offsets(0) + epilogue(0)
    e1 = (E1_PRE() if E1_PRE else []) + epi_offsets(1) + epilogue(1)
    g_sel = [salu('s_cmp_eq_u32', None, sI, 0), branch('s_cbranch_scc1', 'L_b_FM')]
    g_F = [salu('s_sub_u32', sCnt, sI, 1), salu('s_cmp_eq_u32', None, sCnt, 0), branch('s_cbranch_scc1', 'L_b_DM')]
    g_D = [salu('s_sub_u32', sCnt, sCnt, 1), salu('s_cmp_lg_u32', None, sCnt, 0), branch('s_cbranch_scc1', 'L_b_D')]
    g_DM = [salu('s_cmp_eq_u32', None, sI, 7), branch('s_cbranch_scc1', 'L_b_TDM'), branch('s_branch', 'L_b_TD')]
    g_TD_post = [salu('s_lshl_b32', sCnt, sI, 1), salu('s_sub_u32', sCnt, 13, sCnt)]
    g_SF = [salu('s_sub_u32', sCnt, sCnt, 1), salu('s_cmp_lg_u32', None, sCnt, 0), branch('s_cbranch_scc1', 'L_b_SF')]
    g_SM = [branch('s_branch', 'L_b_tail')]
    chk = []; a = chk.append
    a(vcmp('v_cmp_u_f32', 'vcc', vChk, vChk))
    a(valu('v_mov_b32', vT[1], hexs(FLAG))); a(valu('v_mov_b32', vT[0], 1))
    lf = newlabel('f')
    a(nop(2))
    a(branch('s_cbranch_vccz', lf))
    a(ds_write('ds_write_b32', vT[1], vT[0]))
    a(label(lf))
    a(waitlgkm0()); a(barrier())
    a(ds_read('ds_read_b32', vT[2], vT[1]))
    a(valu('v_readfirstlane_b32', sTmp[0], vT[2]))
    a(salu('s_cmp_eq_u32', None, sTmp[0], 0)); a(branch('s_cbranch_scc1', 'L_b_fin'))
    a(salu('s_cmp_lg_u32', None, sMode, 0)); a(branch('s_cbranch_scc1', 'L_b_fin'))
    safe = maxpass()
    sE0 = stampn(ST, 'e0')
    e0a = sE0 + e0a; e0b = [Ins(x.text, x.kind, x.rd, x.wr) for x in sE0] + e0b
    mid = stampn(ST, 'tailend')
    fin = None
    if FIN_OVERRIDE is None: fin = [label('L_b_fin')] + ([waitvm(n=0)] if prof else []) + stampn(ST, 'end') + stampn(ST, 'realend', True) + ST.flush(sWG, sWV, sWSP, srdK, vT[0], vT[1], sTmp[0]) + [label('L_b_end')]
    if FIN_OVERRIDE is not None: fin = FIN_OVERRIDE()
    code = st0 + st + g_sel + F + g_F + D + g_D + DM + g_DM + FM + TD + e0a + g_TD_post + SF + g_SF + SM_ + g_SM + TDM + e0b + TL + mid + e1 + chk + safe + fin
    def tr(seq):
        out = []
        for seg, m in seq: out += T(seg, m=m)
        return out
    def make_traces(pros, after=None):
        traces = []
        for n_, i in enumerate((0, 1, 2, 3, 6, 7)):
            seq = [(pros[n_ % len(pros)], 0), (st, 0), (g_sel, 0)]
            if i == 0: seq += [(FM, 0)]
            else:
                seq += [(F, 0), (g_F, 0)]
                for m in range(1, i): seq += [(D, m), (g_D, m)]
                seq += [(DM, i), (g_DM, i)]
            if i == 7: seq += [(TDM, 8), (e0b, 8)]
            else:
                seq += [(TD, i + 1), (e0a, i + 1), (g_TD_post, i + 1)]
                for m in range(i + 2, 15 - i): seq += [(SF, m), (g_SF, m)]
                seq += [(SM_, 15 - i), (g_SM, 15 - i)]
            base = seq + [(TL, 16 - i), (mid, 0), (e1, 0), (chk, 0)]
            traces.append(tr(base + [(safe, 0), (st0, 0), (st, 0), (g_sel, 0), (F, 0)]))
            if after is not None:
                for aft in after: traces.append(tr(base + [(fin, 0), (aft, 0)]))
        for p in pros:
            traces.append(tr([(p, 0), (st, 0), (g_sel, 0), (FM, 0), (TD, 1)]))
            traces.append(tr([(p, 0), (st, 0), (g_sel, 0), (F, 0), (g_F, 0), (D, 1)]))
        return traces
    return code, make_traces

def gen(opts=None):
    opts = opts or {}
    set_opts(opts)
    prof = bool(int(opts.get('prof', 0)))
    ST = Stamps(60, prof, 1)
    _lab[0] = 0
    pro = ST.stamp(real=True) + ST.stamp() + prologue_setup(ST)
    code, mk = attn_parts(ST, prof)
    traces = mk([pro])
    resolve_waits(traces)
    fix_hazards(traces, name='battn', verbose=bool(int(opts.get('verbose', 0))))
    return render(pro + code)

def maxpass():
    o = []; a = o.append
    a(label('L_b_safe'))
    a(waitvm(n=0)); a(waitlgkm0()); a(barrier())
    if SAFE_PRE is not None: o += SAFE_PRE()
    for u in range(2): a(valu('v_mov_b32', vM[u], NEG_INF))
    a(salu('s_mov_b32', sKoff, 0)); a(salu('s_mov_b32', sCnt, 0))
    a(salu('s_lshl_b32', sKa, sWV, 11))
    a(salu('s_lshl_b32', sTmp[4], sWV, 11)); a(valu('v_add_u32', vT[5], sTmp[4], vL16))
    a(salu('s_lshl_b32', sTmp[2], sI, 2)); a(salu('s_add_u32', sTmp[2], sTmp[2], sWV))
    a(salu('s_sub_u32', sTmp[3], 15, sI)); a(salu('s_lshl_b32', sTmp[3], sTmp[3], 2)); a(salu('s_add_u32', sTmp[3], sTmp[3], sWV))
    a(valu('v_mov_b32', vKa, vL16))
    a(label('L_b_safe_loop'))
    o += [salu('s_mov_b32', 'm0', sKa), nop(0), dma(vT[5], srdK, sKoff, 0, flags=KVLD), dma(vT[5], srdK, sKoff, 1024, flags=KVLD), salu('s_add_u32', sKoff, sKoff, 8192)]
    a(waitvm(n=0)); a(barrier())
    for s in range(8): a(k_read(s, False, 0))
    for u in range(2):
        lskip, ldiag, ljoin = newlabel('s'), newlabel('s'), newlabel('s')
        rb = sTmp[2 + u]; s_ = vS(0, u)
        a(salu('s_cmp_gt_u32', None, sCnt, rb)); a(branch('s_cbranch_scc1', lskip))
        for s in range(8): a(mfma32(s_, aK(s), aQ(u, s), 0 if s == 0 else s_))
        a(nop(7)); a(nop(3))
        a(salu('s_cmp_lg_u32', None, sCnt, rb)); a(branch('s_cbranch_scc1', ljoin))
        o += add_mdiag(s_)
        a(label(ljoin))
        for r in range(0, 16, 2): a(valu('v_max3_f32', vM[u], vM[u], s_[r], s_[r + 1]))
        a(label(lskip))
    a(waitlgkm0()); a(barrier())
    a(salu('s_add_u32', sCnt, sCnt, 1)); a(salu('s_cmp_lt_u32', None, sCnt, sNb)); a(branch('s_cbranch_scc1', 'L_b_safe_loop'))
    for u in range(2):
        a(valu('v_mov_b32', vT[u], vM[u])); a(nop(1))
        a(valu('v_permlane32_swap_b32', vT[u], vM[u]))
        a(valu('v_max_f32', vM[u], vM[u], vT[u]))
    a(salu('s_mov_b32', sMode, 1))
    a(branch('s_branch', 'L_b_start'))
    return o

if __name__ == '__main__':
    t = gen({'verbose': 1})
    print(len(t.splitlines()))
```

```python
from common import *
import k_proj as P
import k_battn as B
import phase2 as P2
from k_proj import *

LDS_BYTES = 163840
sDBG = S(100, 2)
SPIN_MAX = 400000

def configure_B():
    B.srdK, B.srdV, B.srdWS = S(60, 4), S(64, 4), P.srdWS
    B.sWSP, B.sH, B.sI, B.sWV = P.sWSP, P.sH, P.sG, P.sWV
    B.sKa, B.sKb, B.sVa, B.sVb = S(68), S(69), S(70), S(71)
    B.sKoff, B.sVoff, B.sCnt = S(72), S(73), S(74)
    B.sTmp = S(76, 6); B.sMode = S(82); B.sQoff = S(83, 2); B.sNb = S(85)
    B.vLane, B.vL16, B.vD = P.vLane, P.vL16, V(25)
    B.vKa, B.vKb, B.vVa, B.vVb = V(10), V(11), V(12), V(13)
    B.vT = [V(2 + i) for i in range(8)]
    B.vL = [[V(16), V(17)], [V(18), V(19)]]
    B.vM = [V(14), V(15)]; B.vChk = V(20)

def ids_pb():
    o = []; a = o.append
    a(salu('s_and_b32', sH, sWG, 7)); a(salu('s_lshr_b32', sTmp[0], sWG, 3)); a(salu('s_and_b32', sTmp[0], sTmp[0], 3))
    a(salu('s_lshl_b32', sTmp[0], sTmp[0], 3)); a(salu('s_add_u32', sH, sH, sTmp[0]))
    a(salu('s_lshr_b32', sG, sWG, 5))
    a(valu('v_lshrrev_b32', vT[0], 6, V(0))); a(valu('v_and_b32', vLane, 63, V(0))); a(nop(0))
    a(valu('v_readfirstlane_b32', sWV, vT[0]))
    return o

def q_xvoff():
    o = []; a = o.append; l = vLane
    a(salu('s_lshl_b32', sTmp[0], sG, 17)); a(salu('s_lshl_b32', sTmp[1], sWV, 15)); a(salu('s_add_u32', sTmp[0], sTmp[0], sTmp[1]))
    a(salu('s_sub_u32', sTmp[2], 15, sG)); a(salu('s_lshl_b32', sTmp[2], sTmp[2], 17)); a(salu('s_add_u32', sTmp[2], sTmp[2], sTmp[1]))
    a(valu('v_lshrrev_b32', vT[0], 3, l)); a(valu('v_lshlrev_b32', vT[0], 10, vT[0]))
    a(valu('v_and_b32', vT[1], 7, l)); a(valu('v_lshrrev_b32', vT[2], 4, l))
    for p_ in range(8):
        a(valu('v_add_u32', vT[3], 4 * (p_ & 1), vT[2])); a(valu('v_xor_b32', vT[3], vT[3], vT[1]))
        a(valu('v_lshl_add_u32', vT[3], vT[3], 4, vT[0]))
        a(valu('v_add_u32', vT[3], hexs((p_ & 3) * 8192 - (p_ & 3) * 1024), vT[3]))
        a(valu('v_add_u32', vXd[p_], sTmp[0] if p_ < 4 else sTmp[2], vT[3]))
    a(salu('s_mov_b32', sXoff, 0))
    return o
def q_wsetup():
    return set_srd(srdW, sPTR['B_w_q'], 4 * MB) + [salu('s_lshl_b32', sWoff, sH, 8), salu('s_lshl_b32', sTmp[2], sWV, 17), salu('s_add_u32', sWoff, sWoff, sTmp[2])] + w_dma_voff(4, 8192)

def mdiag5():
    o = []; a = o.append
    a(valu('v_and_b32', vT[0], 31, vLane)); a(valu('v_lshrrev_b32', vT[1], 5, vLane)); a(valu('v_lshlrev_b32', vT[1], 2, vT[1]))
    a(valu('v_sub_u32', vT[0], vT[0], vT[1])); a(valu('v_mov_b32', vT[2], B.NEG_INF)); a(valu('v_mov_b32', vT[3], 0))
    for r in range(16):
        kk = 8 * (r >> 2) + (r & 3)
        a(vcmp('v_cmp_le_i32', 'vcc', kk, vT[0])); a(nop(1))
        a(valu('v_cndmask_b32', vT[4], vT[2], vT[3])); a(accwr(B.aMd[r], vT[4]))
    return o

sNonce = S(59)
def dbg_srd(): return [salu('s_mov_b32', srdT[0], sDBG[0]), salu('s_and_b32', srdT[1], sDBG[1], '0xffff'), salu('s_mov_b32', srdT[2], 256), salu('s_mov_b32', srdT[3], '0x20000')]
def one_lane_store(lbl, srd, soff, val, vA, vB, cond):
    o = list(cond)
    o += [valu('v_mov_b32', vA, 0), valu('v_mov_b32', vB, val), raw("s_mov_b64 exec, 1", wr=['exec']), nop(1),
          Ins(f"buffer_store_dword {vB}, {vA}, {srd}, {soff} offen sc1", 'raw_vmem', rd=vA.regs() + vB.regs() + srd.regs()),
          raw("s_mov_b64 exec, -1", wr=['exec']), nop(3), label(lbl)]
    return o
def signal(lbl, base, idx_ins, sT, vA, vB):
    return one_lane_store(lbl, srdWS, sT, sNonce, vA, vB, [salu('s_cmp_lg_u32', None, sWV, 0), branch('s_cbranch_scc1', lbl)] + idx_ins + [salu('s_add_u32', sT, sT, hexs(base))])
def nonce_publish(lbl):
    pair = S(56, 2)
    cond = [salu('s_or_b32', sTmp[0], sWG, sWV), salu('s_cmp_lg_u32', None, sTmp[0], 0), branch('s_cbranch_scc1', lbl),
            salu('s_add_u32', pair[0], sWSP[0], hexs(FL_KV)), salu('s_addc_u32', pair[1], sWSP[1], 0),
            raw(f"s_load_dword {sTmp[1]}, {pair}, 0", wr=[str(sTmp[1])]), raw("s_waitcnt lgkmcnt(0)", kind='salu'),
            salu('s_add_u32', sTmp[1], sTmp[1], 1), salu('s_cmp_eq_u32', None, sTmp[1], 0), salu('s_cselect_b32', sTmp[1], 1, sTmp[1]),
            salu('s_mov_b32', sTmp[2], 0)]
    return one_lane_store(lbl, srdT, sTmp[2], sTmp[1], vT[0], vT[1], cond)
def nonce_issue(vN, vA):
    return [valu('v_mov_b32', vA, 0), bload(vN, vA, srdT, 0, 0, op='buffer_load_dword', flags='sc1', tag='NONCE')]
def nonce_check(vN):
    return [waitvm(need=['NONCE']), valu('v_readfirstlane_b32', sNonce, vN), salu('s_cmp_eq_u32', None, sNonce, 0), branch('s_cbranch_scc1', 'L_nspin'), label('L_nspin_ret')]
def nonce_spin(vN, vA):
    return [label('L_nspin'), salu('s_mov_b32', sTmp[3], SPIN_MAX), label('L_nspin_loop'), raw("s_sleep 2"),
            bload(vN, vA, srdT, 0, 0, op='buffer_load_dword', flags='sc1'), waitvm(n=0), valu('v_readfirstlane_b32', sNonce, vN),
            salu('s_cmp_lg_u32', None, sNonce, 0), branch('s_cbranch_scc1', 'L_nspin_ret'),
            salu('s_sub_u32', sTmp[3], sTmp[3], 1), salu('s_cmp_lg_u32', None, sTmp[3], 0), branch('s_cbranch_scc1', 'L_nspin_loop'), branch('s_branch', 'L_nspin_ret')]
def flags_match(vP, sOut, mask_lo, mask_hi=0):
    o = [vcmp('v_cmp_eq_u32', 'vcc', sNonce, vP)]
    o += [Ins(f"s_and_b32 {sOut}, vcc_lo, {hexs(mask_lo)}", 'salu', ['vcc'], [str(sOut), 'scc'])]
    if mask_hi: raise NotImplementedError
    o += [salu('s_cmp_eq_u32', None, sOut, hexs(mask_lo))]
    return o


def touch_snip(st, js):
    srd = S(92, 4); lbl = f'L_tch_{st}'; t0, t1 = S(96), S(97)
    o = [salu('s_sub_u32', t0, sG, js[0]), salu('s_cmp_ge_u32', None, t0, len(js)), branch('s_cbranch_scc1', lbl)]
    o += [salu('s_lshl_b32', t1, sWV, 6), valu('v_add_u32', V(94), t1, vLane), valu('v_lshlrev_b32', V(94), 7, V(94))]
    for name, size in (('B_x', 2 * MB), ('B_w_q', 4 * MB), ('A_x', 2 * MB), ('A_wqkv', 512 * 3072)):
        per = size // 256
        o += [salu('s_mul_i32', t0, sWG, hexs(per)), salu('s_add_u32', srd[0], sPTR[name][0], t0), salu('s_addc_u32', srd[1], sPTR[name][1], 0),
              salu('s_and_b32', srd[1], srd[1], '0xffff'), salu('s_mov_b32', srd[2], hexs(per)), salu('s_mov_b32', srd[3], '0x20000'),
              Ins(f"buffer_load_dword v95, v94, {srd}, 0 offen", 'raw_vmem', rd=['v94'] + srd.regs())]
    o.append(label(lbl))
    return o

def gen(opts=None):
    opts = opts or {}
    prof = bool(int(opts.get('prof', 0))); touch = bool(int(opts.get('touch', 0)))
    kvflags = opts.get('kvflags', 'sc1'); aflags = opts.get('aflags', '')
    P.NOSTORE = False; P.PBMAP = True
    configure_B(); B.set_opts(opts); B._lab[0] = 0
    USE_INV = bool(int(opts.get('inv', 0)))
    B.KVLD = '' if USE_INV else 'sc1'
    MEGA = bool(int(opts.get('mega', 0)))
    if MEGA: aflags = 'sc1'; B.CTXFLAGS = 'sc1'; B.FLAG = P2.FLAG
    else: B.CTXFLAGS = ''; B.FLAG = 131072
    ST = Stamps2(86, prof, 1, V(0))
    K = Pass('K', 0, 4, 'K', C_B); Vp = Pass('V', 8, 4, 'V', None); Q = Pass('Q', 16, 4, 'K', None)
    variants = {'AQ': Pass('AQK', 24, 2, 'K', C_A), 'AK': Pass('AQK', 24, 2, 'K', None), 'AV': Pass('AV', 24, 2, 'V', None)}
    LAST = 31
    sA = [S(92 + k) for k in range(8)]
    vAst = V(22 + 4)
    def apk(b): return V(96 + 8 * b, 8)
    def rowstride(t): return 3072 if t >= 24 else 8192
    def NBof(t): return 2 if t >= 24 else 4
    def xi_of(t): return t if t < 8 else (None if t < 16 else t - 8)
    def xfq(st, tb, ks): return A((((st & 1) * 2 + tb) * 4 + ks) * 4, 4)
    def xf(t, tb, ks): return xfrag(t % 8, tb, ks) if t < 8 or 8 <= t < 16 else xfq(t, tb, ks)
    def x_reads2(t, xi):
        slot = xi % 3; out = []
        for tb in range(2):
            for ks in range(4):
                addr = vXa[ks] if slot < 2 else vXb[ks]
                out.append(ds_read('ds_read_b128', xf(t, tb, ks), addr, (XSLOT[slot] if slot < 2 else 0) + tb * 4096))
        return out
    LATE_ = [bool(int(opts.get('late', 0)))]
    gaps = {}
    def G(t, g):
        n = NBof(t) * 8
        while g >= n: g -= n; t += 1; n = NBof(t) * 8
        return gaps.setdefault((t, g), [])
    def spread(t, ins, g0, g1):
        if not ins: return
        per = (len(ins) + (g1 - g0) - 1) // (g1 - g0)
        for i, x in enumerate(ins): G(t, g0 + i // per).append(x)
    def mfmas(ps, t):
        st = t - ps.t0; out = []
        for nb in range(ps.NB):
            for tb in range(2):
                for ks in range(4):
                    wf = vWf[nb & 1][4 * ks:4 * ks + 4]; x_ = xf(t, tb, ks)
                    c = 0 if (st == 0 and ks == 0) else acc(nb, tb)
                    out.append(mfma32(acc(nb, tb), wf, x_, c) if ps.typ == 'K' else mfma32(acc(nb, tb), x_, wf, c))
        return out
    def a_xsetup():
        return set_srd(srdX, sPTR['A_x'], 2 * MB) + x_dma_voff() + [salu('s_lshl_b32', sXoff, sG, 18), salu('s_lshl_b32', sTmp[0], sWV, 16), salu('s_add_u32', sXoff, sXoff, sTmp[0])]
    def common_fill(ps, t, extra_need=(), nox=False):
        NB = ps.NB; n = NB * 8
        for nb in range(NB):
            if nb + 1 < NB: rs = w_reads(t, nb + 1, NB)
            elif t + 1 <= LAST: rs = w_reads(t + 1, 0, NBof(t + 1))
            else: rs = []
            for i, r in enumerate(rs): G(t, 8 * nb + i).append(r)
        bar = n - 9
        if t + 1 <= LAST: G(t, bar).append(waitvm(need=[('W', t + 1)] + list(extra_need))); G(t, bar).append(barrier())
        wins = []
        if t + 3 <= LAST:
            pre = []
            if t + 3 == 8: pre = switch_w('B_w_uv', [salu('s_sub_u32', sWoff, sWoff, hexs(512 * 8192))])
            if t + 3 == 16: pre = switch_w('B_w_q', [salu('s_sub_u32', sWoff, sWoff, hexs(512 * 8192))])
            if t + 3 == 24:
                pre = switch_w('A_wqkv', [salu('s_lshl_b32', sWoff, sH, 7), salu('s_mul_i32', sTmp[2], sWV, 16 * 3072), salu('s_add_u32', sWoff, sWoff, sTmp[2])])
                pre += w_dma_voff(2, 3072)
            wins = pre + w_dma(t + 3, NBof(t + 3), rowstride(t + 3))
        xin = xi_of(t + 1) if t + 1 <= LAST else None
        if xin is not None:
            g0 = n - 10
            G(t, g0).append(waitvm(need=[('X', xin)]))
            for i, r in enumerate(x_reads2(t + 1, xin)): G(t, g0 + i).append(r)
        xi = xi_of(t); xins = []
        if xi is not None and xi + 3 <= 23:
            pre = []
            if xi + 3 == 8: pre = set_srd(srdX, sPTR['B_x'], 2 * MB) + q_xvoff()
            if xi + 3 == 16: pre = a_xsetup()
            xins = pre + x_dma(xi + 3)
        if NB == 4: spread(t, xins, 8, bar); spread(t, wins, bar + 1, (n - 3) if LATE_[0] else n)
        else: spread(t, wins + xins, bar + 1, n)
    def tagged(lst, tag):
        for x in lst:
            if x.kind == 'vstore': x.tag = tag
        return lst
    def fresh(lst): return [Ins(x.text, x.kind, x.rd, x.wr) for x in lst]

    LATE = bool(int(opts.get('late', 0)))
    for ps in (K, Vp, Q):
        for t in range(ps.t0, ps.t0 + 8): common_fill(ps, t, extra_need=(['VS'] if t == 23 else []))
    spread(7, epi_setup(K), 1, 5)
    for nb in range(4):
        for tb in range(2):
            b = nb * 2 + tb
            ins = cvt_block(K, nb, tb)
            for i, x in enumerate(ins): G(7, 4 * b + 7 + (i * 5) // len(ins)).append(x)
            for i, x in enumerate(store_block(K, nb, tb, kvflags)): G((8 if not LATE else 7) + b, ((9 if b == 0 else 3) + 6 * i) if not LATE else 30 + i).append(x)
    if touch:
        tl = touch_list(); nA = 3
        la = [x for g in tl[:nA] for x in g]; lq = [x for g in tl[nA:] for x in g] if int(opts.get('touchq', 1)) else []
        TOUCH_A, TOUCH_Q = la, lq
    else: TOUCH_A, TOUCH_Q = [], []
    if TOUCH_Q: spread(int(opts.get('tstageq', 9)), TOUCH_Q, 10, 23)
    if TOUCH_A: spread(int(opts.get('tstage', 20)), TOUCH_A, 0, 8)
    spread(15, epi_setup(Vp), 11, 15)
    for nb in range(4):
        for tb in range(2):
            b = nb * 2 + tb
            for i, x in enumerate(cvt_block(Vp, nb, tb)): G(15, 4 * b + 7 + i // 2).append(x)
    T2 = int(opts.get('touch2', 0))
    if T2:
        m = {}
        for j_ in range(8): m.setdefault((j_ * 5) // 8 if T2 == 1 else 1, []).append(j_)
        for st_, js in m.items(): G(st_, 9 if st_ != 1 else 10).extend(touch_snip(st_, js))
    vst = []
    for nb in range(4):
        for tb in range(2): vst += tagged(store_block(Vp, nb, tb, kvflags), 'VS')
    NVS = int(opts.get('vsstages', 6))
    for k, x in enumerate(vst):
        t0_ = 15 if LATE else 16
        tt = t0_ + (k * NVS) // 16
        idx_ = k - (-(-(tt - t0_) * 16 // NVS))
        G(tt, ((8 if tt == 16 else 1) + 5 * idx_) if not LATE else min(29 + idx_, 31)).append(x)
    G(23, 23).extend(signal('L_sig', FL_KV, [salu('s_lshl_b32', sTmp[0], sH, 7), salu('s_lshl_b32', sTmp[1], sG, 2), salu('s_add_u32', sTmp[0], sTmp[0], sTmp[1])], sTmp[0], vT[0], vT[1]))
    G(1, 0).extend(dbg_srd() + nonce_publish('L_npub'))
    G(10, 2).extend(nonce_issue(vT[2], vT[3]))
    G(12, 2).extend(nonce_check(vT[2]))
    ar = w_read_addr(2, dst=[vWa[0], vT[4]])
    spread(23, ar, 9, 16)
    G(23, 22).append(valu('v_mov_b32', vWa[1], vT[4]))
    qcvt = []
    for nb in range(4):
        for u in range(2):
            b = nb * 2 + u; ac = acc(nb, u)
            for i in range(8): qcvt.append((4 * b + 7 + i // 2, valu('v_cvt_pk_bf16_f32', B.aQ(u, 2 * nb + (i >> 2))[i & 3], ac[2 * i], ac[2 * i + 1])))
    for g, x in qcvt:
        if g < 32: G(23, g).append(x)

    pro = ST.stamp('real0', real=True) + ST.stamp('t0')
    a = pro.append
    a(salu('s_cmp_ge_u32', None, sWG, 256)); a(branch('s_cbranch_scc1', 'L_b_end'))
    a(raw("s_load_dwordx16 s[20:35], s[0:1], 0", wr=[f"s{i}" for i in range(20, 36)]))
    a(raw("s_load_dwordx2 s[36:37], s[0:1], 64", wr=['s36', 's37']))
    a(raw("s_load_dwordx2 s[38:39], s[0:1], 88", wr=['s38', 's39']))
    a(raw("s_load_dwordx2 s[100:101], s[0:1], 80", wr=['s100', 's101']))
    pro += ids_pb() + x_dma_voff() + w_dma_voff(4, 8192)
    a(salu('s_lshl_b32', sXlds, sWV, 13)); a(salu('s_lshl_b32', sWlds, sWV, 12))
    a(salu('s_lshl_b32', sXoff, sG, 18)); a(salu('s_lshl_b32', sTmp[0], sWV, 16)); a(salu('s_add_u32', sXoff, sXoff, sTmp[0]))
    a(salu('s_lshl_b32', sWoff, sH, 8)); a(salu('s_lshl_b32', sTmp[0], sWV, 17)); a(salu('s_add_u32', sWoff, sWoff, sTmp[0]))
    a(raw("s_waitcnt lgkmcnt(0)", kind='waitlgkm0'))
    pro += set_srd(srdX, sPTR['B_c_kv'], 2 * MB) + set_srd(srdW, sPTR['B_w_uk'], 4 * MB)
    start = x_dma(0) + w_dma(0, 4, 8192) + x_dma(1) + w_dma(1, 4, 8192) + x_dma(2) + w_dma(2, 4, 8192)
    start += x_read_addr() + w_read_addr(4) + [valu('v_lshlrev_b32', vL16, 4, vLane)] + set_srd(srdWS, sWSP, WS_USED)
    start += [waitvm(need=[('X', 0), ('W', 0)]), barrier()] + x_reads2(0, 0) + w_reads(0, 0, 4)
    MD = mdiag5()
    spread(17, MD[:36], 9, 22); spread(18, MD[36:], 9, 22)
    main = []
    for ps in (K, Vp, Q):
        for t in range(ps.t0, ps.t0 + 8):
            main.append(comment(f"stage {t} ({ps.name})"))
            if t in (0, 1, 4, 8, 9, 12, 16, 17, 18, 20, 22, 23): main += ST.stamp(f"st{t}")
            for g, m in enumerate(mfmas(ps, t)): main.append(m); main += gaps.get((t, g), [])
    main = m0_peephole(main)
    DISP = ST.stamp('disp')
    ASTAMP = {t: ST.stamp(f'a{t}') for t in (26, 28, 30)}
    AEND = ST.stamp('aend')

    def attn_setup():
        su = [salu('s_lshl_b32', B.sTmp[0], sG, 2), salu('s_sub_u32', B.sNb, 64, B.sTmp[0])]
        for srd, reg in ((B.srdK, WS_KB), (B.srdV, WS_VB)):
            su += [salu('s_lshl_b32', B.sTmp[0], sH, 19), salu('s_add_u32', B.sTmp[0], B.sTmp[0], hexs(reg)),
                   salu('s_add_u32', srd[0], sWSP[0], B.sTmp[0]), salu('s_addc_u32', srd[1], sWSP[1], 0), salu('s_and_b32', srd[1], srd[1], '0xffff'),
                   salu('s_lshl_b32', srd[2], B.sNb, 13), salu('s_mov_b32', srd[3], '0x20000')]
        su += [salu('s_mov_b32', B.sMode, 0)] + B.ring_scalars()
        return su
    def pregs(vn): return (V(9), V(10)) if vn == 'TR' else (vT[2], vT[3])
    sPoll = S(75)
    def poll_issue(vn):
        vPoll, vPA = pregs(vn)
        return [salu('s_lshl_b32', sPoll, sH, 7), salu('s_add_u32', sPoll, sPoll, hexs(FL_KV)), valu('v_lshlrev_b32', vPA, 2, vLane),
                bload(vPoll, vPA, srdWS, sPoll, 0, op='buffer_load_dword', flags='sc1', tag='POLL')]
    def poll_check(vn):
        vPoll, vPA = pregs(vn)
        return [waitvm(need=['POLL'])] + flags_match(vPoll, sTmp[1], 0xff) + [branch('s_cbranch_scc0', f'L_spin_{vn}'), label(f'L_spin_ret_{vn}')] + \
               ([salu('s_cmp_lg_u32', None, sWV, 0), branch('s_cbranch_scc1', f'L_noinv_{vn}'), raw("buffer_inv sc1", kind='salu'), label(f'L_noinv_{vn}')] if USE_INV else [])
    def spin(vn):
        vPoll, vPA = pregs(vn)
        return [label(f'L_spin_{vn}'), salu('s_mov_b32', sTmp[3], SPIN_MAX), label(f'L_spin_loop_{vn}'), raw("s_sleep 2"),
                bload(vPoll, vPA, srdWS, sPoll, 0, op='buffer_load_dword', flags='sc1'), waitvm(n=0)] + flags_match(vPoll, sTmp[1], 0xff) + [branch('s_cbranch_scc1', f'L_spin_ret_{vn}'),
                salu('s_sub_u32', sTmp[3], sTmp[3], 1), salu('s_cmp_lg_u32', None, sTmp[3], 0), branch('s_cbranch_scc1', f'L_spin_loop_{vn}'), branch('s_branch', f'L_spin_ret_{vn}')]
    def inv_wait(vn):
        return [salu('s_cmp_lg_u32', None, sWV, 0), branch('s_cbranch_scc1', f'L_nw_{vn}'), raw("s_waitcnt vmcnt(0)", kind='salu'), label(f'L_nw_{vn}')]
    def kdma(b): return B.dma_k(b >= 4, b & 3, ('K', b))
    def vdma(b): return B.dma_v(False, b, ('V', b))
    vD_setup = [salu('s_lshl_b32', B.sTmp[0], sWV, 12), valu('v_add_u32', B.vD, B.sTmp[0], vL16)]

    var_code = {}; spins = []
    for vn, ps in variants.items():
        for k in [k for k in gaps if k[0] >= 24]: del gaps[k]
        for t in range(24, 32): common_fill(ps, t)
        for g, x in qcvt:
            if g >= 32: G(24, g - 32).append(Ins(x.text, x.kind, x.rd, x.wr))
        PI, PC = int(opts.get('pi', 26)), int(opts.get('pc', 28))
        spread(PI, poll_issue(vn), 8, 10)
        spread(25, attn_setup(), 0, 8)
        G(PC, 1).extend(poll_check(vn))
        bl = G(29, 7)
        ib = [i for i, x in enumerate(bl) if x.kind == 'barrier'][0]
        if USE_INV: bl[ib:ib] = inv_wait(vn)
        spins += spin(vn)
        su = epi_setup(ps, S(54, 2))
        spread(31, su, 0, 4)
        offs = []
        base = S(54, 2)
        for nb in range(2):
            for tb in range(2):
                b = nb * 2 + tb
                for hf in range(2):
                    k = b * 2 + hf
                    add = (2 * nb + hf) * 65536 if ps.name == 'AQK' else (2 * nb) * 65536 + hf * 512
                    offs.append(salu('s_add_u32', sA[k], base[tb], hexs(add)))
        spread(31, offs, 4, 8)
        tail = []
        for nb in range(2):
            for tb in range(2):
                b = nb * 2 + tb
                for i, x in enumerate(cvt_block(ps, nb, tb, apk(b))):
                    g = 4 * b + 8 + i // 5
                    if g < 16 and nb == 0: G(31, g).append(x)
                    else: tail.append(x)
        if ps.name == 'AV':
            l = vLane
            tail += [valu('v_bfe_u32', vT[0], l, 4, 1), valu('v_lshlrev_b32', vT[0], 16, vT[0]), valu('v_lshrrev_b32', vT[1], 5, l),
                     valu('v_lshl_add_u32', vT[0], vT[1], 8, vT[0]), valu('v_and_b32', vT[1], 15, l), valu('v_lshl_add_u32', vAst, vT[1], 4, vT[0])]
        else:
            tail.append(valu('v_mov_b32', vAst, vL16))
        code = [label(f"L_proj_{vn}")]
        kA = []
        for b in (0, 2): kA += kdma(b)
        kB = kdma(4)
        G(29, 8).extend(fresh(vD_setup))
        post29, post30 = kA, kB
        for t in range(24, 32):
            code.append(comment(f"stage {t} ({vn})"))
            code += fresh(ASTAMP.get(t, []))
            ms = mfmas(ps, t)
            extra = post29 if t == 29 else (post30 if t == 30 else [])
            for g, m in enumerate(ms):
                code.append(m); code += gaps.get((t, g), [])
                if extra and g >= 9:
                    take = 3 if (g < 15) else len(extra)
                    code += extra[:take]; extra = extra[take:]
        vv = []
        for b in (0, 2): vv += vdma(b)
        var_code[vn] = m0_peephole(code) + fresh(AEND) + [waitlgkm0(), barrier()] + vv + tail + [branch('s_branch', 'L_b_start2')]
    tr = [label("L_proj_TR")] + fresh([x for g, x in qcvt if g >= 32])
    tr += poll_issue('TR') + attn_setup()
    trj = transpose_job(aflags, S(54, 2))
    for x in trj:
        if x.kind == 'branch' and 'L_proj_fin' in x.text: x.text = x.text.replace('L_proj_fin', 'L_TR_done')
    tr += trj + [label('L_TR_done')]
    for t in (26, 28, 30): tr += fresh(ASTAMP[t])
    tr += poll_check('TR') + [raw("s_waitcnt vmcnt(0)", kind='waitvm0')] + [waitlgkm0(), barrier()]
    spins += spin('TR')
    tr += fresh(vD_setup)
    for b in (0, 2, 4): tr += kdma(b)
    for b in (0, 2): tr += vdma(b)
    tr += [salu('s_mov_b32', sA[k], '0xf0000000') for k in range(8)] + [valu('v_mov_b32', vAst, vL16)] + fresh(AEND) + [branch('s_branch', 'L_b_start2')]
    for x in tr:
        if x.kind == 'waitvm0': x.kind = 'waitvm'; x.fixed = 0; x.text = 'WAITVM'
    disp = DISP + [salu('s_cmp_ge_u32', None, sH, 24), branch('s_cbranch_scc1', 'L_proj_TR'),
            salu('s_cmp_ge_u32', None, sH, 16), branch('s_cbranch_scc1', 'L_proj_AV'),
            salu('s_cmp_ge_u32', None, sH, 8), branch('s_cbranch_scc1', 'L_proj_AK')]
    head = pro + start + main + disp
    def astores(): return tagged([bstore(apk(k >> 1)[4 * (k & 1):4 * (k & 1) + 4], vAst, srdWS, sA[k], 0, flags=aflags) for k in range(8)], 'AS')
    B.FIRST_BODY_EXTRA = astores
    p2 = None
    if MEGA:
        def drain_hook(name):
            sig = signal(f'L_sigA_{name}', FL_A, [salu('s_lshl_b32', B.sTmp[4], sH, 7), salu('s_lshl_b32', B.sTmp[5], sG, 2), salu('s_add_u32', B.sTmp[4], B.sTmp[4], B.sTmp[5])],
                         B.sTmp[4], B.vT[0], B.vT[1])
            return (['AS'], sig)
        B.DRAIN_HOOK = drain_hook
        vR, vRA = V(22), V(24)
        def last_hook(name): return P2.a_ready_poll_issue(vR, vRA, sPoll)
        B.LAST_HOOK = last_hook
        def a_check(): return P2.match(vR, P2.sTmp[1], 0x1ffff, 0)
        def tail_hook():
            setup, d = P2.a_prefetch(B.vL16)
            post = [waitvm(need=['APOLL'])] + a_check() + [branch('s_cbranch_scc0', 'L_p_spin_A'), label('L_p_spinr_A')] + setup
            h = len(d) // 2 + 1
            return post, d[:h], d[h:]
        B.TAIL_HOOK = tail_hook
        def safe_pre():
            o_ = []
            for srd, reg in ((B.srdK, WS_KB), (B.srdV, WS_VB)):
                o_ += [salu('s_lshl_b32', B.sTmp[0], sH, 19), salu('s_add_u32', B.sTmp[0], B.sTmp[0], hexs(reg)),
                       salu('s_add_u32', srd[0], sWSP[0], B.sTmp[0]), salu('s_addc_u32', srd[1], sWSP[1], 0), salu('s_and_b32', srd[1], srd[1], '0xffff'),
                       salu('s_lshl_b32', srd[2], B.sNb, 13), salu('s_mov_b32', srd[3], '0x20000')]
            return o_
        B.SAFE_PRE = safe_pre
        def fin_override():
            return [label('L_b_fin')] + B.stampn(ST, 'battn_end') + [branch('s_branch', 'L_p_start')]
        B.FIN_OVERRIDE = fin_override
    acode, mk = B.attn_parts(ST, prof)
    B.FIRST_BODY_EXTRA = None; B.DRAIN_HOOK = None; B.E1_PRE = None; B.FIN_OVERRIDE = None; B.LAST_HOOK = None; B.TAIL_HOOK = None; B.SAFE_PRE = None
    if MEGA:
        P2.DBGQ = bool(int(opts.get('dbgq', 0))); P2.JB0 = int(opts.get('jb', 20)); P2.AOUT = bool(int(opts.get('aout', 0)))
        p2 = P2.build(ST, prof, B.stampn)
        p2fin = ([waitvm(n=0)] if prof else []) + B.stampn(ST, 'end') + B.stampn(ST, 'realend', True) + ST.flush(sWG, sWV, sWSP, B.srdK, P2.vT[0], P2.vT[1], P2.sTmp[0]) + [label('L_b_end')]
        spins += P2.spin('A', [bload(vR, vRA, srdWS, sPoll, 0, op='buffer_load_dword', flags='sc1')], [a_check()])
        spins += p2['spins']
    pros = [head + var_code[vn] for vn in ('AQ', 'AK', 'AV')] + [head + tr]
    traces = mk(pros, None if not MEGA else [p2['trace_main'] + p2fin, p2['trace_safe'] + p2fin])
    spins += nonce_spin(vT[2], vT[3])
    traces.append(T(spins))
    resolve_waits(traces)
    fix_hazards(traces, name='pb', verbose=bool(int(opts.get('verbose', 0))))
    code = head + var_code['AQ'] + var_code['AK'] + var_code['AV'] + tr + spins + acode
    if MEGA: code += p2['code'] + p2fin
    global LAST_STAMPS
    LAST_STAMPS = list(getattr(ST, 'names', []))
    return render(code)

if __name__ == '__main__':
    t = gen({'verbose': 0, 'prof': '1'}); print(len(t.splitlines())); print(LAST_STAMPS)
```

```python
from common import *
from k_aattn import (KBASE, VBASE, ONES, FLAG, NEG_INF, C_OFF, NS, vLane, vL16, vK, vVa, vVinc, vT, vM, vChk, vQ, vKf, vVf, vO, vS, vP, vC, sm_ops)
PFX = 'L_p'
LD = 'sc1'
sWG = S(2); srdWS = S(16, 4); sWSP = S(38, 2); sH = S(41); sQG = S(40); sWV = S(42); sNonce = S(59)
srdK, srdV = S(60, 4), S(64, 4)
sOff, sQoff, sOoff, sTT, sNT = S(68), S(69), S(70), S(71), S(72)
sX = [S(83), S(84)]; sW = [S(73), S(85)]
sCnt, sMode = S(74), S(82)
sTmp = S(76, 6)
sOUT = S(46, 2); srdO = S(48, 4)
sP1, sP2 = S(52), S(53)
vP1, vP2, vPA = V(18), V(19), V(52)
SPIN_MAX = 400000
def buf(i): return A(64 + 16 * i, 16)
def accB(nb, tb): return A((nb * 2 + tb) * 16, 16)
_lab = [0]
def newlabel(p):
    _lab[0] += 1
    return f"{PFX}_{p}_{_lab[0]}"

def b_loads(i, q):
    b = buf(i)
    return [bload(b[0:4], vL16, srdWS, sX[0], q * 1024, flags=LD), bload(b[8:12], vL16, srdWS, sW[0], q * 1024, flags=LD),
            bload(b[4:8], vL16, srdWS, sX[1], q * 1024, flags=LD), bload(b[12:16], vL16, srdWS, sW[1], q * 1024, flags=LD)]
def b_adv(): return [salu('s_add_u32', x, x, 4096) for x in sX + sW]
def b_mm(i, first):
    b = buf(i); o = []
    for nb in range(2):
        for tb in range(2):
            o.append(mfma32(accB(nb, tb), b[8 + 4 * nb:12 + 4 * nb], b[4 * tb:4 * tb + 4], 0 if first else accB(nb, tb)))
    return o

def iteration(it, qk=True, sm=True, pv=True, first_pv=False, next_k=True, next_v=True, pre_read=(), bks=(), bfirst=False, reload=True, extra=()):
    par = it & 1
    aa = []
    if qk:
        for u in range(2): aa.append(mfma32(vS(par, u), vKf[par], vQ[u], vC(u)))
    if pv:
        for ks in range(2):
            for u in range(2):
                c = 0 if (first_pv and ks == 0) else vO(u)
                aa.append(mfma32(vO(u), vVf[par][ks], vP(par, u)[4 * ks:4 * ks + 4], c))
    groups = [b_mm(k, bfirst and n == 0) for n, k in enumerate(bks)]
    bm = [m for g in groups for m in g]
    seq = []; ia = ib = 0; tot = len(aa) + len(bm)
    for s_ in range(tot):
        if ib < len(bm) and (ia >= len(aa) or ib * len(aa) <= ia * len(bm) - (0 if ia else 1) or (ia > 0 and (ib + 0.5) / len(bm) <= (ia) / max(len(aa), 1))):
            seq.append(bm[ib]); ib += 1
        elif ia < len(aa): seq.append(aa[ia]); ia += 1
        else: seq.append(bm[ib]); ib += 1
    rd = list(pre_read)
    if next_k: rd.append(ds_read('ds_read_b128', vKf[par ^ 1], vK, (it + 1) * 1024))
    if next_v:
        for ks in range(2): rd.append(ds_read('ds_read_b128', vVf[par ^ 1][ks], vVa, it * 1024 + ks * 512))
    smo = []
    if sm:
        for u in range(2): smo += sm_ops(par ^ 1, u)
    pend = {}
    for n, k in enumerate(bks):
        if (reload[n] if isinstance(reload, (list, tuple)) else reload):
            last = max(i for i, m in enumerate(seq) if m in groups[n])
            pend.setdefault(last, []).extend(b_loads(k, k & 3) + (b_adv() if k & 3 == 3 else []))
    n = len(seq); totv = len(smo)
    if n == 0:
        assert not extra
        return rd + smo
    out = []; k = 0; queue = []
    ex = list(extra)
    for g in range(n):
        out.append(seq[g])
        if g == 0: out += rd
        queue += pend.get(g, [])
        rem = n - g
        take = min(len(queue), max(1, (len(queue) + rem - 1) // rem)) if queue else 0
        out += queue[:take]; queue = queue[take:]
        if ex:
            tk = (len(ex) + rem - 1) // rem
            for e in ex[:tk]:
                if isinstance(e, list): out += e
                else: out.append(e)
            ex = ex[tk:]
        upto = int(round(totv * (g + 1) / n))
        while k < upto: out.append(smo[k]); k += 1
    for e in ex:
        if isinstance(e, list): queue += e
        else: queue.append(e)
    return out + queue

def abody(first=False, bar=None, bks=None, bfirst=False, reload=True, extras=None, pre1=None):
    o = []
    for it in range(4):
        pre = []
        if bar is not None and it == 3: pre = [waitvm(need=bar), barrier()]
        if pre1 is not None and it == 1: pre = list(pre1)
        rl = reload[it] if isinstance(reload, (list, tuple)) else reload
        o += iteration(it, qk=True, sm=not (first and it == 0), pv=not (first and it < 2), first_pv=(first and it == 2),
                       next_v=not (first and it == 0), pre_read=pre, bks=(bks[it] if bks else ()),
                       bfirst=(bfirst and it == 0), reload=rl, extra=(extras[it] if extras and extras[it] else ()))
    o += [valu('v_add_u32', vK, 4096, vK), valu('v_add_u32', vVa, vVa, vVinc)]
    return o

def a_dma_k(g, vl16):
    return [salu('s_add_u32', 'm0', sOff, hexs(KBASE))] + [dma(vl16, srdK, sOff, q * 1024, tag=('AK', g), flags=LD) for q in range(4)] + [salu('s_add_u32', sOff, sOff, 16384)]
def a_dma_v(g, vl16=None, adv=True):
    return [salu('s_add_u32', 'm0', sOff, hexs(VBASE))] + [dma(vl16 or vL16, srdV, sOff, q * 1024, tag=('AV', g), flags=LD) for q in range(4)] + ([salu('s_add_u32', sOff, sOff, 16384)] if adv else [])
aQpre = A(144, 8)
def a_srd(srd, reg):
    return [salu('s_lshl_b32', sTmp[0], sH, 16), salu('s_add_u32', sTmp[0], sTmp[0], hexs(reg)),
            salu('s_add_u32', srd[0], sWSP[0], sTmp[0]), salu('s_addc_u32', srd[1], sWSP[1], 0), salu('s_and_b32', srd[1], srd[1], '0xffff'),
            salu('s_mov_b32', srd[2], hexs(65536)), salu('s_mov_b32', srd[3], '0x20000')]
def a_prefetch(vl16):
    o = a_srd(srdK, WS_KA); a = o.append
    a(salu('s_lshl_b32', sOff, sWV, 12))
    a(salu('s_lshl_b32', sTmp[1], sQG, 3)); a(salu('s_lshl_b32', sTmp[2], sWV, 1)); a(salu('s_add_u32', sTmp[1], sTmp[1], sTmp[2]))
    a(salu('s_lshl_b32', sTmp[0], sH, 6)); a(salu('s_add_u32', sTmp[0], sTmp[0], sTmp[1]))
    a(salu('s_lshl_b32', sTmp[0], sTmp[0], 10)); a(salu('s_add_u32', sQoff, sTmp[0], hexs(WS_QA)))
    o += a_srd(srdV, WS_VA)
    d = a_dma_k(0, vl16) + [bload(aQpre[4 * u:4 * u + 4], vl16, srdWS, sQoff, u * 1024, flags=LD) for u in range(2)]
    d += [salu('s_sub_u32', sOff, sOff, 16384)] + a_dma_v(0, vl16, False) + [salu('s_add_u32', sOff, sOff, 16384)]
    for g in range(1, 4): d += a_dma_k(g, vl16)
    return o, d

def a_sample_and_init(lbl_skip):
    o = []; a = o.append
    a(salu('s_cmp_lg_u32', None, sMode, 0)); a(branch('s_cbranch_scc1', lbl_skip))
    for b in range(NS): a(ds_read('ds_read_b128', vKf[b & 1], vL16, KBASE + b * 1024))
    for b in range(NS):
        for u in range(2): a(mfma32(vS(b & 1, u), vKf[b & 1], vQ[u], 0))
    a(nop(7)); a(nop(3))
    for u in range(2):
        s_ = vS(0, u); s2 = vS(1, u)
        a(valu('v_max3_f32', vM[u], s_[0], s_[1], s_[2]))
        for r in range(3, 15, 2): a(valu('v_max3_f32', vM[u], vM[u], s_[r], s_[r + 1]))
        a(valu('v_max3_f32', vM[u], vM[u], s_[15], s2[0]))
        for r in range(1, 15, 2): a(valu('v_max3_f32', vM[u], vM[u], s2[r], s2[r + 1]))
        a(valu('v_max_f32', vM[u], vM[u], s2[15]))
        a(valu('v_mov_b32', vT[u], vM[u])); a(nop(1))
        a(valu('v_permlane32_swap_b32', vT[u], vM[u]))
        a(valu('v_max_f32', vM[u], vM[u], vT[u]))
        a(valu('v_add_f32', vM[u], hexs(f2u(C_OFF)), vM[u]))
    a(label(lbl_skip))
    for u in range(2):
        for r in range(16): a(valu('v_sub_f32', vC(u)[r], 0, vM[u]))
    a(valu('v_mov_b32', vK, vL16)); a(valu('v_mov_b32', vVa, V(17))); a(valu('v_mov_b32', vChk, 0))
    a(ds_read('ds_read_b128', vKf[0], vK, KBASE))
    return o

def a_epilogue(check, flags='sc1'):
    o = []; a = o.append
    a(valu('v_mov_b32', vT[4], 0)); a(valu('v_mov_b32', vT[2], hexs(f2u(2.0 ** 100)))); a(valu('v_mov_b32', vT[3], '0x7fc00000'))
    for u in range(2):
        O = vO(u); pk = vP(0, u)
        if check: a(vcmp('v_cmp_nle_f32', 'vcc', O[8], vT[2]))
        a(valu('v_rcp_f32', vT[1], O[8])); a(nop(0))
        if check: a(valu('v_cndmask_b32', vChk, vChk, vT[3]))
        for r in range(8): a(valu('v_mul_f32', O[r], O[r], vT[1]))
        for r in range(4): a(valu('v_cvt_pk_bf16_f32', pk[r], O[2 * r], O[2 * r + 1]))
        if check:
            for r in range(4): a(valu('v_dot2_f32_bf16', vChk, pk[r], vT[4], vChk))
        a(bstore(pk[0:4], vL16, srdWS, sOoff, 0, flags=(flags if AOUT else ''), tag='CA'))
        if u == 0: a(salu('s_add_u32', sOoff, sOoff, 32768))
    a(salu('s_sub_u32', sOoff, sOoff, 32768))
    return o

def reduce_store(colbase=512, bar_need=(), post_bar=(), pre=()):
    vSum = V(32, 16); vIn = V(48, 16); vPk = V(64, 8); vOo = V(3)
    o = list(pre); a = o.append
    a(salu('s_lshl_b32', sTmp[0], sWV, 14)); a(valu('v_add_u32', vT[0], sTmp[0], vL16))
    for bl in range(4):
        for q in range(4): a(ds_write('ds_write_b128', vT[0], accB(bl >> 1, bl & 1)[4 * q:4 * q + 4], (bl * 4 + q) * 1024))
    a(valu('v_and_b32', vT[2], 31, vLane)); a(valu('v_lshlrev_b32', vT[2], 11, vT[2]))
    a(valu('v_lshrrev_b32', vT[3], 5, vLane)); a(valu('v_lshl_add_u32', vOo, vT[3], 4, vT[2]))
    if bar_need: a(waitvm(need=list(bar_need)))
    a(waitlgkm0()); a(barrier())
    o += list(post_bar)
    a(salu('s_lshl_b32', sTmp[0], sWV, 12)); a(valu('v_add_u32', vT[1], sTmp[0], vL16))
    for q in range(4): a(ds_read('ds_read_b128', vSum[4 * q:4 * q + 4], vT[1], q * 1024))
    for src in range(1, 4):
        for q in range(4): a(ds_read('ds_read_b128', vIn[4 * q:4 * q + 4], vT[1], src * 16384 + q * 1024))
        for r in range(16): a(valu('v_add_f32', vSum[r], vSum[r], vIn[r]))
    for r in range(8): a(valu('v_cvt_pk_bf16_f32', vPk[r], vSum[2 * r], vSum[2 * r + 1]))
    a(nop(1))
    a(valu('v_permlane32_swap_b32', vPk[0], vPk[2])); a(valu('v_permlane32_swap_b32', vPk[1], vPk[3]))
    a(valu('v_permlane32_swap_b32', vPk[4], vPk[6])); a(valu('v_permlane32_swap_b32', vPk[5], vPk[7]))
    a(salu('s_lshl_b32', sTmp[0], sTT, 6)); a(salu('s_and_b32', sTmp[1], sWV, 1)); a(salu('s_lshl_b32', sTmp[1], sTmp[1], 5))
    a(salu('s_add_u32', sTmp[0], sTmp[0], sTmp[1])); a(salu('s_lshl_b32', sTmp[0], sTmp[0], 11))
    a(salu('s_lshl_b32', sTmp[1], sNT, 7)); a(salu('s_add_u32', sTmp[0], sTmp[0], sTmp[1]))
    a(salu('s_lshr_b32', sTmp[1], sWV, 1)); a(salu('s_lshl_b32', sTmp[1], sTmp[1], 6)); a(salu('s_add_u32', sTmp[0], sTmp[0], sTmp[1]))
    if colbase: a(salu('s_add_u32', sTmp[0], sTmp[0], colbase * 2))
    a(bstore(vPk[0:4], vOo, srdO, sTmp[0], 0)); a(bstore(vPk[4:8], vOo, srdO, sTmp[0], 32))
    return o

def aout():
    pre = []; a = pre.append
    a(salu('s_lshl_b32', sTmp[0], sWV, 13))
    a(salu('s_lshl_b32', sTmp[1], sTT, 16)); a(salu('s_add_u32', sTmp[1], sTmp[1], sTmp[0]))
    a(salu('s_add_u32', sX[0], sTmp[1], hexs(WS_CTXA))); a(salu('s_add_u32', sX[1], sX[0], 32768))
    a(salu('s_lshl_b32', sTmp[1], sNT, 16)); a(salu('s_add_u32', sTmp[1], sTmp[1], sTmp[0]))
    a(salu('s_add_u32', sW[0], sTmp[1], hexs(WS_WOA))); a(salu('s_add_u32', sW[1], sW[0], 32768))
    wl = []
    for i in range(8):
        b = buf(i)
        wl += [bload(b[8:12], vL16, srdWS, sW[0], (i & 3) * 1024, flags=LD), bload(b[12:16], vL16, srdWS, sW[1], (i & 3) * 1024, flags=LD)]
        if i == 3: wl += [salu('s_add_u32', sW[0], sW[0], 4096), salu('s_add_u32', sW[1], sW[1], 4096)]
    xl = []
    for i in range(8):
        b = buf(i)
        xl += [bload(b[0:4], vL16, srdWS, sX[0], (i & 3) * 1024, flags=LD), bload(b[4:8], vL16, srdWS, sX[1], (i & 3) * 1024, flags=LD)]
        if i == 3: xl += [salu('s_add_u32', sX[0], sX[0], 4096), salu('s_add_u32', sX[1], sX[1], 4096)]
    mmx = []
    for i in range(8): mmx += b_mm(i, i == 0)
    return pre + wl, xl, mmx

def match(vP, sOut, lo, hi):
    o = [vcmp('v_cmp_eq_u32', 'vcc', sNonce, vP),
         Ins(f"s_and_b32 {sOut}, vcc_lo, {hexs(lo)}", 'salu', ['vcc'], [str(sOut), 'scc'])]
    if hi:
        o += [Ins(f"s_and_b32 {sTmp[5]}, vcc_hi, {hexs(hi)}", 'salu', ['vcc'], [str(sTmp[5]), 'scc']),
              salu('s_and_b32', sOut, sOut, sTmp[5])]
        assert lo == hi
    o += [salu('s_cmp_eq_u32', None, sOut, hexs(lo))]
    return o
def one_lane_store(lbl, soff, vA, vB, cond):
    o = list(cond)
    o += [valu('v_mov_b32', vA, 0), valu('v_mov_b32', vB, sNonce), raw("s_mov_b64 exec, 1", wr=['exec']), nop(1),
          Ins(f"buffer_store_dword {vB}, {vA}, {srdWS}, {soff} offen sc1", 'raw_vmem', rd=vA.regs() + vB.regs() + srdWS.regs()),
          raw("s_mov_b64 exec, -1", wr=['exec']), nop(3), label(lbl)]
    return o
def spin(name, loads, checks):
    o = [label(f'{PFX}_spin_{name}'), salu('s_mov_b32', sTmp[3], SPIN_MAX), label(f'{PFX}_spinl_{name}'), raw("s_sleep 2")]
    o += loads + [waitvm(n=0)]
    for c in checks: o += c + [branch('s_cbranch_scc0', f'{PFX}_spinc_{name}')]
    o += [branch('s_branch', f'{PFX}_spinr_{name}'), label(f'{PFX}_spinc_{name}'),
          salu('s_sub_u32', sTmp[3], sTmp[3], 1), salu('s_cmp_lg_u32', None, sTmp[3], 0), branch('s_cbranch_scc1', f'{PFX}_spinl_{name}'), branch('s_branch', f'{PFX}_spinr_{name}')]
    return o

def a_ready_poll_issue(vR, vA, sBase):
    o = []; a = o.append
    a(salu('s_lshr_b32', sBase, sH, 2)); a(salu('s_lshl_b32', sBase, sBase, 7)); a(salu('s_add_u32', sBase, sBase, hexs(FL_A)))
    lane = V(27)
    a(valu('v_and_b32', vA, 7, lane)); a(valu('v_lshlrev_b32', vA, 2, vA))
    a(valu('v_lshrrev_b32', vR, 3, lane)); a(valu('v_add_u32', vR, 1, vR)); a(valu('v_lshlrev_b32', vR, 10, vR))
    a(valu('v_add_u32', vA, vA, vR))
    a(salu('s_lshl_b32', sTmp[5], sQG, 2)); a(vcmp('v_cmp_eq_u32', 'vcc', 16, lane)); a(valu('v_mov_b32', vR, sTmp[5]))
    a(valu('v_cndmask_b32', vA, vA, vR))
    a(bload(vR, vA, srdWS, sBase, 0, op='buffer_load_dword', flags='sc1', tag='APOLL'))
    return o

DBGQ = False
AOUT = False
JB0 = 20
def dbg_dump(slot):
    o = [salu('s_lshl_b32', sTmp[0], sWG, 2), salu('s_add_u32', sTmp[0], sTmp[0], sWV), salu('s_lshl_b32', sTmp[0], sTmp[0], 12),
         salu('s_add_u32', sTmp[0], sTmp[0], hexs(16 * MB * 0 + WS_QB + slot * 2048))]
    if slot == 0:
        o += [bstore(V(240, 4), vL16, srdWS, sTmp[0], 0), bstore(V(252, 4), vL16, srdWS, sTmp[0], 1024)]
    else:
        o += [bstore(V(240, 4), vL16, srdWS, sTmp[0], 0), bstore(V(252, 4), vL16, srdWS, sTmp[0], 1024)]
    return o

def build(ST, prof, stampn):
    _lab[0] = 0
    o = [label(PFX + '_start')]; a = o.append
    a(raw("s_load_dwordx2 s[46:47], s[0:1], 72", wr=['s46', 's47']))
    a(valu('v_mov_b32', vLane, V(27))); a(valu('v_lshlrev_b32', vL16, 4, vLane))
    a(salu('s_lshl_b32', sOff, sWV, 12)); a(salu('s_add_u32', sOff, sOff, 16384))
    o += a_dma_v(1)
    a(salu('s_lshl_b32', sTmp[1], sQG, 3)); a(salu('s_lshl_b32', sTmp[2], sWV, 1)); a(salu('s_add_u32', sTmp[1], sTmp[1], sTmp[2]))
    a(salu('s_lshl_b32', sTmp[1], sTmp[1], 15)); a(salu('s_lshl_b32', sTmp[2], sH, 10)); a(salu('s_add_u32', sTmp[1], sTmp[1], sTmp[2]))
    a(salu('s_add_u32', sOoff, sTmp[1], hexs(WS_CTXA)))
    for r in range(8): a(accrd(V(vQ[0].i + r), aQpre[r]))
    a(salu('s_and_b32', sTT, sWG, 7)); a(salu('s_lshl_b32', sTT, sTT, 2)); a(salu('s_lshr_b32', sTmp[0], sWG, 3)); a(salu('s_and_b32', sTmp[0], sTmp[0], 3))
    a(salu('s_add_u32', sTT, sTT, sTmp[0])); a(salu('s_lshr_b32', sNT, sWG, 5))
    a(salu('s_lshl_b32', sTmp[0], sWV, 16))
    a(salu('s_lshl_b32', sTmp[1], sTT, 19)); a(salu('s_add_u32', sTmp[1], sTmp[1], sTmp[0]))
    a(salu('s_add_u32', sX[0], sTmp[1], hexs(WS_CTXB))); a(salu('s_add_u32', sX[1], sX[0], hexs(256 * 1024)))
    a(salu('s_lshl_b32', sTmp[1], sNT, 19)); a(salu('s_add_u32', sTmp[1], sTmp[1], sTmp[0]))
    a(salu('s_add_u32', sW[0], sTmp[1], hexs(WS_WOB))); a(salu('s_add_u32', sW[1], sW[0], hexs(256 * 1024)))
    for r in range(4): a(valu('v_mov_b32', vT[r], '0x3f803f80'))
    a(salu('s_lshl_b32', sTmp[0], sWV, 10)); a(salu('s_add_u32', sTmp[0], sTmp[0], hexs(ONES)))
    a(valu('v_add_u32', vT[4], sTmp[0], vL16))
    a(ds_write('ds_write_b128', vT[4], V(vT[0].i, 4)))
    a(valu('v_lshrrev_b32', vT[0], 5, vLane)); a(valu('v_lshlrev_b32', vT[0], 8, vT[0]))
    a(valu('v_and_b32', vT[1], 15, vLane)); a(valu('v_lshl_add_u32', vT[0], vT[1], 4, vT[0]))
    a(valu('v_add_u32', vT[0], hexs(VBASE - 1024), vT[0]))
    a(valu('v_add_u32', vT[2], 4, vT[1])); a(valu('v_bfe_u32', vT[2], vT[2], 3, 1))
    a(valu('v_lshlrev_b32', vT[2], 6, vT[2])); a(valu('v_add_u32', vT[2], hexs(ONES), vT[2]))
    a(valu('v_and_b32', vT[3], 16, vLane))
    a(vcmp('v_cmp_eq_u32', 'vcc', 0, vT[3]))
    a(valu('v_mov_b32', vT[4], 4096)); a(valu('v_mov_b32', vT[5], 0))
    a(valu('v_cndmask_b32', V(17), vT[2], vT[0]))
    a(valu('v_cndmask_b32', vVinc, vT[5], vT[4]))
    a(salu('s_mov_b32', sMode, 0))
    a(waitvm(need=[('AK', 3), ('AV', 0)])); a(waitlgkm0()); a(barrier())
    a(valu('v_mov_b32', vT[5], 0)); a(valu('v_mov_b32', vT[6], hexs(FLAG))); a(ds_write('ds_write_b32', vT[6], vT[5]))
    o += set_srd(srdO, sOUT, 2048 * 1024 * 2)
    o += a_sample_and_init(newlabel('m'))
    if DBGQ:
        o += dbg_dump(0)
    pro = o + stampn(ST, 'p2main')
    pi = [salu('s_lshr_b32', sP1, sTT, 1), salu('s_sub_u32', sTmp[0], 15, sP1), salu('s_min_u32', sP1, sP1, sTmp[0]),
          salu('s_lshl_b32', sP1, sP1, 7), salu('s_add_u32', sP1, sP1, hexs(FL_B)), salu('s_mov_b32', sP2, hexs(FL_A + 24 * 128)),
          valu('v_lshlrev_b32', vPA, 2, vLane)]
    ld1 = lambda tag=None: bload(vP1, vPA, srdWS, sP1, 0, op='buffer_load_dword', flags='sc1', tag=tag)
    pa2 = [valu('v_lshrrev_b32', vP2, 3, vLane), valu('v_lshlrev_b32', vP2, 7, vP2), valu('v_and_b32', V(53), 7, vLane), valu('v_lshl_add_u32', V(53), V(53), 2, vP2)]
    ld2 = lambda tag=None: bload(vP2, V(53), srdWS, sP2, 0, op='buffer_load_dword', flags='sc1', tag=tag)
    poll_issue = pi + [ld1('BP1')] + pa2 + [ld2('BP2')]
    c1 = lambda: match(vP1, sTmp[1], 0xffffffff, 0)
    c2 = lambda: match(vP2, sTmp[1], 0xffffffff, 0xffffffff)
    poll_check = [waitvm(need=['BP1', 'BP2'])] + c1() + [branch('s_cbranch_scc0', f'{PFX}_spin_B')] + c2() + [branch('s_cbranch_scc0', f'{PFX}_spin_B'), label(f'{PFX}_spinr_B')]
    spins = spin('B', [ld1(), ld2()], [c1(), c2()])
    g2 = a_dma_v(2); g3 = a_dma_v(3)
    sigB = one_lane_store(PFX + '_sigB', sTmp[0], vT[0], vT[1], [salu('s_cmp_lg_u32', None, sWV, 0), branch('s_cbranch_scc1', PFX + '_sigB'),
              salu('s_lshl_b32', sTmp[0], sQG, 7), salu('s_lshl_b32', sTmp[1], sH, 2), salu('s_add_u32', sTmp[0], sTmp[0], sTmp[1]), salu('s_add_u32', sTmp[0], sTmp[0], hexs(FL_B))])
    binit = []
    for i in range(8):
        binit += b_loads(i, i & 3)
        if i & 3 == 3: binit += b_adv()
    n4 = (len(binit) + 3) // 4
    JB = JB0
    nit = 64 - JB
    sched = {}
    ks = 0
    for j in range(JB, 64):
        n = (64 * (j - JB + 1)) // nit - (64 * (j - JB)) // nit
        sched[j] = list(range(ks, ks + n)); ks += n
    assert ks == 64
    def body_at(j0):
        first = j0 == 0
        o = []
        for it in range(4):
            j = j0 + it
            pre = []; ex = None
            if j == 3: pre = [waitvm(need=['CS', ('AV', 1)]), barrier()] + sigB
            if j == 15: pre = [waitvm(need=[('AV', 3)]), barrier()]
            if j == 1: ex = g2
            if j == 2: ex = g3
            if j == JB - 10: ex = poll_issue[:8]
            if j == JB - 9: ex = poll_issue[8:]
            if j == JB - 5: ex = [poll_check]
            if JB - 4 <= j < JB: ex = binit[(j - JB + 4) * n4:(j - JB + 5) * n4]
            kk = sched.get(j, [])
            o += iteration(it, qk=True, sm=not (first and it == 0), pv=not (first and it < 2), first_pv=(first and it == 2),
                           next_v=not (first and it == 0), pre_read=pre, bks=[k & 7 for k in kk], bfirst=(kk[:1] == [0]),
                           reload=[k + 8 < 64 for k in kk], extra=(ex or ()))
        o += [valu('v_add_u32', vK, 4096, vK), valu('v_add_u32', vVa, vVa, vVinc)]
        return o
    BODY = [label(PFX + '_A0')]
    for j0 in range(0, 64, 4): BODY += body_at(j0)
    TL = iteration(0, qk=False, sm=True, pv=True, next_k=False, next_v=True) + iteration(1, qk=False, sm=False, pv=True, next_k=False, next_v=False)
    mid = stampn(ST, 'p2tail')
    epi = (dbg_dump(1) if DBGQ else []) + a_epilogue(True)
    a = epi.append
    a(vcmp('v_cmp_u_f32', 'vcc', vChk, vChk))
    a(valu('v_mov_b32', vT[1], hexs(FLAG))); a(valu('v_mov_b32', vT[0], 1))
    lf = newlabel('f')
    a(nop(2)); a(branch('s_cbranch_vccz', lf))
    a(ds_write('ds_write_b32', vT[1], vT[0]))
    a(label(lf))
    a(waitlgkm0()); a(barrier())
    a(ds_read('ds_read_b32', vT[2], vT[1]))
    a(valu('v_readfirstlane_b32', sTmp[0], vT[2]))
    a(salu('s_cmp_eq_u32', None, sTmp[0], 0)); a(branch('s_cbranch_scc1', PFX + '_red'))
    o = []; a = o.append
    for u in range(2): a(valu('v_mov_b32', vM[u], NEG_INF))
    a(valu('v_mov_b32', vK, vL16)); a(salu('s_mov_b32', sCnt, 64))
    a(label(PFX + '_safe_loop'))
    a(ds_read('ds_read_b128', vKf[0], vK, KBASE))
    for u in range(2): a(mfma32(vS(0, u), vKf[0], vQ[u], 0))
    a(nop(7)); a(nop(3))
    for u in range(2):
        for r in range(0, 16, 2): a(valu('v_max3_f32', vM[u], vM[u], vS(0, u)[r], vS(0, u)[r + 1]))
    a(valu('v_add_u32', vK, 1024, vK))
    a(salu('s_sub_u32', sCnt, sCnt, 1)); a(salu('s_cmp_lg_u32', None, sCnt, 0)); a(branch('s_cbranch_scc1', PFX + '_safe_loop'))
    for u in range(2):
        a(valu('v_mov_b32', vT[u], vM[u])); a(nop(1))
        a(valu('v_permlane32_swap_b32', vT[u], vM[u]))
        a(valu('v_max_f32', vM[u], vM[u], vT[u]))
    a(salu('s_mov_b32', sMode, 1))
    o += a_sample_and_init(newlabel('m'))
    safe1 = o
    SF = abody(first=True) + [salu('s_mov_b32', sCnt, 15)]
    SP = [label(PFX + '_SP')] + abody()
    gS = [salu('s_sub_u32', sCnt, sCnt, 1), salu('s_cmp_lg_u32', None, sCnt, 0), branch('s_cbranch_scc1', PFX + '_SP')]
    STL = iteration(0, qk=False, sm=True, pv=True, next_k=False, next_v=True) + iteration(1, qk=False, sm=False, pv=True, next_k=False, next_v=False)
    sepi = a_epilogue(False) + [waitlgkm0(), barrier()]
    if AOUT:
        wpre, xl, mmx = aout()
        sigC = one_lane_store(PFX + '_sigC', sTmp[0], vT[4], vT[5], [salu('s_cmp_lg_u32', None, sWV, 0), branch('s_cbranch_scc1', PFX + '_sigC'),
                  salu('s_lshl_b32', sTmp[0], sQG, 7), salu('s_lshl_b32', sTmp[1], sH, 2), salu('s_add_u32', sTmp[0], sTmp[0], sTmp[1]), salu('s_add_u32', sTmp[0], sTmp[0], hexs(FL_C))])
        cpi = [salu('s_lshr_b32', sP1, sTT, 2), salu('s_lshl_b32', sP1, sP1, 7), salu('s_add_u32', sP1, sP1, hexs(FL_C)), valu('v_lshlrev_b32', vPA, 2, vLane)]
        ldc = lambda tag=None: bload(vP1, vPA, srdWS, sP1, 0, op='buffer_load_dword', flags='sc1', tag=tag)
        cc = lambda: match(vP1, sTmp[1], 0xffffffff, 0)
        cpoll = cpi + [ldc('CP'), waitvm(need=['CP'])] + cc() + [branch('s_cbranch_scc0', f'{PFX}_spin_C'), label(f'{PFX}_spinr_C')]
        spins += spin('C', [ldc()], [cc()])
        red = [label(PFX + '_red')] + stampn(ST, 'p2red') + reduce_store(512, bar_need=['CA'], post_bar=sigC, pre=wpre)
        red += stampn(ST, 'p2poll') + cpoll + xl + stampn(ST, 'p2aout') + mmx + [barrier()] + reduce_store(0)
    else:
        red = [label(PFX + '_red')] + stampn(ST, 'p2red') + reduce_store()
    code = pro + BODY + TL + mid + epi + safe1 + SF + SP + gS + STL + sepi + red
    main = pro + BODY + TL + mid + epi
    return dict(code=code, spins=spins, trace_main=main + red, trace_safe=main + safe1 + SF + SP + gS + SP + gS + STL + sepi + red)
```

```python
import sys, importlib
from common import *
HEADER = open('concat_heads__mha_block__compressed_kv_cla__prompt.s.ref').read().split('; Override launch geometry')[0]

SINGLE = False
MAINNAME = 'concat_heads__mha_block__compressed_kv_cla__prompt_kernel'
def assemble(kernels):
    s = HEADER
    if len(kernels) == 1 and SINGLE:
        k = kernels[0]; l = k['launches'][0]
        k['body'] = k['body']; k['name'] = MAINNAME
        s += f"; @launch grid=({l[0]},1,1) block=({l[1]},1,1) lds={l[2]}\n"
    else:
      for k in kernels:
        for l in k['launches']:
            s += f"; @launch kernel={k['name']} grid=({l[0]},1,1) block=({l[1]},1,1) lds={l[2]}\n"
    s += '.amdgcn_target "amdgcn-amd-amdhsa--gfx950"\n'
    seen = set()
    for k in kernels:
        if k['name'] in seen: continue
        seen.add(k['name'])
        s += kernel_text(k['name'], k['body'], k['nvgpr'], k['accoff'])
    s += '.section .rodata,"a"\n'
    seen = set()
    for k in kernels:
        if k['name'] in seen: continue
        seen.add(k['name'])
        s += ".p2align 6\n" + kernel_desc(k['name'], k['nvgpr'], k['accoff'])
    return s

def main(out, which, opts):
    ks = []
    if 'proj' in which:
        import k_proj
        k_proj.NOSTORE = bool(int(opts.get('nostore', 0)))
        k_proj.TOUCH_STAGE = int(opts.get('tstage', 8))
        ks.append(dict(name='proj_kernel', body=k_proj.gen(store_flags=opts.get('proj_flags', ''), prof=bool(int(opts.get('prof', 0))), touch=bool(int(opts.get('touch', 1)))), nvgpr=512, accoff=256, launches=[(256, 256, k_proj.LDS_BYTES)]))
    if 'pb' in which:
        import k_pb
        ks.append(dict(name='pb_kernel', body=k_pb.gen(opts), nvgpr=512, accoff=256, launches=[(256, 256, k_pb.LDS_BYTES)]))
    if 'battn' in which:
        import k_battn
        ks.append(dict(name='battn_kernel', body=k_battn.gen(opts), nvgpr=512, accoff=256, launches=[(256, 256, k_battn.LDS_BYTES)]))
    if 'aattn' in which:
        import k_aattn
        ks.append(dict(name='aattn_kernel', body=k_aattn.gen(opts), nvgpr=k_aattn.NVGPR, accoff=k_aattn.ACCOFF, launches=[(256, 256, k_aattn.LDS_BYTES)]))
    if 'fuse3' in which:
        import k_fuse3
        ks.append(dict(name='fuse3_kernel', body=k_fuse3.gen(opts), nvgpr=k_fuse3.NVGPR, accoff=k_fuse3.ACCOFF, launches=[(256, 256, k_fuse3.LDS_BYTES)]))
    if 'oproj' in which:
        import k_oproj
        ks.append(dict(name='oproj_kernel', body=k_oproj.gen(opts), nvgpr=k_oproj.NVGPR, accoff=k_oproj.ACCOFF, launches=[(k_oproj.GRID, 256, k_oproj.LDS_BYTES)]))
    global SINGLE
    SINGLE = bool(int(opts.get('single', 0)))
    open(out, 'w').write(assemble(ks))

if __name__ == '__main__':
    out = sys.argv[1]; which = sys.argv[2].split(',')
    opts = dict(a.split('=', 1) for a in sys.argv[3:])
    main(out, which, opts)
```
